```python
import torch

def _softmax(x, axis=-1):
    return torch.softmax(x, dim=axis)
def _gelu(x):
    return torch.nn.functional.gelu(x, approximate="tanh")
def _silu(x):
    return torch.nn.functional.silu(x)
def _sigmoid(x):
    return torch.sigmoid(x)
def _layernorm(x, axis=-1, eps=1e-5):
    m = x.mean(dim=axis, keepdim=True)
    v = x.var(dim=axis, keepdim=True, unbiased=False)
    return (x - m) / torch.sqrt(v + eps)
def _scatter_add(tgt, idx, src, axis=0):
    return tgt.clone().index_add_(axis, idx, src)
def _segment_sum(src, seg, n):
    out = torch.zeros((n,) + src.shape[1:], dtype=src.dtype)
    return out.index_add_(0, seg, src)
def _pad(x, pw):
    flat = tuple(v for pair in reversed(pw) for v in pair)
    return torch.nn.functional.pad(x, flat)

kernel_name = 'recurrent_scan__linear_kernel_hedgehog__dense_activation_silu__prompt'

def setup_inputs():

    _w = (lambda a: (lambda t: t.to(torch.bfloat16) if t.is_floating_point() else t)(torch.as_tensor(a)))
    def _A_setup():
        B, S, D, H = 1, 2048, 640, 32
        Dh = D // H
        return {
            "x": _w((lambda *s: torch.randn(*s, dtype=torch.bfloat16) * 0.05)(B, S, D)),
            "wqkv": _w((lambda *s: torch.randn(*s, dtype=torch.bfloat16) * 0.4)(D, 3 * D)),
            "w_phi": _w((lambda *s: torch.randn(*s, dtype=torch.bfloat16) * 0.4)(H, Dh, Dh) * (Dh ** -0.5)),
            "wo": _w((lambda *s: torch.randn(*s, dtype=torch.bfloat16) * 0.2)(D, D)),
        }
    _A_in = _A_setup()

    def _B_setup():
        B, S, D, F = 1, 2048, 640, 1728
        return {
            "x": _w((lambda *s: torch.randn(*s, dtype=torch.bfloat16) * 0.05)(B, S, D)),
            "w1": _w((lambda *s: torch.randn(*s, dtype=torch.bfloat16) * 0.4)(D, F) * (D ** -0.5)),
            "w2": _w((lambda *s: torch.randn(*s, dtype=torch.bfloat16) * 0.1)(F, D) * (F ** -0.5)),
        }
    _B_in = _B_setup()

    return {
        "A_x": _A_in["x"],
        "A_wqkv": _A_in["wqkv"],
        "A_w_phi": _A_in["w_phi"],
        "A_wo": _A_in["wo"],
        "B_x": _B_in["x"],
        "B_w1": _B_in["w1"],
        "B_w2": _B_in["w2"],
    }

def reference(A_x, A_wqkv, A_w_phi, A_wo, B_x, B_w1, B_w2):
    def _A_ref(x, wqkv, w_phi, wo):
        B, S, D = x.shape
        H = 32; Dh = D // H
        qkv = (lambda x, *d: x.permute(*d))((x @ wqkv).reshape(B, S, 3, H, Dh), 2, 0, 3, 1, 4)
        q, k, v = qkv[0], qkv[1], qkv[2]
        pq = torch.einsum("bhsd,hdf->bhsf", q, w_phi)
        pk = torch.einsum("bhsd,hdf->bhsf", k, w_phi)
        phi_q = torch.concatenate([_softmax(pq, axis=-1), _softmax(-pq, axis=-1)], axis=-1)
        phi_k = torch.concatenate([_softmax(pk, axis=-1), _softmax(-pk, axis=-1)], axis=-1)
        kv = torch.einsum("bhsf,bhsd->bhfd", phi_k, v)
        z  = torch.einsum("bhsf->bhf", phi_k)
        num = torch.einsum("bhqf,bhfd->bhqd", phi_q, kv)
        den = torch.einsum("bhqf,bhf->bhq", phi_q, z)[..., None] + 1e-6
        o = num / den
        return (lambda x, *d: x.permute(*d))(o, 0, 2, 1, 3).reshape(B, S, D) @ wo

    def _B_ref(x, w1, w2):
        h = torch.einsum("bsd,df->bsf", x, w1)
        h = _silu(h)
        out = torch.einsum("bsf,fd->bsd", h, w2)
        return out

    x = A_x
    xn = _layernorm(x, axis=-1)
    s = _A_ref(xn, A_wqkv, A_w_phi, A_wo)
    g = _silu(_B_ref(xn, B_w1, B_w2))
    return x + s * g
```

```python
import re

TRANS = ("v_exp_f32", "v_log_f32", "v_rcp_f32", "v_rsq_f32", "v_sqrt_f32", "v_sin_f32", "v_cos_f32", "v_rcp_iflag_f32")

def _regs(tok):
    tok = tok.strip()
    tok = tok.lstrip("-")
    m = re.match(r"^(abs|neg)\((.*)\)$", tok)
    if m: tok = m.group(2)
    tok = tok.strip("|")
    m = re.match(r"^([vsa])\[(\d+):(\d+)\]$", tok)
    if m:
        return {(m.group(1), i) for i in range(int(m.group(2)), int(m.group(3)) + 1)}
    m = re.match(r"^([vsa])(\d+)$", tok)
    if m:
        return {(m.group(1), int(m.group(2)))}
    if tok in ("vcc", "vcc_lo", "vcc_hi"): return {("x", "vcc")}
    if tok in ("exec", "exec_lo", "exec_hi"): return {("x", "exec")}
    if tok == "m0": return {("x", "m0")}
    return set()

class Ins:
    __slots__ = ("text", "mn", "cls", "defs", "uses", "ws", "srcc", "passes", "wide_store", "ab", "lds_dma", "is_trans", "is_dot")

def parse(text):
    t = text.split(";")[0].strip()
    I = Ins(); I.text = text
    parts = t.split(None, 1)
    mn = parts[0]; I.mn = mn
    ops = []
    if len(parts) > 1:
        ops = [o.strip() for o in re.split(r",(?![^\[]*\])", parts[1])]
    mods = ""
    if ops:
        sp = ops[-1].split(None, 1)
        if len(sp) > 1:
            ops[-1] = sp[0]; mods = sp[1]
    I.defs = set(); I.uses = set(); I.ws = 1; I.srcc = set(); I.passes = 0; I.wide_store = False; I.ab = set()
    I.lds_dma = False; I.is_trans = False; I.is_dot = False
    if mn.startswith("v_mfma"):
        I.cls = "mfma"
        I.defs = _regs(ops[0]); I.ab = _regs(ops[1]) | _regs(ops[2]); I.srcc = _regs(ops[3]); I.uses = I.ab | I.srcc
        I.passes = 8 if "32x32" in mn else 4
    elif mn.startswith("v_"):
        I.cls = "valu"
        I.is_trans = mn.split("_e")[0] in TRANS or mn in TRANS
        I.is_dot = mn.startswith("v_dot")
        if mn == "v_nop":
            pass
        elif mn.startswith("v_permlane") and "swap" in mn:
            I.defs = _regs(ops[0]) | _regs(ops[1]); I.uses = set(I.defs)
        else:
            I.defs = _regs(ops[0])
            rest = ops[1:]
            if "_co_" in mn or mn.startswith("v_div_scale"):
                I.defs |= _regs(ops[1]); rest = ops[2:]
            for o in rest: I.uses |= _regs(o)
            if mn.startswith("v_fmac") or mn.startswith("v_dot2c") or mn.startswith("v_pk_fmac") or mn.startswith("v_writelane"):
                I.uses |= I.defs
            if mn.startswith("v_cndmask") and len(ops) == 3: I.uses |= {("x", "vcc")}
            if mn.startswith("v_cmpx"): I.defs |= {("x", "exec")}
    elif mn.startswith("buffer_") or mn.startswith("global_"):
        I.cls = "vmem"
        is_lds = " lds" in (" " + mods) or "_lds_" in mn
        if "load" in mn and not is_lds:
            I.defs = _regs(ops[0])
            for o in ops[1:]: I.uses |= _regs(o)
        else:
            for o in ops: I.uses |= _regs(o)
            if "atomic" in mn and "sc0" in mods: I.defs = _regs(ops[0])
            if is_lds:
                I.lds_dma = True; I.uses |= {("x", "m0")}
            if ("store" in mn) and ("x3" in mn or "x4" in mn):
                I.wide_store = True
                I.srcc = _regs(ops[0]) if mn.startswith("buffer_") else _regs(ops[1])
    elif mn.startswith("ds_"):
        I.cls = "ds"
        if mn.startswith("ds_read") or mn.startswith("ds_bpermute") or mn.startswith("ds_permute") or mn.startswith("ds_swizzle") or "_rtn" in mn:
            I.defs = _regs(ops[0])
            for o in ops[1:]: I.uses |= _regs(o)
        else:
            for o in ops: I.uses |= _regs(o)
    elif mn == "s_nop":
        I.cls = "nop"; I.ws = int(ops[0], 0) + 1
    elif mn.startswith("s_"):
        I.cls = "salu"
        if mn.startswith(("s_waitcnt", "s_barrier", "s_branch", "s_cbranch", "s_endpgm", "s_setprio", "s_sleep")):
            pass
        elif mn.startswith("s_cmp") or mn.startswith("s_bitcmp"):
            for o in ops: I.uses |= _regs(o)
        else:
            if ops: I.defs = _regs(ops[0])
            for o in ops[1:]: I.uses |= _regs(o)
            if "saveexec" in mn: I.defs |= {("x", "exec")}
    else:
        raise ValueError("unknown instr " + text)
    return I

def need(P, C):
    n = 0
    vdefs = {r for r in P.defs if r[0] in "va"}
    sdefs = {r for r in P.defs if r[0] == "s" or r == ("x", "vcc")}
    if P.cls == "valu":
        if C.cls == "mfma" and vdefs & C.uses: n = max(n, 2)
        if P.is_trans and C.cls == "valu" and not C.is_trans and vdefs & C.uses: n = max(n, 1)
        if sdefs & C.uses:
            if C.cls == "vmem": n = max(n, 5)
            if C.cls == "valu":
                n = max(n, 4 if C.mn.startswith(("v_readlane", "v_writelane", "v_div_fmas")) else 2)
            if C.cls == "salu": n = max(n, 1)
        if C.cls == "valu" and vdefs & C.uses:
            if C.mn.startswith(("v_readfirstlane", "v_readlane")): n = max(n, 1)
            if C.mn.startswith("v_permlane") or "dpp" in C.text or "row_" in C.text or "quad_perm" in C.text: n = max(n, 2)
        if P.is_dot and vdefs & (C.uses | C.defs):
            if not (C.cls == "valu" and C.mn == P.mn and not (vdefs & (C.uses - _srcc_of_dot(C)))): n = max(n, 3)
        if ("x", "exec") in P.defs:
            n = max(n, 5)
    if P.cls == "mfma":
        d = 8 if P.passes == 4 else 12
        if C.cls == "mfma":
            if P.defs & C.ab: n = max(n, d)
            if P.defs & C.srcc and not (P.defs == C.srcc and P.passes == C.passes): n = max(n, d - 2)
            if P.defs & C.defs and not (P.defs == C.srcc and P.passes == C.passes): n = max(n, d)
        elif C.cls in ("valu", "vmem", "ds"):
            if P.defs & (C.uses | C.defs): n = max(n, d)
            if C.cls == "valu" and P.srcc & C.defs: n = max(n, 3 if P.passes == 4 else 7)
    if P.cls == "salu":
        if ("x", "m0") in P.defs and C.lds_dma: n = max(n, 1)
    if P.cls == "vmem" and P.wide_store:
        if P.srcc & C.defs: n = max(n, 2)
    return n

def _srcc_of_dot(C):
    t = C.text.split(";")[0]
    ops = [o.strip() for o in re.split(r",(?![^\[]*\])", t.split(None, 1)[1])]
    return _regs(ops[3].split()[0]) if len(ops) > 3 else set()

class Asm:
    def __init__(self):
        self.out = []
        self.hist = []
        self.nops = 0
    def raw(self, text):
        self.out.append(text)
    def label(self, name):
        self.out.append(name + ":")
    def comment(self, c):
        self.out.append("    ; " + c)
    def __call__(self, text):
        for line in text.strip().split("\n"):
            line = line.strip()
            if not line or line.startswith(";"): continue
            self._one(line)
    def _one(self, text):
        I = parse(text)
        pad = 0; dist = 0
        for P in reversed(self.hist):
            nn = need(P, I)
            if nn > dist: pad = max(pad, nn - dist)
            dist += P.ws
            if dist >= 20: break
        while pad > 0:
            k = min(pad, 16)
            J = parse("s_nop %d" % (k - 1))
            self.out.append("    s_nop %d" % (k - 1)); self.hist.append(J); pad -= k; self.nops += 1
        self.out.append("    " + text)
        self.hist.append(I)
        if len(self.hist) > 40: self.hist = self.hist[-40:]
    def text(self):
        return "\n".join(self.out) + "\n"
```

```python
import sys
from asmlib import Asm

NAME = "recurrent_scan__linear_kernel_hedgehog__dense_activation_silu__prompt"
HF_OFF = 0
PQ_OFF = 128 * 54 * 1024
WF_OFF = PQ_OFF + 128 * 8 * 5 * 1024
KV_OFF = WF_OFF + 74 * 40 * 1024
WS_USED = KV_OFF + 32 * 21 * 40 * 4
OOB = 0x40000000
LOG2E = 0x3fb8aa3b

NS = 5
STAGE = 24576
AUX = NS * STAGE
MISC = AUX + 24576
STAT = MISC
CSUM = MISC + 1024
K1_LDS = MISC + 2048
PHK = 0; PHK_P = 352
VI = 128 * PHK_P; VI_P = 224
KVS = VI + 128 * VI_P
KVDUMP = KVS + 13440

def srd(a, d, lo, hi, size):
    a(f"s_mov_b32 s{d}, s{lo}")
    a(f"s_mov_b32 s{d+1}, s{hi}")
    a(f"s_mov_b32 s{d+2}, {size}")
    a(f"s_mov_b32 s{d+3}, 0x00020000")

def bf16_round(a, v, tmp=None):
    a(f"v_cvt_pk_bf16_f32 v{v}, v{v}, v{v}")
    a(f"v_lshlrev_b32 v{v}, 16, v{v}")

def gen_k1():
    a = Asm()
    a.raw(f".globl k1_kernel\n.p2align 8\n.type k1_kernel,@function\nk1_kernel:")
    a("s_cmp_ge_u32 s2, 256")
    a("s_cbranch_scc1 K1_END")
    a("s_load_dwordx16 s[4:19], s[0:1], 0")
    a("s_load_dwordx4 s[20:23], s[0:1], 64")
    a("v_and_b32 v1, 63, v0")
    a("v_and_b32 v2, 15, v0")
    a("v_lshrrev_b32 v3, 4, v1")
    a("v_lshrrev_b32 v24, 6, v0")
    a("v_readfirstlane_b32 s48, v24")
    a("s_and_b32 s49, s2, 7")
    a("s_lshr_b32 s50, s2, 3")
    a("s_and_b32 s51, s49, 1")
    a("s_lshl_b32 s51, s51, 3")
    a("s_and_b32 s52, s50, 7")
    a("s_add_u32 s51, s51, s52")
    a("s_lshr_b32 s52, s49, 1")
    a("s_lshr_b32 s53, s50, 3")
    a("s_lshl_b32 s52, s52, 1")
    a("s_and_b32 s54, s53, 1")
    a("s_add_u32 s52, s52, s54")
    a("s_lshr_b32 s53, s53, 1")
    a("s_and_b32 s54, s48, 3")
    a("s_lshr_b32 s55, s48, 2")
    a("v_mov_b32 v13, 0x3f803f80")
    a("s_waitcnt lgkmcnt(0)")
    srd(a, 24, 4, 5, 2621440)
    srd(a, 32, 22, 23, WS_USED)
    srd(a, 44, 20, 21, 256)
    a(f"s_mul_i32 s57, s52, 13440")
    a(f"s_add_u32 s57, s57, {KV_OFF}")
    a("s_add_u32 s40, s22, s57")
    a("s_addc_u32 s41, s23, 0")
    a("s_mov_b32 s42, 13440")
    a("s_mov_b32 s43, 0x00020000")
    a("v_lshlrev_b32 v24, 2, v0")
    a("v_mov_b32 v25, 0")
    a(f"ds_write_b32 v24, v25 offset:0")
    a.out.pop(); a.hist.pop()
    a(f"v_add_u32 v24, {MISC}, v24")
    a("ds_write_b32 v24, v25")
    for r in range(64, 128): a(f"v_mov_b32 v{r}, 0")
    for r in range(14, 24): a(f"v_mov_b32 v{r}, 0")
    a("s_cmp_eq_u32 s53, 0")
    a("s_cbranch_scc0 K1_SETUP_H")
    srd(a, 28, 6, 7, 640 * 1920 * 2)
    a("s_mov_b32 s56, 122880")
    a("s_cmp_eq_u32 s51, 0")
    a("s_cbranch_scc0 K1_NOZERO")
    a("v_lshlrev_b32 v24, 4, v0")
    a("v_mov_b32 v28, 0\nv_mov_b32 v29, 0\nv_mov_b32 v30, 0\nv_mov_b32 v31, 0")
    a("buffer_store_dwordx4 v[28:31], v24, s[40:43], 0 offen sc0 sc1")
    a("v_add_u32 v24, 8192, v24")
    a("buffer_store_dwordx4 v[28:31], v24, s[40:43], 0 offen sc0 sc1")
    a.label("K1_NOZERO")
    srd(a, 36, 8, 9, 25600)
    a("s_cmp_lt_u32 s48, 4")
    a("s_cbranch_scc0 K1_NOWPHI")
    a("v_lshlrev_b32 v24, 4, v0")
    a("s_mul_i32 s57, s52, 3200")
    a("v_add_u32 v25, s57, v24")
    a(f"v_mov_b32 v26, {OOB}")
    a("v_cmp_gt_u32 vcc, 3200, v24")
    a("v_cndmask_b32 v25, v26, v25, vcc")
    a("s_lshl_b32 s57, s48, 10")
    a(f"s_add_u32 s57, s57, {AUX}")
    a("s_mov_b32 m0, s57")
    a("buffer_load_dwordx4 v25, s[36:39], 0 offen lds")
    a.label("K1_NOWPHI")
    for jj in range(3):
        a(f"s_mul_i32 s57, s48, 192")
        a(f"s_add_u32 s57, s57, {64*jj}")
        a("v_add_u32 v24, s57, v1")
        a("v_mul_u32_u24 v25, 2185, v24")
        a("v_lshrrev_b32 v25, 16, v25")
        a("v_mul_u32_u24 v26, 30, v25")
        a("v_sub_u32 v26, v24, v26")
        a("v_lshrrev_b32 v27, 1, v25")
        a("v_and_b32 v27, 4, v27")
        a("v_xor_b32 v25, v25, v27")
        a("v_mul_u32_u24 v27, 26, v26")
        a("v_lshrrev_b32 v27, 8, v27")
        a("v_mul_u32_u24 v28, 10, v27")
        a("v_sub_u32 v28, v26, v28")
        a("v_mul_u32_u24 v25, 3840, v25")
        a("v_mul_u32_u24 v27, 1280, v27")
        a("v_lshlrev_b32 v28, 4, v28")
        a("v_add3_u32 v25, v25, v27, v28")
        a("s_mul_i32 s57, s52, 160")
        a(f"v_add_u32 v{4+jj}, s57, v25")
    a("v_and_b32 v26, 3, v1")
    a("v_mul_u32_u24 v26, 40, v26")
    a("s_branch K1_SETUP_COMMON")
    a.label("K1_SETUP_H")
    srd(a, 28, 14, 15, 640 * 1728 * 2)
    a("s_mov_b32 s56, 110592")
    a("s_mul_i32 s58, s52, 224")
    a("s_min_u32 s58, s58, 1536")
    a("s_mov_b32 s59, 28")
    a("s_cmp_ge_u32 s52, 6")
    a("s_cselect_b32 s59, 24, s59")
    a("s_lshl_b32 s60, s51, 3")
    a("s_add_u32 s60, s60, s52")
    a("s_lshl_b32 s57, s48, 2")
    a("v_add_u32 v24, s57, v3")
    a("v_lshrrev_b32 v25, 3, v24")
    a("v_and_b32 v26, 7, v24")
    for n in range(3):
        a(f"s_add_u32 s61, s60, {128*n}")
        a("s_mul_i32 s62, s61, 205")
        a("s_lshr_b32 s62, s62, 10")
        a("s_mul_i32 s63, s62, 5")
        a("s_sub_u32 s63, s61, s63")
        a("v_lshrrev_b32 v27, 2, v26")
        a("v_lshlrev_b32 v27, 4, v27")
        a("v_lshl_add_u32 v27, v25, 2, v27")
        a("v_and_b32 v28, 3, v26")
        a("v_add_u32 v27, v27, v28")
        a("s_lshl_b32 s64, s62, 5")
        a("v_add_u32 v27, s64, v27")
        a("s_sub_u32 s64, s62, 54")
        a("s_max_i32 s64, s64, 0")
        a("s_mul_i32 s65, s64, 205")
        a("s_lshr_b32 s65, s65, 10")
        a("s_mul_i32 s66, s65, 5")
        a("s_sub_u32 s66, s64, s66")
        a("s_lshl_b32 s66, s66, 3")
        a("v_add_u32 v28, s66, v26")
        a("v_mul_u32_u24 v29, 205, v28")
        a("v_lshrrev_b32 v29, 10, v29")
        a("v_mul_u32_u24 v30, 5, v29")
        a("v_sub_u32 v30, v28, v30")
        a("v_mul_u32_u24 v29, 20, v29")
        a("v_mul_u32_u24 v31, 5, v25")
        a("v_add3_u32 v29, v29, v30, v31")
        a("s_mul_i32 s65, s65, 160")
        a("v_add_u32 v29, s65, v29")
        a("s_cmp_ge_u32 s62, 54")
        a("s_cselect_b32 s36, s10, s16")
        a("s_cselect_b32 s37, s11, s17")
        a(f"s_mov_b32 s38, {1728*640*2}")
        a(f"s_cselect_b32 s38, {640*640*2}, s38")
        a("s_mov_b32 s39, 0x00020000")
        a("s_cselect_b64 vcc, -1, 0")
        a("v_cndmask_b32 v27, v27, v29, vcc")
        a("v_mul_u32_u24 v27, 1280, v27")
        a("v_lshl_add_u32 v27, v2, 4, v27")
        a("s_lshl_b32 s64, s63, 8")
        a("s_cmp_ge_u32 s61, 370")
        a(f"s_cselect_b32 s64, {OOB}, s64")
        a("s_lshl_b32 s65, s48, 10")
        a(f"s_add_u32 s65, s65, {AUX + 8192*n}")
        a("s_mov_b32 m0, s65")
        a("buffer_load_dwordx4 v27, s[36:39], s64 offen lds")
    for jj in range(3):
        a(f"s_mul_i32 s57, s48, 192")
        a(f"s_add_u32 s57, s57, {64*jj}")
        a("v_add_u32 v24, s57, v1")
        a("v_mul_u32_u24 v25, 2185, v24")
        a("v_lshrrev_b32 v25, 16, v25")
        a("v_mul_u32_u24 v26, 30, v25")
        a("v_sub_u32 v26, v24, v26")
        a("v_lshrrev_b32 v27, 1, v25")
        a("v_and_b32 v27, 4, v27")
        a("v_xor_b32 v25, v25, v27")
        a("v_mul_u32_u24 v25, 3456, v25")
        a("v_lshl_add_u32 v25, v26, 4, v25")
        a("s_lshl_b32 s57, s58, 1")
        a("v_add_u32 v25, s57, v25")
        a(f"v_mov_b32 v27, {OOB}")
        a("v_cmp_gt_u32 vcc, s59, v26")
        a(f"v_cndmask_b32 v{4+jj}, v27, v25, vcc")
    a("v_and_b32 v26, 3, v1")
    a("v_lshlrev_b32 v26, 3, v26")
    a.label("K1_SETUP_COMMON")
    a("s_cmp_ge_u32 s48, 5")
    a("s_cselect_b32 s36, s24, s28")
    a("s_cselect_b32 s37, s25, s29")
    a("s_cselect_b32 s38, s26, s30")
    a("s_mov_b32 s39, 0x00020000")
    a("s_cselect_b32 s56, 64, s56")
    a("s_cbranch_scc0 K1_NOTA")
    for jj in range(3):
        a("s_mul_i32 s57, s48, 3")
        a(f"s_add_u32 s57, s57, {jj}")
        a("s_sub_u32 s57, s57, 15")
        a("s_lshl_b32 s61, s57, 4")
        a("s_lshl_b32 s62, s51, 7")
        a("s_add_u32 s61, s61, s62")
        a("v_add_u32 v24, s61, v2")
        a("v_mul_u32_u24 v24, 1280, v24")
        a("v_lshl_add_u32 v24, v3, 4, v24")
        a("s_cmp_ge_u32 s57, 8")
        a(f"s_cselect_b32 s61, {OOB}, 0")
        a(f"v_add_u32 v{4+jj}, s61, v24")
    a.label("K1_NOTA")
    a("s_lshl_b32 s57, s54, 11")
    a("s_add_u32 s57, s57, 15360")
    a("v_lshlrev_b32 v7, 4, v1")
    a("v_add_u32 v7, s57, v7")
    a("v_lshrrev_b32 v24, 2, v1")
    a("v_and_b32 v24, 3, v24")
    a("v_lshl_add_u32 v24, v3, 3, v24")
    a("v_and_b32 v25, 1, v3")
    a("v_lshlrev_b32 v25, 2, v25")
    a("v_add_u32 v27, v24, v25")
    a("v_xor_b32 v25, 4, v25")
    a("v_add_u32 v28, v24, v25")
    a("v_mul_u32_u24 v27, 480, v27")
    a("v_mul_u32_u24 v28, 480, v28")
    a("v_add_u32 v8, v27, v26")
    a("v_add_u32 v9, v28, v26")
    a("s_mul_i32 s60, s48, 3072")
    a("s_mov_b32 s61, 0")
    for st in range(NS):
        for jj in range(3):
            a(f"s_add_u32 s57, s60, {st*STAGE + jj*1024}")
            a("s_mov_b32 m0, s57")
            a(f"buffer_load_dwordx4 v{4+jj}, s[36:39], s61 offen lds")
        a("s_add_u32 s61, s61, s56")
    a(f"s_waitcnt vmcnt({3*(NS-1)}) lgkmcnt(0)")
    a("s_barrier")
    a("s_or_b32 s57, s51, s53")
    a("s_or_b32 s57, s57, s48")
    a("s_cmp_eq_u32 s57, 0")
    a("s_cbranch_scc0 K1_NOFLAG")
    a("s_lshl_b32 s57, s52, 2")
    a("v_mov_b32 v24, s57")
    a("v_mov_b32 v25, 1")
    a("s_mov_b64 s[62:63], exec")
    a("s_mov_b64 exec, 1")
    a("buffer_atomic_add v25, v24, s[44:47], 0 offen")
    a("s_mov_b64 exec, s[62:63]")
    a.label("K1_NOFLAG")
    a("s_mov_b32 s62, 0")
    a("s_mov_b32 s63, 0")
    a(f"s_mov_b32 s64, {STAGE}")
    a("s_lshl_b32 s57, s53, 1")
    a("s_add_u32 s57, s57, s55")
    a("s_cmp_eq_u32 s57, 1")
    a("s_cbranch_scc1 K1_R1")
    a("s_cmp_eq_u32 s57, 2")
    a("s_cbranch_scc1 K1_R2")
    a("s_cmp_eq_u32 s57, 3")
    a("s_cbranch_scc1 K1_R3")
    roles = {
        0: [160 + 8*j for j in range(5)] + [320 + 8*j for j in range(3)],
        1: [8*j for j in range(5)] + [320 + 8*j for j in (3, 4)],
        2: [32*t for t in range(8)],
        3: [32*t for t in range(8, 14)],
    }
    for role in range(4):
        a.label(f"K1_R{role}")
        k1_loop(a, role, roles[role])
        k1_epi_common(a, role, len(roles[role]))
        if role < 2: k1_epi_qkv(a, role)
        else: k1_epi_h(a, role)
        a("s_branch K1_END")
    a.label("K1_END")
    a("s_endpgm")
    return a

XA, XB, YA, YB = 128, 136, 168, 176

def frag_reads(imms, A, B, va, vb0, vb1):
    L = []
    L.append(f"ds_read_b128 v[{A}:{A+3}], v{va}")
    L.append(f"ds_read_b128 v[{A+4}:{A+7}], v{va} offset:1024")
    for t, im in enumerate(imms):
        L.append(f"ds_read_b64_tr_b16 v[{B+4*t}:{B+4*t+1}], v{vb0} offset:{im}")
        L.append(f"ds_read_b64_tr_b16 v[{B+4*t+2}:{B+4*t+3}], v{vb1} offset:{im}")
    return L

def k1_loop(a, role, imms):
    NT = len(imms); ch = role & 1
    for s in frag_reads(imms, XA, XB, 7, 8, 9): a(s)
    a.label(f"K1_LOOP{role}")
    for half in range(2):
        CA, CB, NA, NB = (XA, XB, YA, YB) if half == 0 else (YA, YB, XA, XB)
        a(f"s_waitcnt vmcnt({3*(NS-2)}) lgkmcnt(0)")
        a("s_barrier")
        a("v_add_u32 v10, s64, v7")
        a("v_add_u32 v11, s64, v8")
        a("v_add_u32 v12, s64, v9")
        side = []
        rd = frag_reads(imms, NA, NB, 10, 11, 12)
        dma = []
        dma.append(["s_cmp_ge_u32 s62, %d" % (20 - NS), f"s_cselect_b32 s65, {OOB}, s61", "s_add_u32 s57, s60, s63"])
        for jj in range(3):
            dma.append(["s_mov_b32 m0, s57", "s_add_u32 s57, s57, 1024", f"buffer_load_dwordx4 v{4+jj}, s[36:39], s65 offen lds"])
        st = []
        for rt in range(2):
            for d in range(4):
                r = CA + 4*rt + d
                st.append(f"v_dot2_f32_bf16 v{14+rt}, v{r}, v{13 if ch == 0 else r}, v{14+rt}")
        side = [[x] for x in rd] + dma + [[x] for x in st]
        mf = []
        for t in range(NT):
            for rt in range(2):
                ac = 64 + 8*t + 4*rt
                mf.append(f"v_mfma_f32_16x16x32_bf16 v[{ac}:{ac+3}], v[{CB+4*t}:{CB+4*t+3}], v[{CA+4*rt}:{CA+4*rt+3}], v[{ac}:{ac+3}]")
        per = -(-len(side) // len(mf))
        si = 0
        for m in mf:
            a(m)
            for _ in range(per):
                if si < len(side):
                    for x in side[si]: a(x)
                    si += 1
        while si < len(side):
            for x in side[si]: a(x)
            si += 1
        a("s_and_b32 s57, s62, 3")
        a("s_cmp_eq_u32 s57, s54")
        a(f"s_cbranch_scc0 K1_NOCS{role}_{half}")
        for d in range(4):
            for t in range(NT):
                a(f"v_dot2_f32_bf16 v{16+t}, v{CB+4*t+d}, v13, v{16+t}")
        a.label(f"K1_NOCS{role}_{half}")
        a("s_add_u32 s61, s61, s56")
        a("s_mov_b32 s63, s64")
        a(f"s_add_u32 s64, s64, {STAGE}")
        a(f"s_cmp_ge_u32 s64, {NS*STAGE}")
        a("s_cselect_b32 s64, 0, s64")
        a("s_add_u32 s62, s62, 1")
    a("s_cmp_lt_u32 s62, 20")
    a(f"s_cbranch_scc1 K1_LOOP{role}")

def k1_epi_common(a, role, NT):
    ch = role & 1
    a("s_lshl_b32 s57, s54, 7")
    a(f"s_add_u32 s57, s57, {STAT + 512*ch}")
    a("v_lshlrev_b32 v24, 2, v2")
    a("v_add_u32 v25, s57, v24")
    a("ds_add_f32 v25, v14")
    a("ds_add_f32 v25, v15 offset:64")
    a(f"v_add_u32 v26, {CSUM + 512*ch}, v24")
    for t in range(NT):
        a(f"ds_add_f32 v26, v{16+t} offset:{64*t}")
    a("s_waitcnt vmcnt(0) lgkmcnt(0)")
    a("s_barrier")
    a("s_lshl_b32 s57, s54, 7")
    a(f"s_add_u32 s57, s57, {STAT}")
    a("v_add_u32 v25, s57, v24")
    a("ds_read_b32 v28, v25")
    a("ds_read_b32 v29, v25 offset:64")
    a("ds_read_b32 v30, v25 offset:512")
    a("ds_read_b32 v31, v25 offset:576")
    a("v_lshlrev_b32 v26, 4, v3")
    a(f"v_add_u32 v26, {CSUM + 512*ch}, v26")
    for t in range(NT):
        a(f"ds_read_b128 v[{128+4*t}:{128+4*t+3}], v26 offset:{64*t}")
    a("s_waitcnt lgkmcnt(0)")
    inv640 = 0x3acccccd
    for rt in range(2):
        s, q = 28 + rt, 30 + rt
        a(f"v_mul_f32 v{s}, {inv640}, v{s}")
        a(f"v_mul_f32 v{q}, {inv640}, v{q}")
        a(f"v_fma_f32 v{q}, -v{s}, v{s}, v{q}")
        a(f"v_max_f32 v{q}, 0, v{q}")
        bf16_round(a, s)
        bf16_round(a, q)
        a(f"v_add_f32 v{q}, 0x3727c5ac, v{q}")
        bf16_round(a, q)
        a(f"v_sqrt_f32 v{q}, v{q}")
        bf16_round(a, q)
        a(f"v_rcp_f32 v{q}, v{q}")
    for t in range(NT):
        for rt in range(2):
            for r in range(4):
                ac = 64 + 8*t + 4*rt + r
                a(f"v_fma_f32 v{ac}, -v{28+rt}, v{128+4*t+r}, v{ac}")
    for t in range(NT):
        for rt in range(2):
            for r in range(4):
                ac = 64 + 8*t + 4*rt + r
                a(f"v_mul_f32 v{ac}, v{30+rt}, v{ac}")

def k1_epi_qkv(a, role):
    ch = role
    NV = 3 if ch == 0 else 2
    v0j = 0 if ch == 0 else 3
    for rt in range(2):
        for t in range(5):
            ac = 64 + 8*t + 4*rt
            a(f"v_cvt_pk_bf16_f32 v{160+12*rt+2*t}, v{ac}, v{ac+1}")
            a(f"v_cvt_pk_bf16_f32 v{160+12*rt+2*t+1}, v{ac+2}, v{ac+3}")
        for t in range(NV):
            ac = 64 + 8*(5+t) + 4*rt
            a(f"v_cvt_pk_bf16_f32 v{184+6*rt+2*t}, v{ac}, v{ac+1}")
            a(f"v_cvt_pk_bf16_f32 v{184+6*rt+2*t+1}, v{ac+2}, v{ac+3}")
    a("s_lshl_b32 s57, s54, 5")
    a("v_add_u32 v24, s57, v2")
    a(f"v_mul_u32_u24 v25, {VI_P}, v24")
    a("v_mul_u32_u24 v26, 48, v3")
    a(f"v_add3_u32 v25, v25, v26, {VI}" if False else f"v_add_u32 v25, v25, v26")
    a(f"v_add_u32 v25, {VI}, v25")
    for rt in range(2):
        for t in range(NV):
            a(f"ds_write_b64 v25, v[{184+6*rt+2*t}:{184+6*rt+2*t+1}] offset:{rt*16*VI_P + 8*(v0j+t)}")
    if ch == 1:
        a("v_mov_b32 v32, 0x00003f80")
        a("v_mov_b32 v33, 0")
        for rt in range(2):
            a(f"ds_write_b64 v25, v[32:33] offset:{rt*16*VI_P + 40}")
    a("v_lshrrev_b32 v26, 2, v1")
    a("v_and_b32 v26, 3, v26")
    a("v_and_b32 v27, 3, v1")
    a("v_mul_u32_u24 v28, 800, v3")
    a("v_mul_u32_u24 v29, 40, v26")
    a("v_add_u32 v28, v28, v29")
    a(f"v_add_u32 v28, {AUX}, v28")
    a(f"v_mov_b32 v29, {AUX+3200}")
    a("v_cmp_eq_u32 vcc, v27, v3")
    for i in range(5):
        a(f"v_add_u32 v30, {160*i}, v28")
        a(f"v_cndmask_b32 v{34+i}, v29, v30, vcc")
    def wread(j, base):
        for i in range(5):
            a(f"ds_read_b64_tr_b16 v[{base+2*i}:{base+2*i+1}], v{34+i} offset:{8*j}")
    for z in (170, 171, 182, 183, 206, 207, 218, 219): a(f"v_mov_b32 v{z}, 0")
    wread(0, 196)
    for j in range(5):
        base = 196 + 12*(j & 1)
        if j < 4: wread(j+1, 196 + 12*((j+1) & 1))
        a(f"s_waitcnt lgkmcnt({5 if j < 4 else 0})")
        for rt in range(2):
            D = 64 + 20*rt + 4*j
            F = 160 + 12*rt
            a(f"v_mfma_f32_16x16x32_bf16 v[{D}:{D+3}], v[{base}:{base+3}], v[{F}:{F+3}], 0")
            a(f"v_mfma_f32_16x16x32_bf16 v[{D}:{D+3}], v[{base+4}:{base+7}], v[{F+4}:{F+7}], v[{D}:{D+3}]")
            a(f"v_mfma_f32_16x16x32_bf16 v[{D}:{D+3}], v[{base+8}:{base+11}], v[{F+8}:{F+11}], v[{D}:{D+3}]")
    a(f"s_mov_b32 s57, {LOG2E}")
    for rt in range(2):
        P = 64 + 20*rt
        E = 104
        O = 220
        a(f"v_max3_f32 v40, v{P}, v{P+1}, v{P+2}")
        a(f"v_min3_f32 v41, v{P}, v{P+1}, v{P+2}")
        for i in range(3, 19, 2):
            a(f"v_max3_f32 v40, v40, v{P+i}, v{P+i+1}")
            a(f"v_min3_f32 v41, v41, v{P+i}, v{P+i+1}")
        a(f"v_max_f32 v40, v40, v{P+19}")
        a(f"v_min_f32 v41, v41, v{P+19}")
        a("v_mul_f32 v40, s57, v40")
        a("v_mul_f32 v41, s57, v41")
        for i in range(20):
            a(f"v_fma_f32 v{E+i}, v{P+i}, s57, -v40")
            a(f"v_fma_f32 v{P+i}, -v{P+i}, s57, v41")
        for i in range(20):
            a(f"v_exp_f32 v{E+i}, v{E+i}")
            a(f"v_exp_f32 v{P+i}, v{P+i}")
        a(f"v_add_f32 v42, v{E}, v{E+1}")
        a(f"v_add_f32 v43, v{P}, v{P+1}")
        for i in range(2, 20):
            a(f"v_add_f32 v42, v42, v{E+i}")
            a(f"v_add_f32 v43, v43, v{P+i}")
        a("v_rcp_f32 v42, v42")
        a("v_rcp_f32 v43, v43")
        for i in range(20):
            a(f"v_mul_f32 v{E+i}, v42, v{E+i}")
            a(f"v_mul_f32 v{P+i}, v43, v{P+i}")
        for i in range(10):
            a(f"v_cvt_pk_bf16_f32 v{O+i}, v{E+2*i}, v{E+2*i+1}")
            a(f"v_cvt_pk_bf16_f32 v{O+10+i}, v{P+2*i}, v{P+2*i+1}")
        if ch == 0:
            if rt == 0:
                a(f"v_mul_u32_u24 v44, {PHK_P}, v24")
                a("v_mul_u32_u24 v45, 80, v3")
                a("v_add_u32 v44, v44, v45")
            for m in range(5):
                a(f"ds_write_b128 v44, v[{O+4*m}:{O+4*m+3}] offset:{PHK + rt*16*PHK_P + 16*m}")
            if rt == 0: a("s_waitcnt lgkmcnt(0)")
        else:
            if rt == 0:
                a("s_lshl_b32 s58, s51, 3")
                a("s_lshl_b32 s59, s54, 1")
                a("s_add_u32 s58, s58, s59")
                a("s_lshl_b32 s58, s58, 3")
                a("s_add_u32 s58, s58, s52")
                a("s_mul_i32 s58, s58, 5120")
                a(f"s_add_u32 s58, s58, {PQ_OFF}")
                a("v_lshlrev_b32 v44, 4, v1")
                a("v_add_u32 v45, 4096, v44")
            else:
                a(f"s_add_u32 s58, s58, {8*5120}")
            for m in range(4):
                a(f"buffer_store_dwordx4 v[{O+4*m}:{O+4*m+3}], v44, s[32:35], s58 offen offset:{1024*m}")
            a(f"buffer_store_dwordx4 v[{O+16}:{O+19}], v45, s[32:35], s58 offen")
            if rt == 0: a("s_nop 1")
    a("s_waitcnt lgkmcnt(0)")
    a("s_barrier")
    a("s_lshr_b32 s58, s48, 1")
    a("s_and_b32 s59, s48, 1")
    a("v_lshl_add_u32 v28, v3, 2, v26")
    a(f"v_mul_u32_u24 v29, {PHK_P}, v28")
    a("v_lshl_add_u32 v29, v27, 3, v29")
    a("s_mul_i32 s57, s58, 80")
    a("v_add_u32 v29, s57, v29")
    a(f"v_mul_u32_u24 v30, {VI_P}, v28")
    a("v_lshl_add_u32 v30, v27, 3, v30")
    a("s_mul_i32 s57, s58, 48")
    a("s_lshl_b32 s60, s59, 5")
    a("s_add_u32 s57, s57, s60")
    a(f"s_add_u32 s57, s57, {VI}")
    a("v_add_u32 v30, s57, v30")
    for kk in range(4):
        B = 128 + 16*kk
        for hf in range(2):
            a(f"ds_read_b64_tr_b16 v[{B+2*hf}:{B+2*hf+1}], v30 offset:{(32*kk+16*hf)*VI_P}")
        for ft in range(3):
            for hf in range(2):
                a(f"ds_read_b64_tr_b16 v[{B+4+4*ft+2*hf}:{B+4+4*ft+2*hf+1}], v29 offset:{(32*kk+16*hf)*PHK_P + 32*ft}")
    for kk in range(4):
        B = 128 + 16*kk
        a(f"s_waitcnt lgkmcnt({min(15, 8*(3-kk))})")
        for ft in range(3):
            D = 64 + 4*ft
            c = "0" if kk == 0 else f"v[{D}:{D+3}]"
            a(f"v_mfma_f32_16x16x32_bf16 v[{D}:{D+3}], v[{B+4+4*ft}:{B+4+4*ft+3}], v[{B}:{B+3}], {c}")
    a("s_lshl_b32 s57, s59, 4")
    a("v_add_u32 v28, s57, v2")
    a("s_mul_i32 s57, s58, 21")
    a("v_add_u32 v29, s57, v28")
    a("v_mul_u32_u24 v29, 160, v29")
    a("v_lshl_add_u32 v29, v3, 4, v29")
    a(f"v_add_u32 v29, {KVS}, v29")
    a("v_lshlrev_b32 v30, 4, v1")
    a(f"v_add_u32 v30, {KVDUMP}, v30")
    a("v_cmp_gt_u32 vcc, 21, v28")
    a("v_cndmask_b32 v29, v30, v29, vcc")
    a("v_cmp_gt_u32 vcc, 2, v3")
    a("v_cndmask_b32 v31, v30, v29, vcc")
    a("ds_write_b128 v29, v[64:67]")
    a("ds_write_b128 v29, v[68:71] offset:64")
    a("ds_write_b128 v31, v[72:75] offset:128")
    a("s_lshl_b32 s57, s52, 2")
    a("v_mov_b32 v24, s57")
    a("s_mov_b32 s60, 0")
    a.label(f"K1_POLL{role}")
    a("buffer_load_dword v25, v24, s[44:47], 0 offen sc0 sc1")
    a("s_waitcnt vmcnt(0)")
    a("v_readfirstlane_b32 s57, v25")
    a("s_add_u32 s60, s60, 1")
    a("s_cmp_ge_u32 s60, 100000")
    a(f"s_cbranch_scc1 K1_POLLDONE{role}")
    a("s_cmp_eq_u32 s57, 0")
    a(f"s_cbranch_scc1 K1_POLL{role}")
    a.label(f"K1_POLLDONE{role}")
    a("s_waitcnt lgkmcnt(0)")
    a("s_barrier")
    a("v_lshlrev_b32 v24, 2, v0")
    a(f"v_add_u32 v25, {KVS}, v24")
    for it in range(7):
        a(f"ds_read_b32 v{28+it}, v25 offset:{2048*it}")
    for it in range(7):
        a(f"s_waitcnt lgkmcnt({6-it})")
        if it < 2:
            a(f"buffer_atomic_add_f32 v{28+it}, v24, s[40:43], 0 offen offset:{2048*it}")
        else:
            a(f"s_mov_b32 s57, {2048*it}")
            a(f"buffer_atomic_add_f32 v{28+it}, v24, s[40:43], s57 offen")

def silu(a, v, t):
    a(f"v_mul_f32 v{t}, s57, v{v}")
    a(f"v_exp_f32 v{t}, -v{t}")
    a(f"v_add_f32 v{t}, 1.0, v{t}")
    a(f"v_rcp_f32 v{t}, v{t}")
    a(f"v_mul_f32 v{v}, v{v}, v{t}")

def k1_epi_h(a, role):
    ch = role & 1
    NP = 4 if ch == 0 else 3
    a(f"s_mov_b32 s57, {LOG2E}")
    a("s_lshl_b32 s60, s51, 3")
    a("s_lshl_b32 s61, s54, 1")
    a("s_add_u32 s60, s60, s61")
    a("s_mul_i32 s60, s60, 54")
    a("s_lshr_b32 s61, s58, 5")
    a("s_add_u32 s60, s60, s61")
    a(f"s_add_u32 s60, s60, {4*ch}")
    a("s_lshl_b32 s60, s60, 10")
    a(f"s_add_u32 s61, s60, {54*1024}")
    a("v_lshlrev_b32 v44, 4, v1")
    for pi in range(NP):
        if ch == 1 and pi == 2:
            a("s_cmp_ge_u32 s52, 6")
            a(f"s_cbranch_scc1 K1_HSKIP")
        for rt in range(2):
            regs = [64 + 8*(2*pi) + 4*rt + r for r in range(4)] + [64 + 8*(2*pi+1) + 4*rt + r for r in range(4)]
            T = 128 + 8*((2*pi+rt) & 1)
            for i, v in enumerate(regs): a(f"v_mul_f32 v{T+i}, s57, v{v}")
            for i, v in enumerate(regs): a(f"v_exp_f32 v{T+i}, -v{T+i}")
            for i, v in enumerate(regs): a(f"v_add_f32 v{T+i}, 1.0, v{T+i}")
            for i, v in enumerate(regs): a(f"v_rcp_f32 v{T+i}, v{T+i}")
            for i, v in enumerate(regs): a(f"v_mul_f32 v{v}, v{v}, v{T+i}")
            O = 160 + 4*(2*pi+rt)
            for i in range(4): a(f"v_cvt_pk_bf16_f32 v{O+i}, v{regs[2*i]}, v{regs[2*i+1]}")
            a(f"buffer_store_dwordx4 v[{O}:{O+3}], v44, s[32:35], s{60+rt} offen offset:{1024*pi}")
    if ch == 1: a.label("K1_HSKIP")
    a("s_lshl_b32 s60, s51, 3")
    a("s_add_u32 s60, s60, s52")
    a("v_lshrrev_b32 v26, 2, v1")
    a("v_and_b32 v26, 3, v26")
    a("v_and_b32 v27, 3, v1")
    a("v_lshl_add_u32 v28, v3, 3, v26")
    a("v_lshlrev_b32 v28, 8, v28")
    a("v_lshl_add_u32 v28, v27, 3, v28")
    a("s_lshl_b32 s61, s48, 5")
    a(f"s_add_u32 s61, s61, {AUX}")
    a("v_add_u32 v28, s61, v28")
    for n in range(3):
        a(f"ds_read_b64_tr_b16 v[{200+4*n}:{201+4*n}], v28 offset:{8192*n}")
        a(f"ds_read_b64_tr_b16 v[{202+4*n}:{203+4*n}], v28 offset:{8192*n+1024}")
    for n in range(3):
        a(f"s_add_u32 s61, s60, {128*n}")
        a("s_lshl_b32 s62, s61, 3")
        a("s_add_u32 s62, s62, s48")
        a("s_lshl_b32 s62, s62, 10")
        a(f"s_add_u32 s62, s62, {WF_OFF}")
        a("s_cmp_ge_u32 s61, 370")
        a(f"s_cselect_b32 s62, {OOB}, s62")
        a(f"s_waitcnt lgkmcnt({2*(2-n)})")
        a(f"buffer_store_dwordx4 v[{200+4*n}:{203+4*n}], v44, s[32:35], s62 offen")

K2_LDS = 120 * 1024
def gen_k2():
    a = Asm()
    a.raw(f".globl k2_kernel\n.p2align 8\n.type k2_kernel,@function\nk2_kernel:")
    a("s_cmp_ge_u32 s2, 256")
    a("s_cbranch_scc1 K2_END")
    a("s_load_dwordx2 s[4:5], s[0:1], 0")
    a("s_load_dwordx2 s[18:19], s[0:1], 56")
    a("s_load_dwordx2 s[22:23], s[0:1], 72")
    a("v_and_b32 v1, 63, v0")
    a("v_and_b32 v2, 15, v0")
    a("v_lshrrev_b32 v3, 4, v1")
    a("v_lshrrev_b32 v4, 6, v0")
    a("v_readfirstlane_b32 s48, v4")
    a("s_and_b32 s49, s2, 7")
    a("s_lshr_b32 s50, s2, 3")
    a("s_lshl_b32 s51, s49, 2")
    a("s_and_b32 s52, s50, 3")
    a("s_add_u32 s51, s51, s52")
    a("s_lshr_b32 s52, s50, 2")
    a("s_mul_i32 s53, s48, 14")
    a("s_cmp_eq_u32 s48, 3")
    a("s_cselect_b32 s54, 1, 0")
    a("s_sub_u32 s53, s53, s54")
    a("s_waitcnt lgkmcnt(0)")
    srd(a, 24, 4, 5, 2621440)
    srd(a, 28, 18, 19, 2621440)
    srd(a, 32, 22, 23, WS_USED)
    a("v_lshlrev_b32 v5, 4, v1")
    a(f"s_mul_i32 s55, s51, {4*54*1024}")
    for aa in range(4):
        a(f"s_add_u32 s56, s55, {aa*54*1024 + HF_OFF}")
        a(f"v_add_u32 v{6+aa}, s56, v5")
    a("s_mul_i32 s56, s52, 5120")
    a(f"s_add_u32 s56, s56, {WF_OFF}")
    a("v_add_u32 v10, s56, v5")
    a("v_add_u32 v11, 4096, v10")
    a(f"s_mul_i32 s55, s51, {4*8*5120}")
    a("v_lshlrev_b32 v16, 10, v3")
    a("v_lshl_add_u32 v16, v2, 4, v16")
    for aa in range(4):
        a(f"s_add_u32 s56, s55, {aa*8*5120 + PQ_OFF}")
        a(f"v_add_u32 v{12+aa}, s56, v16")
        a(f"v_add_u32 v{16+1+aa}, s56, v5")
    a("v_lshrrev_b32 v21, 2, v2")
    a("v_and_b32 v22, 3, v2")
    a("v_mul_u32_u24 v23, 5, v21")
    a("v_add_u32 v24, v23, v22")
    a("v_add_u32 v25, 4, v23")
    a("v_mov_b32 v26, 20")
    a("v_cmp_eq_u32 vcc, 0, v22")
    a("v_cndmask_b32 v25, v26, v25, vcc")
    a("v_mul_u32_u24 v24, 160, v24")
    a("v_mul_u32_u24 v25, 160, v25")
    a(f"v_mov_b32 v26, {OOB}")
    a("v_cmp_gt_u32 vcc, 2, v22")
    a("v_cndmask_b32 v25, v26, v25, vcc")
    a("v_lshlrev_b32 v27, 5, v3")
    a("v_add_u32 v21, v24, v27")
    a("v_add_u32 v22, v25, v27")
    for h4 in range(4):
        a(f"v_cmp_eq_u32 vcc, {h4}, v3")
        a("v_add_u32 v27, 128, v24")
        a(f"v_cndmask_b32 v{28+2*h4}, v26, v27, vcc")
        a("v_add_u32 v27, 128, v25")
        a(f"v_cndmask_b32 v{29+2*h4}, v26, v27, vcc")
    a("s_lshl_b32 s55, s51, 6")
    a("s_lshl_b32 s56, s48, 4")
    a("s_add_u32 s55, s55, s56")
    a("v_add_u32 v36, s55, v2")
    a("v_mul_u32_u24 v36, 1280, v36")
    a("v_lshl_add_u32 v36, v3, 3, v36")
    a("s_mul_i32 s56, s52, 160")
    a("v_add_u32 v36, s56, v36")

    ACF, ACS, OF, TMP, XP = 0, 80, 40, 216, 246
    FS = [("a", 160), ("a", 196), ("v", 120), ("v", 156), ("v", 40), ("v", 76)]
    KS = [120, 152, 184]
    BS = [112, 128, 144]
    WSL = [160, 180, 200, 220, 160]
    vm = []
    def ld(gid, text):
        a(text); vm.append(gid)
    def R(c, b, n=4): return f"{c}[{b}:{b+n-1}]"
    def issue(g):
        if g < 14:
            c, P = FS[g % 6]
            if g == 0:
                a("s_lshl_b32 s60, s53, 10")
                a("s_mul_i32 s61, s53, 40960")
            else:
                a("s_add_u32 s60, s60, 1024")
                a("s_add_u32 s61, s61, 40960")
            if g == 13:
                a("s_cmp_ge_u32 s48, 2")
                a(f"s_cselect_b32 s60, {OOB}, s60")
                a(f"s_cselect_b32 s61, {OOB}, s61")
            for t in range(4): ld(g, f"buffer_load_dwordx4 {R(c, P+16+4*t)}, v10, s[32:35], s61 offen offset:{1024*t}")
            ld(g, f"buffer_load_dwordx4 {R(c, P+32)}, v11, s[32:35], s61 offen")
            for aa in range(4): ld(g, f"buffer_load_dwordx4 {R(c, P+4*aa)}, v{6+aa}, s[32:35], s60 offen")
        elif g < 22:
            hd = g - 14; h4 = hd & 3; qq = hd >> 2
            P = KS[hd % 3]; B = BS[hd % 3]
            if hd == 0:
                a(f"s_mul_i32 s62, s48, {8*3360}")
                a(f"s_add_u32 s62, s62, {KV_OFF}")
                a("s_mul_i32 s63, s48, 10240")
            else:
                a("s_add_u32 s62, s62, 3360")
                if hd == 4: a("s_add_u32 s63, s63, 5120")
            for i, vo in enumerate((21, 22, 28+2*h4, 29+2*h4)):
                ld(g, f"buffer_load_dwordx4 v[{P+8*i}:{P+8*i+3}], v{vo}, s[32:35], s62 offen")
                ld(g, f"buffer_load_dwordx4 v[{P+8*i+4}:{P+8*i+7}], v{vo}, s[32:35], s62 offen offset:16")
            for aa in range(4):
                ld(g, f"buffer_load_dwordx4 a[{B+4*aa}:{B+4*aa+3}], v{12+aa}, s[32:35], s63 offen offset:{256*h4}")
            if h4 == 0:
                a("s_add_u32 s64, s63, 4096")
                for aa in range(4):
                    BX = ACS + 16*qq + 4*aa
                    ld(g, f"buffer_load_dwordx4 a[{BX}:{BX+3}], v{17+aa}, s[32:35], s64 offen")
        else:
            m = g - 22
            P = WSL[m]
            if m == 0:
                a("s_mul_i32 s65, s48, 5")
                a("s_add_u32 s65, s65, 54")
                a("s_mul_i32 s65, s65, 40960")
            else:
                a("s_add_u32 s65, s65, 40960")
            for t in range(4): ld(g, f"buffer_load_dwordx4 a[{P+4*t}:{P+4*t+3}], v10, s[32:35], s65 offen offset:{1024*t}")
            ld(g, f"buffer_load_dwordx4 a[{P+16}:{P+19}], v11, s[32:35], s65 offen")
            if m == 3:
                for t in range(5): ld(99, f"buffer_load_dwordx2 v[{XP+2*t}:{XP+1+2*t}], v36, s[24:27], 0 offen offset:{32*t}")
    def wait(g):
        last = max(i for i, x in enumerate(vm) if x == g)
        n = len(vm) - 1 - last
        a(f"s_waitcnt vmcnt({min(n, 63)})")
    def compute(g):
        wait(g)
        if g < 14:
            c, P = FS[g % 6]
            for t in range(5):
                for aa in range(4):
                    ac = ACF + 16*t + 4*aa
                    cc = "0" if g == 0 else f"a[{ac}:{ac+3}]"
                    a(f"v_mfma_f32_16x16x32_bf16 a[{ac}:{ac+3}], {R(c, P+16+4*t)}, {R(c, P+4*aa)}, {cc}")
        elif g < 22:
            hd = g - 14; qq = hd >> 2
            P = KS[hd % 3]; B = BS[hd % 3]
            for i in range(4):
                for d in range(4):
                    a(f"v_cvt_pk_bf16_f32 v{TMP+4*i+d}, v{P+8*i+2*d}, v{P+8*i+2*d+1}")
            for aa in range(4):
                B0 = B + 4*aa; BX = ACS + 16*qq + 4*aa
                for ot in range(2):
                    D = P + 8*aa + 4*ot
                    a(f"v_mfma_f32_16x16x32_bf16 v[{D}:{D+3}], v[{TMP+4*ot}:{TMP+4*ot+3}], a[{B0}:{B0+3}], 0")
                for ot in range(2):
                    D = P + 8*aa + 4*ot
                    a(f"v_mfma_f32_16x16x32_bf16 v[{D}:{D+3}], v[{TMP+8+4*ot}:{TMP+8+4*ot+3}], a[{BX}:{BX+3}], v[{D}:{D+3}]")
            for aa in range(4):
                D = P + 8*aa
                a(f"v_add_f32 v{D+5}, 0x358637bd, v{D+5}")
                a(f"v_rcp_f32 v{D+5}, v{D+5}")
            for aa in range(4):
                D = P + 8*aa
                for t in range(5): a(f"v_mul_f32 v{D+t}, v{D+5}, v{D+t}")
                O = OF + 20*aa
                if hd % 2 == 0:
                    j = 5*hd // 2
                    a(f"v_cvt_pk_bf16_f32 v{O+j}, v{D}, v{D+1}")
                    a(f"v_cvt_pk_bf16_f32 v{O+j+1}, v{D+2}, v{D+3}")
                    a(f"v_mov_b32 v{TMP+16+aa}, v{D+4}")
                else:
                    j = (5*hd - 1) // 2
                    a(f"v_cvt_pk_bf16_f32 v{O+j}, v{TMP+16+aa}, v{D}")
                    a(f"v_cvt_pk_bf16_f32 v{O+j+1}, v{D+1}, v{D+2}")
                    a(f"v_cvt_pk_bf16_f32 v{O+j+2}, v{D+3}, v{D+4}")
        else:
            m = g - 22
            P = WSL[m]
            for t in range(5):
                for aa in range(4):
                    ac = ACS + 16*t + 4*aa
                    c = "0" if m == 0 else f"a[{ac}:{ac+3}]"
                    a(f"v_mfma_f32_16x16x32_bf16 a[{ac}:{ac+3}], a[{P+4*t}:{P+4*t+3}], v[{OF+20*aa+4*m}:{OF+20*aa+4*m+3}], {c}")
    after = {s: [s + 6] for s in range(8)}
    after[8] = [14]; after[9] = [15, 16]; after[12] = [22]; after[13] = [23, 24, 25]
    for hd in range(5): after[14 + hd] = [14 + hd + 3]
    after[22] = [26]
    for g in range(6): issue(g)
    for g in range(27):
        compute(g)
        for g2 in after.get(g, []): issue(g2)
    FIN = 120
    for w in range(4):
        if w < 3:
            a(f"s_cmp_eq_u32 s48, {w}")
            a(f"s_cbranch_scc0 K2_W{w+1}")
        for aa in range(4):
            if aa == w: continue
            slot = w*3 + (aa if aa < w else aa - 1)
            a(f"v_add_u32 v4, {slot*10240}, v5")
            for t in range(5):
                a(f"ds_write_b128 v4, a[{ACF+16*t+4*aa}:{ACF+16*t+4*aa+3}] offset:{1024*t}")
                a(f"ds_write_b128 v4, a[{ACS+16*t+4*aa}:{ACS+16*t+4*aa+3}] offset:{5120+1024*t}")
        for t in range(5):
            for r in range(4):
                a(f"v_accvgpr_read_b32 v{FIN+4*t+r}, a{ACF+16*t+4*w+r}")
                a(f"v_accvgpr_read_b32 v{FIN+20+4*t+r}, a{ACS+16*t+4*w+r}")
        if w < 3:
            a("s_branch K2_RED")
            a.label(f"K2_W{w+1}")
    a.label("K2_RED")
    a("s_waitcnt lgkmcnt(0)")
    a("s_barrier")
    RB = [40, 80, 160]
    for k in range(3):
        a(f"s_cmp_gt_u32 s48, {k}")
        a(f"s_cselect_b32 s55, {k}, {k+1}")
        a("s_cselect_b32 s57, 1, 0")
        a("s_mul_i32 s56, s55, 3")
        a("s_add_u32 s56, s56, s48")
        a("s_sub_u32 s56, s56, s57")
        a("s_mul_i32 s56, s56, 10240")
        a("v_add_u32 v4, s56, v5")
        B = RB[k]
        for i in range(10):
            a(f"ds_read_b128 v[{B+4*i}:{B+4*i+3}], v4 offset:{1024*i}")
    for k in range(3):
        B = RB[k]
        a(f"s_waitcnt lgkmcnt({min(15, 10*(2-k))})")
        for i in range(40):
            a(f"v_add_f32 v{FIN+i}, v{FIN+i}, v{B+i}")
    a(f"s_mov_b32 s57, {LOG2E}")
    T = 40
    for i in range(20): a(f"v_mul_f32 v{T+i}, s57, v{FIN+i}")
    for i in range(20): a(f"v_exp_f32 v{T+i}, -v{T+i}")
    for i in range(20): a(f"v_add_f32 v{T+i}, 1.0, v{T+i}")
    for i in range(20): a(f"v_rcp_f32 v{T+i}, v{T+i}")
    for i in range(20): a(f"v_mul_f32 v{FIN+i}, v{FIN+i}, v{T+i}")
    a("s_waitcnt vmcnt(0)")
    for t in range(5):
        for d in range(2):
            xr = XP + 2*t + d
            a(f"v_lshlrev_b32 v{T+20}, 16, v{xr}")
            a(f"v_and_b32 v{T+21}, 0xffff0000, v{xr}")
            i = 4*t + 2*d
            a(f"v_fma_f32 v{T+20}, v{FIN+20+i}, v{FIN+i}, v{T+20}")
            a(f"v_fma_f32 v{T+21}, v{FIN+20+i+1}, v{FIN+i+1}, v{T+21}")
            a(f"v_cvt_pk_bf16_f32 v{T+22+2*t+d}, v{T+20}, v{T+21}")
        a(f"buffer_store_dwordx2 v[{T+22+2*t}:{T+23+2*t}], v36, s[28:31], 0 offen offset:{32*t}")
    a.label("K2_END")
    a("s_endpgm")
    return a

def desc(name, vgpr, sgpr=96):
    acc = (vgpr + 3) // 4 * 4
    acc = min(acc, 256)
    return f"""
.p2align 6
.amdhsa_kernel {name}
  .amdhsa_next_free_vgpr {vgpr}
  .amdhsa_next_free_sgpr {sgpr}
  .amdhsa_accum_offset {acc}
  .amdhsa_group_segment_fixed_size 0
  .amdhsa_kernarg_size 80
  .amdhsa_user_sgpr_count 2
  .amdhsa_user_sgpr_kernarg_segment_ptr 1
  .amdhsa_system_sgpr_workgroup_id_x 1
.end_amdhsa_kernel
"""

if __name__ == "__main__":
    k1 = gen_k1(); k2 = gen_k2()
    hdr = f"""; generated by dev/gen.py
; @launch kernel=k1_kernel grid=(256,1,1) block=(512,1,1) lds={K1_LDS}
; @launch kernel=k2_kernel grid=(256,1,1) block=(256,1,1) lds={K2_LDS}
.amdgcn_target "amdgcn-amd-amdhsa--gfx950"
.text
"""
    out = hdr + k1.text() + k2.text() + '.section .rodata,"a"\n' + desc("k1_kernel", 256) + desc("k2_kernel", 512)
    path = sys.argv[1] if len(sys.argv) > 1 else f"cdna_kernels/{NAME}.s"
    open(path, "w").write(out)
    print("written", path, len(out), "nops", k1.nops, k2.nops)
```

```python
import sys
from asmlib import Asm

NAME = "recurrent_scan__linear_kernel_hedgehog__dense_activation_silu__prompt"
HF_OFF = 0
PQ_OFF = 128 * 54 * 1024
WF_OFF = PQ_OFF + 128 * 8 * 5 * 1024
KV_OFF = WF_OFF + 74 * 40 * 1024
WS_USED = KV_OFF + 32 * 5120
OOB = 0x40000000
LOG2E = 0x3fb8aa3b
XF = [x[2:] for x in sys.argv if x.startswith("--")]
DIAG = "diag" in XF
DIAG_OFF = 16 << 20
def opt(name, dflt):
    v = [x[len(name):] for x in XF if x.startswith(name) and x[len(name):].isdigit()]
    return int(v[0]) if v else dflt

NS = 3
AOFF = 34816
STAGE = 51200
MISC = NS * STAGE
STAT = MISC
CSUM = MISC + 1024
SDUMP = MISC + 2048
K1_LDS = 163840
PHK = 0; PHK_P = 352
VI = 128 * PHK_P; VI_P = 224
WPHI = VI + 128 * VI_P
KVS = WPHI + 4096
KVDUMP = KVS + 20480
W2S = 0

def stamp(a, i):
    if not DIAG: return
    a(f"s_memtime s[{80+2*i}:{81+2*i}]")
    a("s_waitcnt lgkmcnt(0)")
def dump_stamps(a, n, kidx, ws_lo, ws_hi):
    if not DIAG: return
    a("s_memrealtime s[96:97]")
    a("s_waitcnt lgkmcnt(0)")
    a(f"s_mov_b32 s76, s{ws_lo}")
    a(f"s_mov_b32 s77, s{ws_hi}")
    a(f"s_mov_b32 s78, {DIAG_OFF + (1 << 20)}")
    a("s_mov_b32 s79, 0x00020000")
    a("s_lshl_b32 s57, s2, 3")
    a("s_add_u32 s57, s57, s48")
    a("s_lshl_b32 s57, s57, 6")
    a(f"s_add_u32 s57, s57, {DIAG_OFF + kidx * 0x40000}")
    a("v_mov_b32 v250, s57")
    for i in range(n):
        a(f"v_mov_b32 v251, s{80+2*i}")
        a(f"buffer_store_dword v251, v250, s[76:79], 0 offen offset:{4*i}")
    a("v_mov_b32 v251, s96")
    a(f"buffer_store_dword v251, v250, s[76:79], 0 offen offset:60")

def srd(a, d, lo, hi, size):
    a(f"s_mov_b32 s{d}, s{lo}")
    a(f"s_mov_b32 s{d+1}, s{hi}")
    a(f"s_mov_b32 s{d+2}, {size}")
    a(f"s_mov_b32 s{d+3}, 0x00020000")
def bf16_round(a, v):
    a(f"v_cvt_pk_bf16_f32 v{v}, v{v}, v{v}")
    a(f"v_lshlrev_b32 v{v}, 16, v{v}")
def emit(a, x):
    if x.startswith("LABEL "): a.label(x[6:])
    else: a(x)

ACC = 64
XA, XB, YA, YB = 128, 136, 168, 176
DC = 208; DS = 216; ONES = 224
ASET = [(228, 229, 230, 231), (232, 233, 234, 235), (236, 237, 238, 239)]
VB = 4
ROLES = {
    0: ([160 + 8*j for j in range(5)] + [320 + 8*j for j in range(3)], 480, 30, 4),
    1: ([8*j for j in range(5)] + [320 + 8*j for j in (3, 4)], 480, 30, 4),
    2: ([32*t for t in range(8)], 544, 34, 5),
    3: ([32*t for t in range(6)], 416, 26, 4),
}
TD = opt("td", 5)

def gen_k1():
    a = Asm()
    a.raw(f".globl k1_kernel\n.p2align 8\n.type k1_kernel,@function\nk1_kernel:")
    a("s_cmp_ge_u32 s2, 256")
    a("s_cbranch_scc1 K1_END")
    stamp(a, 0)
    a("s_load_dwordx16 s[4:19], s[0:1], 0")
    a("s_load_dwordx4 s[20:23], s[0:1], 64")
    a("v_and_b32 v1, 63, v0")
    a("v_and_b32 v2, 15, v0")
    a("v_lshrrev_b32 v3, 4, v1")
    a("v_lshrrev_b32 v24, 6, v0")
    a("v_readfirstlane_b32 s48, v24")
    a("s_and_b32 s49, s2, 7")
    a("s_lshr_b32 s50, s2, 3")
    a("s_and_b32 s51, s49, 1")
    a("s_lshl_b32 s51, s51, 3")
    a("s_and_b32 s66, s50, 7")
    a("s_add_u32 s51, s51, s66")
    a("s_lshr_b32 s52, s49, 1")
    a("s_lshr_b32 s67, s50, 3")
    a("s_lshl_b32 s52, s52, 1")
    a("s_and_b32 s54, s67, 1")
    a("s_add_u32 s52, s52, s54")
    a("s_lshr_b32 s53, s67, 1")
    a("s_and_b32 s54, s48, 3")
    a("s_lshr_b32 s55, s48, 2")
    a("s_mul_i32 s58, s52, 3")
    a("s_add_u32 s58, s58, 3")
    a("s_lshl_b32 s57, s52, 2")
    a("s_cmp_lt_u32 s52, 3")
    a("s_cselect_b32 s58, s57, s58")
    a("s_cselect_b32 s68, 2, 3")
    a("s_cmp_eq_u32 s53, 0")
    a("s_cselect_b32 s68, s55, s68")
    a("s_mov_b32 s59, 30\ns_mov_b32 s64, 30\ns_movk_i32 s65, 480\ns_movk_i32 s69, 2185\ns_mov_b32 s70, 4")
    a("s_cmp_eq_u32 s68, 2")
    a("s_cselect_b32 s59, 32, s59\ns_cselect_b32 s64, 34, s64\ns_cselect_b32 s65, 544, s65\ns_cselect_b32 s69, 1928, s69\ns_cselect_b32 s70, 5, s70")
    a("s_cmp_eq_u32 s68, 3")
    a("s_cselect_b32 s59, 24, s59\ns_cselect_b32 s64, 26, s64\ns_cselect_b32 s65, 416, s65\ns_cselect_b32 s69, 2521, s69")
    a("s_mul_i32 s62, s52, 160")
    a("s_lshl_b32 s57, s58, 7")
    a("s_movk_i32 s63, 3840")
    a("s_cmp_eq_u32 s53, 0")
    a("s_cselect_b32 s62, s62, s57")
    a("s_cselect_b32 s63, s63, 3456")
    a(f"v_mov_b32 v13, {OOB}")
    a("s_mul_i32 s72, s48, s70")
    for jj in range(5):
        a(f"s_add_u32 s57, s72, {jj}")
        a("s_lshl_b32 s57, s57, 6")
        a("v_add_u32 v24, s57, v1")
        a("v_mul_u32_u24 v25, s69, v24")
        a("v_lshrrev_b32 v25, 16, v25")
        a("v_mul_u32_u24 v26, s64, v25")
        a("v_sub_u32 v26, v24, v26")
        a("v_lshrrev_b32 v27, 1, v25")
        a("v_and_b32 v27, 4, v27")
        a("v_xor_b32 v25, v25, v27")
        a("v_mul_u32_u24 v25, s63, v25")
        a("v_lshl_add_u32 v25, v26, 4, v25")
        a("v_add_u32 v25, s62, v25")
        a("v_mul_u32_u24 v27, 26, v26")
        a("v_lshrrev_b32 v27, 8, v27")
        a("v_mul_u32_u24 v27, 1120, v27")
        a("s_cmp_eq_u32 s53, 0")
        a("s_cselect_b64 vcc, -1, 0")
        a("v_cndmask_b32 v27, 0, v27, vcc")
        a("v_add_u32 v25, v25, v27")
        a("v_cmp_gt_u32 vcc, s59, v26")
        a(f"v_cndmask_b32 v{VB+jj}, v13, v25, vcc")
    a("v_lshrrev_b32 v24, 3, v1")
    a("v_xor_b32 v25, v24, v1")
    a("v_and_b32 v25, 7, v25")
    a("v_mul_u32_u24 v24, 1280, v24")
    a("v_lshl_add_u32 v24, v25, 4, v24")
    a("s_lshl_b32 s57, s51, 3")
    a("s_add_u32 s57, s57, s48")
    a("s_mul_i32 s57, s57, 20480")
    a("v_add_u32 v9, s57, v24")
    a("v_add_u32 v10, 10240, v9")
    a("v_and_b32 v24, 1, v1")
    a("v_mul_u32_u24 v24, 156, v24")
    a("v_lshrrev_b32 v25, 1, v1")
    a("v_mul_u32_u24 v25, 1280, v25")
    a("v_add_u32 v24, v24, v25")
    a("v_lshlrev_b32 v25, 7, v1")
    a("s_cmp_eq_u32 s53, 0")
    a("s_cselect_b64 vcc, -1, 0")
    a("v_cndmask_b32 v24, v25, v24, vcc")
    a("s_lshl_b32 s57, s66, 3")
    a("s_add_u32 s57, s57, s48")
    a("s_mul_i32 s57, s57, s63")
    a("s_add_u32 s57, s57, s62")
    a("v_add_u32 v11, s57, v24")
    a("s_lshl_b32 s57, s67, 3")
    a("s_add_u32 s57, s57, s48")
    a("s_lshl_b32 s57, s57, 2")
    a("s_lshl_b32 s61, s51, 7")
    a("s_add_u32 s57, s57, s61")
    a("v_add_u32 v24, s57, v1")
    a("v_mul_u32_u24 v12, 1280, v24")
    A0, A1, B0, B1 = ASET[0]
    a("s_lshl_b32 s57, s54, 12")
    a(f"s_add_u32 s57, s57, {AOFF}")
    a("v_xor_b32 v24, v3, v2")
    a("v_and_b32 v24, 7, v24")
    a("v_lshl_add_u32 v24, v2, 3, v24")
    a("v_lshlrev_b32 v24, 4, v24")
    a(f"v_add_u32 v{A0}, s57, v24")
    a(f"v_xor_b32 v{A1}, 64, v{A0}")
    a("v_and_b32 v26, 3, v1")
    a("v_mul_u32_u24 v27, 40, v26")
    a("v_lshlrev_b32 v26, 3, v26")
    a("s_lshl_b32 s57, s59, 3")
    a("s_mul_i32 s57, s57, s55")
    a("v_add_u32 v26, s57, v26")
    a("s_cmp_eq_u32 s53, 0")
    a("s_cselect_b64 vcc, -1, 0")
    a("v_cndmask_b32 v26, v26, v27, vcc")
    a("v_lshrrev_b32 v24, 2, v1")
    a("v_and_b32 v24, 3, v24")
    a("v_lshl_add_u32 v24, v3, 3, v24")
    a("v_and_b32 v25, 1, v3")
    a("v_lshlrev_b32 v25, 2, v25")
    a("v_add_u32 v27, v24, v25")
    a("v_xor_b32 v25, 4, v25")
    a("v_add_u32 v28, v24, v25")
    a("v_mul_u32_u24 v27, s65, v27")
    a("v_mul_u32_u24 v28, s65, v28")
    a(f"v_add_u32 v{B0}, v27, v26")
    a(f"v_add_u32 v{B1}, v28, v26")
    for st in (1, 2):
        for k in range(4): a(f"v_add_u32 v{ASET[st][k]}, {st*STAGE}, v{ASET[0][k]}")
    for k in range(4): a(f"v_mov_b32 v{ONES+k}, 0x3f803f80")
    a("v_lshlrev_b32 v24, 4, v0")
    a("s_mul_i32 s57, s52, 3200")
    a("v_add_u32 v25, s57, v24")
    a("v_cmp_gt_u32 vcc, 3200, v24")
    a("v_cndmask_b32 v16, v13, v25, vcc")
    a("s_mov_b32 s61, 0")
    a("s_mov_b32 s60, 0")
    a("s_lshl_b32 s56, s63, 6")
    a("s_lshl_b32 s73, s72, 10")
    a("s_lshl_b32 s74, s48, 11")
    a(f"s_add_u32 s74, s74, {AOFF}")
    a("s_sub_u32 s75, s64, s72")
    a("s_waitcnt lgkmcnt(0)")
    stamp(a, 1)
    srd(a, 24, 4, 5, 2621440)
    a("s_cmp_eq_u32 s53, 0")
    a("s_cselect_b32 s28, s6, s14")
    a("s_cselect_b32 s29, s7, s15")
    a(f"s_mov_b32 s30, {640*1728*2}")
    a(f"s_cselect_b32 s30, {640*1920*2}, s30")
    a("s_mov_b32 s31, 0x00020000")
    a(f"s_mul_i32 s57, s52, 20480")
    a(f"s_add_u32 s57, s57, {KV_OFF}")
    a("s_add_u32 s40, s22, s57")
    a("s_addc_u32 s41, s23, 0")
    a("s_mov_b32 s42, 20480")
    a("s_mov_b32 s43, 0x00020000")
    srd(a, 32, 22, 23, WS_USED)
    srd(a, 44, 20, 21, 256)
    srd(a, 36, 8, 9, 25600)
    a("s_or_b32 s57, s51, s53")
    a("s_cmp_eq_u32 s57, 0")
    a("s_cbranch_scc0 K1_NOZERO")
    a("v_lshlrev_b32 v24, 4, v0")
    a("v_mov_b32 v28, 0\nv_mov_b32 v29, 0\nv_mov_b32 v30, 0\nv_mov_b32 v31, 0")
    for z in range(3):
        a(f"s_mov_b32 s57, {8192*z}")
        a("buffer_store_dwordx4 v[28:31], v24, s[40:43], s57 offen sc0 sc1")
    a.label("K1_NOZERO")
    a("s_cmp_eq_u32 s68, 1")
    a("s_cbranch_scc1 K1_T1")
    a("s_cmp_eq_u32 s68, 2")
    a("s_cbranch_scc1 K1_T2")
    a("s_cmp_eq_u32 s68, 3")
    a("s_cbranch_scc1 K1_T3")
    for ro in range(4):
        a.label(f"K1_T{ro}")
        k1_body(a, ro)
        a("s_branch K1_END")
    a.label("K1_END")
    a("s_endpgm")
    return a

def dma_stage(ro, st):
    imms, pitch, U, nsl = ROLES[ro]
    G = []
    for jj in range(nsl):
        g = []
        maybe = jj >= U - 7*nsl
        if maybe:
            g += [f"s_cmp_gt_i32 s75, {jj}", "s_cselect_b64 exec, -1, 1", f"s_cselect_b32 s57, s73, {SDUMP - st*STAGE - 1024*jj}", f"s_add_u32 m0, s57, {st*STAGE + 1024*jj}"]
        else:
            g += [f"s_add_u32 m0, s73, {st*STAGE + 1024*jj}"]
        g.append(f"buffer_load_dwordx4 v{VB+jj}, s[28:31], s61 offen lds")
        if maybe: g.append("s_mov_b64 exec, -1")
        G.append(g)
    G[-1].append("s_add_u32 s61, s61, s56")
    for jj in range(2):
        G.append([f"s_add_u32 m0, s74, {st*STAGE + 1024*jj}", f"buffer_load_dwordx4 v{9+jj}, s[24:27], s60 offen lds"])
    G[-1].append("s_add_u32 s60, s60, 128")
    return G

def touch(ro, s):
    P = {0: 6, 1: 6, 2: 4, 3: 3}[ro]
    return [f"s_mov_b64 exec, {(1 << P) - 1}", f"s_mul_i32 s57, s56, {s}", "T:buffer_load_dword v62, v11, s[28:31], s57 offen",
            "s_mov_b64 exec, 15", f"T:buffer_load_dword v63, v12, s[24:27], 0 offen offset:{128*s}", "s_mov_b64 exec, -1"]

def frag_reads(ro, A, B, st, ks2):
    imms, pitch, U, nsl = ROLES[ro]
    A0, A1, B0, B1 = ASET[st]
    va = A1 if ks2 else A0
    off = 32 * pitch * ks2
    L = [f"ds_read_b128 v[{A}:{A+3}], v{va}", f"ds_read_b128 v[{A+4}:{A+7}], v{va} offset:2048"]
    for t, im in enumerate(imms):
        L.append(f"ds_read_b64_tr_b16 v[{B+4*t}:{B+4*t+1}], v{B0} offset:{off+im}")
        L.append(f"ds_read_b64_tr_b16 v[{B+4*t+2}:{B+4*t+3}], v{B1} offset:{off+im}")
    return L

def k1_body(a, ro):
    imms, pitch, U, nsl = ROLES[ro]
    NT = len(imms)
    vm = []
    def em(x, tag):
        if x.startswith("T:"):
            a(x[2:]); vm.append("t")
        elif x.startswith("buffer_load"):
            a(x); vm.append(tag)
        else: emit(a, x)
    def waitv(tag, lg=False):
        last = max(i for i, x in enumerate(vm) if x == tag)
        n = min(63, len(vm) - 1 - last)
        a(f"s_waitcnt vmcnt({n})" + (" lgkmcnt(0)" if lg else ""))
    for st in range(NS):
        for g in dma_stage(ro, st):
            for x in g: em(x, st)
    if ro < 2:
        em("buffer_load_dwordx4 v[252:255], v16, s[36:39], 0 offen", "aux")
    for sl in range(NS, min(10, TD)):
        for x in touch(ro, sl): em(x, "t")
    stamp(a, 2)
    waitv(0)
    a("s_barrier")
    stamp(a, 3)
    if ro == 0:
        a("s_or_b32 s57, s51, s48")
        a("s_cmp_eq_u32 s57, 0")
        a("s_cbranch_scc0 K1_NOFLAG")
        a("s_lshl_b32 s57, s52, 2")
        a("v_mov_b32 v24, s57")
        a("v_mov_b32 v25, 1")
        a("s_mov_b64 exec, 1")
        a("buffer_atomic_add v25, v24, s[44:47], 0 offen")
        a("s_mov_b64 exec, -1")
        a.label("K1_NOFLAG")
    for s in frag_reads(ro, XA, XB, 0, 0): a(s)
    for s in range(20):
        i = s >> 1; odd = s & 1
        CA, CB, NA, NB = (XA, XB, YA, YB) if not odd else (YA, YB, XA, XB)
        dma = []
        if not odd:
            a("s_waitcnt lgkmcnt(0)")
            rd = frag_reads(ro, NA, NB, i % NS, 1)
            if TD and NS <= i + TD < 10: dma = [touch(ro, i + TD)]
            tag = "t"
        else:
            if i < 9:
                waitv(i + 1, True)
                a("s_barrier")
                rd = frag_reads(ro, NA, NB, (i + 1) % NS, 0)
            else:
                a("s_waitcnt lgkmcnt(0)")
                a("s_barrier")
                rd = []
            if i + NS < 10: dma = dma_stage(ro, i % NS)
            tag = i + NS
        rd = [[x] for x in rd]
        side = []
        k = 0
        step = max(1, len(rd) // (len(dma) + 1)) if dma else len(rd)
        for d in dma:
            side += rd[k:k+step]; k += step; side.append(d)
        side += rd[k:]
        mf = []
        for t in range(NT):
            for rt in range(2):
                ac = ACC + 8*t + 4*rt
                c = "0" if s == 0 else f"v[{ac}:{ac+3}]"
                mf.append(f"v_mfma_f32_16x16x32_bf16 v[{ac}:{ac+3}], v[{CB+4*t}:{CB+4*t+3}], v[{CA+4*rt}:{CA+4*rt+3}], {c}")
        st_blk = []
        def stat_m(kind):
            L = []
            for rt in range(2):
                ac = DS + 4*rt
                c = "0" if s == 0 else f"v[{ac}:{ac+3}]"
                A_ = ONES if kind == 0 else CA + 4*rt
                L.append(f"v_mfma_f32_16x16x32_bf16 v[{ac}:{ac+3}], v[{A_}:{A_+3}], v[{CA+4*rt}:{CA+4*rt+3}], {c}")
            return L
        if ro < 2:
            mf += stat_m(ro)
        else:
            st_blk = ["s_cmp_eq_u32 s55, 0", f"s_cbranch_scc0 K1_SG{ro}_{s}"] + stat_m(0) + [f"s_branch K1_SE{ro}_{s}", f"LABEL K1_SG{ro}_{s}"] + stat_m(1) + [f"LABEL K1_SE{ro}_{s}"]
        cs = []
        for q in range(4):
            tl = [t for t in range(NT) if t % 4 == q]
            if q < 3: cs += [f"s_cmp_eq_u32 s54, {q}", f"s_cbranch_scc0 K1_CS{ro}_{s}_{q+1}"]
            for k2, t in enumerate(tl):
                ac = DC + 4*k2
                c = "0" if s == 0 else f"v[{ac}:{ac+3}]"
                cs.append(f"v_mfma_f32_16x16x32_bf16 v[{ac}:{ac+3}], v[{CB+4*t}:{CB+4*t+3}], v[{ONES}:{ONES+3}], {c}")
            if q < 3: cs += [f"s_branch K1_CSE{ro}_{s}", f"LABEL K1_CS{ro}_{s}_{q+1}"]
        cs.append(f"LABEL K1_CSE{ro}_{s}")
        nfirst = len(mf) - 3
        per = max(1, -(-len(side) // max(1, nfirst - 1)))
        si = 0
        for k, m in enumerate(mf):
            a(m)
            if k < nfirst:
                for _ in range(per):
                    if si < len(side):
                        for x in side[si]: em(x, tag)
                        si += 1
            if k == nfirst - 1:
                while si < len(side):
                    for x in side[si]: em(x, tag)
                    si += 1
                for x in cs + st_blk: emit(a, x)
    stamp(a, 4)
    if ro >= 2: w2f_issue(a)
    else:
        a("s_lshl_b32 s57, s52, 2")
        a("v_mov_b32 v60, s57")
        a("buffer_load_dword v61, v60, s[44:47], 0 offen sc0 sc1")
    a("s_lshl_b32 s57, s54, 7")
    a("s_lshl_b32 s58, s55, 9" if ro >= 2 else f"s_mov_b32 s60, {512*ro}")
    if ro >= 2:
        a("s_lshl_b32 s60, s55, 9")
    a("s_add_u32 s57, s57, s60")
    a(f"s_add_u32 s57, s57, {STAT}")
    a("v_lshlrev_b32 v24, 2, v2")
    a("v_add_u32 v25, s57, v24")
    a(f"v_mov_b32 v27, {SDUMP}")
    a("v_and_b32 v28, 3, v2")
    for rt in range(2):
        a(f"v_mov_b32 v{30+rt}, v{DS+4*rt}")
        for r in range(1, 4):
            a(f"v_cmp_eq_u32 vcc, {r}, v28")
            a(f"v_cndmask_b32 v{30+rt}, v{30+rt}, v{DS+4*rt+r}, vcc")
    a("v_lshrrev_b32 v28, 2, v2")
    a("v_cmp_eq_u32 vcc, v28, v3")
    a("v_cndmask_b32 v26, v27, v25, vcc")
    a("ds_write_b32 v26, v30")
    a("ds_write_b32 v26, v31 offset:64")
    a("s_lshl_b32 s57, s54, 6")
    a("s_add_u32 s57, s57, s60")
    a(f"s_add_u32 s57, s57, {CSUM}")
    a("v_lshlrev_b32 v26, 4, v3")
    a("v_add_u32 v28, s57, v26")
    a("v_cmp_eq_u32 vcc, 0, v2")
    a("v_cndmask_b32 v28, v27, v28, vcc")
    a(f"ds_write_b128 v28, v[{DC}:{DC+3}]")
    a(f"ds_write_b128 v28, v[{DC+4}:{DC+7}] offset:256")
    if ro < 2:
        a("v_lshlrev_b32 v29, 4, v0")
        a(f"v_add_u32 v29, {WPHI}, v29")
        a("s_cmp_lt_u32 s48, 4")
        a(f"s_cbranch_scc0 K1_NWP{ro}")
        a("ds_write_b128 v29, v[252:255]")
        a.label(f"K1_NWP{ro}")
    a("s_waitcnt lgkmcnt(0)")
    a("s_barrier")
    a("s_lshl_b32 s57, s54, 7")
    a(f"s_add_u32 s57, s57, {STAT}")
    a("v_add_u32 v25, s57, v24")
    a("ds_read_b32 v28, v25")
    a("ds_read_b32 v30, v25 offset:64")
    a("ds_read_b32 v32, v25 offset:512")
    a("ds_read_b32 v34, v25 offset:576")
    a(f"s_add_u32 s57, s60, {CSUM}")
    a("v_add_u32 v26, s57, v26")
    CR = 128
    for t in range(NT):
        a(f"ds_read_b128 v[{CR+4*t}:{CR+4*t+3}], v26 offset:{64*t}")
    a(f"s_waitcnt lgkmcnt({NT})")
    inv640 = 0x3acccccd
    for rt in range(2):
        s_, q = 28 + 2*rt, 32 + 2*rt
        a(f"v_mul_f32 v{s_}, {inv640}, v{s_}")
        a(f"v_mul_f32 v{q}, {inv640}, v{q}")
        a(f"v_fma_f32 v{q}, -v{s_}, v{s_}, v{q}")
        a(f"v_max_f32 v{q}, 0, v{q}")
        bf16_round(a, s_)
        bf16_round(a, q)
        a(f"v_add_f32 v{q}, 0x3727c5ac, v{q}")
        bf16_round(a, q)
        a(f"v_sqrt_f32 v{q}, v{q}")
        bf16_round(a, q)
        a(f"v_rcp_f32 v{q}, v{q}")
    a("s_waitcnt lgkmcnt(0)")
    for t in range(NT):
        for rt in range(2):
            for h in range(2):
                ac = ACC + 8*t + 4*rt + 2*h
                a(f"v_pk_fma_f32 v[{ac}:{ac+1}], v[{CR+4*t+2*h}:{CR+4*t+2*h+1}], v[{28+2*rt}:{29+2*rt}], v[{ac}:{ac+1}] op_sel_hi:[1,0,1] neg_lo:[0,1,0] neg_hi:[0,1,0]")
    for t in range(NT):
        for rt in range(2):
            for h in range(2):
                ac = ACC + 8*t + 4*rt + 2*h
                a(f"v_pk_mul_f32 v[{ac}:{ac+1}], v[{ac}:{ac+1}], v[{32+2*rt}:{33+2*rt}] op_sel_hi:[1,0]")
    stamp(a, 5)
    if ro < 2: k1_epi_qkv(a, ro)
    else: k1_epi_h(a, ro)
    stamp(a, 6)
    if DIAG: a("s_waitcnt vmcnt(0)")
    stamp(a, 7)
    dump_stamps(a, 8, 0, 22, 23)

def softmax(a, P, E, O):
    a(f"v_max3_f32 v40, v{P}, v{P+1}, v{P+2}")
    a(f"v_min3_f32 v42, v{P}, v{P+1}, v{P+2}")
    for i in range(3, 19, 2):
        a(f"v_max3_f32 v40, v40, v{P+i}, v{P+i+1}")
        a(f"v_min3_f32 v42, v42, v{P+i}, v{P+i+1}")
    a(f"v_max_f32 v40, v40, v{P+19}")
    a(f"v_min_f32 v42, v42, v{P+19}")
    a("v_mul_f32 v40, s56, v40")
    a("v_mul_f32 v42, s56, v42")
    for i in range(0, 20, 2):
        a(f"v_pk_fma_f32 v[{E+i}:{E+i+1}], v[{P+i}:{P+i+1}], s[56:57], v[40:41] op_sel_hi:[1,0,0] neg_lo:[0,0,1] neg_hi:[0,0,1]")
        a(f"v_pk_fma_f32 v[{P+i}:{P+i+1}], v[{P+i}:{P+i+1}], s[56:57], v[42:43] op_sel_hi:[1,0,0] neg_lo:[1,0,0] neg_hi:[1,0,0]")
    for i in range(20):
        a(f"v_exp_f32 v{E+i}, v{E+i}")
        a(f"v_exp_f32 v{P+i}, v{P+i}")
    a(f"v_pk_add_f32 v[44:45], v[{E}:{E+1}], v[{E+2}:{E+3}]")
    a(f"v_pk_add_f32 v[46:47], v[{P}:{P+1}], v[{P+2}:{P+3}]")
    for i in range(4, 20, 2):
        a(f"v_pk_add_f32 v[44:45], v[44:45], v[{E+i}:{E+i+1}]")
        a(f"v_pk_add_f32 v[46:47], v[46:47], v[{P+i}:{P+i+1}]")
    a("v_add_f32 v44, v44, v45")
    a("v_add_f32 v46, v46, v47")
    a("v_rcp_f32 v44, v44")
    a("v_rcp_f32 v46, v46")
    for i in range(0, 20, 2):
        a(f"v_pk_mul_f32 v[{E+i}:{E+i+1}], v[{E+i}:{E+i+1}], v[44:45] op_sel_hi:[1,0]")
        a(f"v_pk_mul_f32 v[{P+i}:{P+i+1}], v[{P+i}:{P+i+1}], v[46:47] op_sel_hi:[1,0]")
    for i in range(10):
        a(f"v_cvt_pk_bf16_f32 v{O+i}, v{E+2*i}, v{E+2*i+1}")
        a(f"v_cvt_pk_bf16_f32 v{O+10+i}, v{P+2*i}, v{P+2*i+1}")

def k1_epi_qkv(a, ch):
    NV = 3 if ch == 0 else 2
    v0j = 0 if ch == 0 else 3
    F0 = 160; VP = 184; WB = 196
    for rt in range(2):
        for t in range(5):
            ac = ACC + 8*t + 4*rt
            a(f"v_cvt_pk_bf16_f32 v{F0+12*rt+2*t}, v{ac}, v{ac+1}")
            a(f"v_cvt_pk_bf16_f32 v{F0+12*rt+2*t+1}, v{ac+2}, v{ac+3}")
        for t in range(NV):
            ac = ACC + 8*(5+t) + 4*rt
            a(f"v_cvt_pk_bf16_f32 v{VP+6*rt+2*t}, v{ac}, v{ac+1}")
            a(f"v_cvt_pk_bf16_f32 v{VP+6*rt+2*t+1}, v{ac+2}, v{ac+3}")
    a("s_lshl_b32 s57, s54, 5")
    a("v_add_u32 v24, s57, v2")
    a(f"v_mul_u32_u24 v25, {VI_P}, v24")
    a("v_mul_u32_u24 v26, 48, v3")
    a("v_add_u32 v25, v25, v26")
    a(f"v_add_u32 v25, {VI}, v25")
    for rt in range(2):
        for t in range(NV):
            a(f"ds_write_b64 v25, v[{VP+6*rt+2*t}:{VP+6*rt+2*t+1}] offset:{rt*16*VI_P + 8*(v0j+t)}")
    if ch == 1:
        a("v_mov_b32 v32, 0x00003f80")
        a("v_mov_b32 v33, 0")
        for rt in range(2):
            a(f"ds_write_b64 v25, v[32:33] offset:{rt*16*VI_P + 40}")
    a("v_lshrrev_b32 v26, 2, v1")
    a("v_and_b32 v26, 3, v26")
    a("v_and_b32 v27, 3, v1")
    a("v_mul_u32_u24 v28, 800, v3")
    a("v_mul_u32_u24 v29, 40, v26")
    a("v_add_u32 v28, v28, v29")
    a(f"v_add_u32 v28, {WPHI}, v28")
    a(f"v_mov_b32 v29, {WPHI+3200}")
    a("v_cmp_eq_u32 vcc, v27, v3")
    for i in range(5):
        a(f"v_add_u32 v30, {160*i}, v28")
        a(f"v_cndmask_b32 v{34+i}, v29, v30, vcc")
    def wread(j, base):
        for i in range(5):
            a(f"ds_read_b64_tr_b16 v[{base+2*i}:{base+2*i+1}], v{34+i} offset:{8*j}")
    for z in (F0+10, F0+11, F0+22, F0+23, WB+10, WB+11, WB+22, WB+23): a(f"v_mov_b32 v{z}, 0")
    wread(0, WB)
    for j in range(5):
        base = WB + 12*(j & 1)
        if j < 4: wread(j+1, WB + 12*((j+1) & 1))
        a(f"s_waitcnt lgkmcnt({5 if j < 4 else 0})")
        for rt in range(2):
            D = 64 + 20*rt + 4*j
            F = F0 + 12*rt
            a(f"v_mfma_f32_16x16x32_bf16 v[{D}:{D+3}], v[{base}:{base+3}], v[{F}:{F+3}], 0")
            a(f"v_mfma_f32_16x16x32_bf16 v[{D}:{D+3}], v[{base+4}:{base+7}], v[{F+4}:{F+7}], v[{D}:{D+3}]")
            a(f"v_mfma_f32_16x16x32_bf16 v[{D}:{D+3}], v[{base+8}:{base+11}], v[{F+8}:{F+11}], v[{D}:{D+3}]")
    a(f"s_mov_b32 s56, {LOG2E}")
    a(f"s_mov_b32 s57, {LOG2E}")
    for rt in range(2):
        O = 128 + 20*rt
        softmax(a, 64 + 20*rt, 104, O)
        if ch == 0:
            if rt == 0:
                a(f"v_mul_u32_u24 v48, {PHK_P}, v24")
                a("v_mul_u32_u24 v49, 80, v3")
                a("v_add_u32 v48, v48, v49")
            for m in range(5):
                a(f"ds_write_b128 v48, v[{O+4*m}:{O+4*m+3}] offset:{PHK + rt*16*PHK_P + 16*m}")
        else:
            if rt == 0:
                a("s_lshl_b32 s58, s51, 3")
                a("s_lshl_b32 s59, s54, 1")
                a("s_add_u32 s58, s58, s59")
                a("s_lshl_b32 s58, s58, 3")
                a("s_add_u32 s58, s58, s52")
                a("s_mul_i32 s58, s58, 5120")
                a(f"s_add_u32 s58, s58, {PQ_OFF}")
                a("v_lshlrev_b32 v48, 4, v1")
                a("v_add_u32 v49, 4096, v48")
            else:
                a(f"s_add_u32 s58, s58, {8*5120}")
            for m in range(4):
                a(f"buffer_store_dwordx4 v[{O+4*m}:{O+4*m+3}], v48, s[32:35], s58 offen offset:{1024*m}")
            a(f"buffer_store_dwordx4 v[{O+16}:{O+19}], v49, s[32:35], s58 offen")
    a("s_waitcnt lgkmcnt(0)")
    a("s_barrier")
    a("s_lshr_b32 s58, s48, 1")
    a("s_and_b32 s59, s48, 1")
    a("v_lshl_add_u32 v28, v3, 2, v26")
    a(f"v_mul_u32_u24 v29, {PHK_P}, v28")
    a("v_lshl_add_u32 v29, v27, 3, v29")
    a("s_mul_i32 s57, s58, 80")
    a("v_add_u32 v29, s57, v29")
    a(f"v_mul_u32_u24 v30, {VI_P}, v28")
    a("v_lshl_add_u32 v30, v27, 3, v30")
    a("s_mul_i32 s57, s58, 48")
    a("s_lshl_b32 s60, s59, 5")
    a("s_add_u32 s57, s57, s60")
    a(f"s_add_u32 s57, s57, {VI}")
    a("v_add_u32 v30, s57, v30")
    RB = 168
    for kk in range(4):
        B = RB + 16*kk
        for hf in range(2):
            a(f"ds_read_b64_tr_b16 v[{B+2*hf}:{B+2*hf+1}], v30 offset:{(32*kk+16*hf)*VI_P}")
        for ft in range(3):
            for hf in range(2):
                a(f"ds_read_b64_tr_b16 v[{B+4+4*ft+2*hf}:{B+4+4*ft+2*hf+1}], v29 offset:{(32*kk+16*hf)*PHK_P + 32*ft}")
    a("s_lshl_b32 s57, s59, 4")
    a("v_add_u32 v28, s57, v2")
    a("v_mul_u32_u24 v29, 205, v28")
    a("v_lshrrev_b32 v29, 10, v29")
    a("v_mul_u32_u24 v30, 5, v29")
    a("v_sub_u32 v30, v28, v30")
    a("v_lshlrev_b32 v29, 2, v29")
    a("v_add_u32 v31, v29, v30")
    a("v_cmp_eq_u32 vcc, 4, v30")
    a("v_cndmask_b32 v31, v31, v29, vcc")
    a("v_cndmask_b32 v32, 0, 1, vcc")
    a("v_cmp_eq_u32 vcc, 20, v28")
    a("v_cndmask_b32 v31, v31, 1, vcc")
    a("v_cndmask_b32 v32, v32, 1, vcc")
    a("v_and_b32 v33, 1, v3")
    a("v_lshrrev_b32 v34, 1, v3")
    a("v_lshlrev_b32 v35, 11, v32")
    a("v_lshl_add_u32 v35, v33, 10, v35")
    a("v_lshl_add_u32 v35, v34, 8, v35")
    a("v_lshl_add_u32 v35, v31, 4, v35")
    a("v_lshlrev_b32 v36, 9, v32")
    a("v_lshl_add_u32 v36, v3, 8, v36")
    a("v_lshl_add_u32 v36, v31, 4, v36")
    a("v_add_u32 v36, 4096, v36")
    a("s_mul_i32 s57, s58, 5120")
    a(f"s_add_u32 s57, s57, {KVS}")
    a("v_add_u32 v35, s57, v35")
    a("v_add_u32 v36, s57, v36")
    a("v_lshlrev_b32 v30, 4, v1")
    a(f"v_add_u32 v30, {KVDUMP}, v30")
    a("v_cmp_gt_u32 vcc, 21, v28")
    a("v_cndmask_b32 v35, v30, v35, vcc")
    a("v_cndmask_b32 v36, v30, v36, vcc")
    a("v_cmp_gt_u32 vcc, 2, v3")
    a("v_cndmask_b32 v36, v30, v36, vcc")
    a("v_cmp_eq_u32 vcc, 20, v28")
    a("v_cndmask_b32 v37, v30, v35, vcc")
    a("v_cndmask_b32 v38, v30, v36, vcc")
    for kk in range(4):
        B = RB + 16*kk
        a(f"s_waitcnt lgkmcnt({min(15, 8*(3-kk))})")
        for ft in range(3):
            D = 64 + 4*ft
            c = "0" if kk == 0 else f"v[{D}:{D+3}]"
            a(f"v_mfma_f32_16x16x32_bf16 v[{D}:{D+3}], v[{B+4+4*ft}:{B+4+4*ft+3}], v[{B}:{B+3}], {c}")
    a("ds_write_b128 v35, v[64:67]")
    a("ds_write_b128 v35, v[68:71] offset:512")
    a("ds_write_b128 v36, v[72:75]")
    for cp in range(1, 4):
        a(f"ds_write_b128 v37, v[64:67] offset:{64*cp}")
        a(f"ds_write_b128 v37, v[68:71] offset:{512+64*cp}")
        a(f"ds_write_b128 v38, v[72:75] offset:{64*cp}")
    a("s_mov_b32 s60, 0")
    a("s_waitcnt vmcnt(0)")
    a.label(f"K1_POLL{ch}")
    a("v_readfirstlane_b32 s57, v61")
    a("s_cmp_lg_u32 s57, 0")
    a(f"s_cbranch_scc1 K1_POLLDONE{ch}")
    a("s_add_u32 s60, s60, 1")
    a("s_cmp_ge_u32 s60, 100000")
    a(f"s_cbranch_scc1 K1_POLLDONE{ch}")
    a("buffer_load_dword v61, v60, s[44:47], 0 offen sc0 sc1")
    a("s_waitcnt vmcnt(0)")
    a(f"s_branch K1_POLL{ch}")
    a.label(f"K1_POLLDONE{ch}")
    a("s_waitcnt lgkmcnt(0)")
    a("s_barrier")
    a("v_lshlrev_b32 v24, 2, v0")
    a(f"v_add_u32 v25, {KVS}, v24")
    for it in range(10):
        a(f"ds_read_b32 v{28+it}, v25 offset:{2048*it}")
    a("v_lshrrev_b32 v40, 5, v24")
    a("v_and_b32 v40, 1, v40")
    a(f"v_mov_b32 v41, {OOB}")
    a("v_cmp_eq_u32 vcc, 0, v40")
    a("v_cndmask_b32 v42, v41, v24, vcc")
    for it in range(10):
        lo = (2048*it) % 5120
        q1 = [((lo + 512*k) % 5120) for k in range(4)]
        inot1 = [(2048 <= x < 4096) or (4608 <= x < 5120) for x in q1]
        if all(inot1): vo = 42
        elif not any(inot1): vo = 24
        else:
            a("v_lshrrev_b32 v43, 7, v0")
            msk = sum(1 << k for k in range(4) if inot1[k])
            a(f"v_mov_b32 v44, {msk}")
            a("v_lshrrev_b32 v43, v43, v44")
            a("v_and_b32 v43, 1, v43")
            a("v_cmp_eq_u32 vcc, 1, v43")
            a("v_cndmask_b32 v43, v24, v42, vcc")
            vo = 43
        a(f"s_waitcnt lgkmcnt({9-it})")
        a(f"s_mov_b32 s57, {2048*it}")
        a(f"buffer_atomic_add_f32 v{28+it}, v{vo}, s[40:43], s57 offen")

def w2f_issue(a):
    a("s_lshl_b32 s69, s51, 3")
    a("s_add_u32 s69, s69, s52")
    a("s_lshl_b32 s57, s48, 2")
    a("v_add_u32 v24, s57, v3")
    a("v_lshrrev_b32 v25, 3, v24")
    a("v_and_b32 v26, 7, v24")
    a("v_lshrrev_b32 v27, 2, v26")
    a("v_lshlrev_b32 v27, 4, v27")
    a("v_lshl_add_u32 v27, v25, 2, v27")
    a("v_and_b32 v28, 3, v26")
    a("v_add_u32 v32, v27, v28")
    a("v_mul_u32_u24 v31, 5, v25")
    for n in range(3):
        a(f"s_add_u32 s61, s69, {128*n}")
        a("s_mul_i32 s62, s61, 205")
        a("s_lshr_b32 s70, s62, 10")
        a("s_mul_i32 s63, s70, 5")
        a("s_sub_u32 s63, s61, s63")
        a("s_lshl_b32 s71, s63, 8")
        a("s_cmp_ge_u32 s61, 370")
        a(f"s_cselect_b32 s71, {OOB}, s71")
        a("s_lshl_b32 s64, s70, 5")
        a("v_add_u32 v27, s64, v32")
        a("s_sub_u32 s64, s70, 54")
        a("s_max_i32 s64, s64, 0")
        a("s_mul_i32 s65, s64, 205")
        a("s_lshr_b32 s65, s65, 10")
        a("s_mul_i32 s62, s65, 5")
        a("s_sub_u32 s62, s64, s62")
        a("s_lshl_b32 s62, s62, 3")
        a("v_add_u32 v28, s62, v26")
        a("v_mul_u32_u24 v29, 205, v28")
        a("v_lshrrev_b32 v29, 10, v29")
        a("v_mul_u32_u24 v30, 15, v29")
        a("v_add3_u32 v29, v28, v30, v31")
        a("s_mul_i32 s65, s65, 160")
        a("v_add_u32 v29, s65, v29")
        a("s_cmp_ge_u32 s70, 54")
        a("s_cselect_b32 s76, s10, s16")
        a("s_cselect_b32 s77, s11, s17")
        a(f"s_mov_b32 s78, {1728*640*2}")
        a(f"s_cselect_b32 s78, {640*640*2}, s78")
        a("s_mov_b32 s79, 0x00020000")
        a("s_cselect_b64 vcc, -1, 0")
        a("v_cndmask_b32 v27, v27, v29, vcc")
        a("v_mul_u32_u24 v27, 1280, v27")
        a("v_lshl_add_u32 v27, v2, 4, v27")
        a("s_lshl_b32 s57, s48, 10")
        a(f"s_add_u32 m0, s57, {W2S + 8192*n}")
        a("buffer_load_dwordx4 v27, s[76:79], s71 offen lds")

def k1_epi_h(a, ro):
    NP = 4 if ro == 2 else 3
    a(f"s_mov_b32 s56, {LOG2E}")
    a(f"s_mov_b32 s57, {LOG2E}")
    a("s_lshl_b32 s60, s51, 3")
    a("s_lshl_b32 s61, s54, 1")
    a("s_add_u32 s60, s60, s61")
    a("s_mul_i32 s60, s60, 54")
    a("s_mul_i32 s61, s52, 3")
    a("s_add_u32 s61, s61, 3")
    a("s_lshl_b32 s62, s52, 2")
    a("s_cmp_lt_u32 s52, 3")
    a("s_cselect_b32 s61, s62, s61")
    a("s_lshl_b32 s61, s61, 1")
    a("s_add_u32 s60, s60, s61")
    a(f"s_mul_i32 s61, s55, {NP}")
    a("s_add_u32 s60, s60, s61")
    a("s_lshl_b32 s60, s60, 10")
    a(f"s_add_u32 s61, s60, {54*1024}")
    a("v_lshlrev_b32 v44, 4, v1")
    for pi in range(NP):
        for rt in range(2):
            prs = [ACC + 8*(2*pi) + 4*rt, ACC + 8*(2*pi) + 4*rt + 2, ACC + 8*(2*pi+1) + 4*rt, ACC + 8*(2*pi+1) + 4*rt + 2]
            T = 128 + 8*((2*pi+rt) & 1)
            for i, v in enumerate(prs): a(f"v_pk_mul_f32 v[{T+2*i}:{T+2*i+1}], v[{v}:{v+1}], s[56:57] op_sel_hi:[1,0]")
            for i in range(8): a(f"v_exp_f32 v{T+i}, -v{T+i}")
            for i in range(4): a(f"v_pk_add_f32 v[{T+2*i}:{T+2*i+1}], v[{T+2*i}:{T+2*i+1}], 1.0 op_sel_hi:[1,0]")
            for i in range(8): a(f"v_rcp_f32 v{T+i}, v{T+i}")
            for i, v in enumerate(prs): a(f"v_pk_mul_f32 v[{v}:{v+1}], v[{v}:{v+1}], v[{T+2*i}:{T+2*i+1}]")
            O = 160 + 4*(2*pi+rt)
            for i, v in enumerate(prs): a(f"v_cvt_pk_bf16_f32 v{O+i}, v{v}, v{v+1}")
            a(f"buffer_store_dwordx4 v[{O}:{O+3}], v44, s[32:35], s{60+rt} offen offset:{1024*pi}")
    a(f"s_waitcnt vmcnt({2*NP})")
    a("s_barrier")
    a("v_lshrrev_b32 v26, 2, v1")
    a("v_and_b32 v26, 3, v26")
    a("v_and_b32 v27, 3, v1")
    a("v_lshl_add_u32 v28, v3, 3, v26")
    a("v_lshlrev_b32 v28, 8, v28")
    a("v_lshl_add_u32 v28, v27, 3, v28")
    a("s_lshl_b32 s61, s48, 5")
    a(f"s_add_u32 s61, s61, {W2S}")
    a("v_add_u32 v28, s61, v28")
    for n in range(3):
        a(f"ds_read_b64_tr_b16 v[{200+4*n}:{201+4*n}], v28 offset:{8192*n}")
        a(f"ds_read_b64_tr_b16 v[{202+4*n}:{203+4*n}], v28 offset:{8192*n+1024}")
    for n in range(3):
        a(f"s_add_u32 s61, s69, {128*n}")
        a("s_lshl_b32 s62, s61, 3")
        a("s_add_u32 s62, s62, s48")
        a("s_lshl_b32 s62, s62, 10")
        a(f"s_add_u32 s62, s62, {WF_OFF}")
        a("s_cmp_ge_u32 s61, 370")
        a(f"s_cselect_b32 s62, {OOB}, s62")
        a(f"s_waitcnt lgkmcnt({2*(2-n)})")
        a(f"buffer_store_dwordx4 v[{200+4*n}:{203+4*n}], v44, s[32:35], s62 offen")

K2_LDS = 160 * 1024
def gen_k2():
    a = Asm()
    a.raw(f".globl k2_kernel\n.p2align 8\n.type k2_kernel,@function\nk2_kernel:")
    a("s_cmp_ge_u32 s2, 256")
    a("s_cbranch_scc1 K2_END")
    stamp(a, 0)
    a("s_load_dwordx2 s[4:5], s[0:1], 0")
    a("s_load_dwordx2 s[18:19], s[0:1], 56")
    a("s_load_dwordx2 s[22:23], s[0:1], 72")
    a("v_and_b32 v1, 63, v0")
    a("v_and_b32 v2, 15, v0")
    a("v_lshrrev_b32 v3, 4, v1")
    a("v_lshrrev_b32 v4, 6, v0")
    a("v_readfirstlane_b32 s48, v4")
    a("s_and_b32 s49, s2, 7")
    a("s_lshr_b32 s50, s2, 3")
    a("s_and_b32 s51, s49, 1")
    a("s_lshl_b32 s51, s51, 4")
    a("s_bfe_u32 s52, s49, 0x10001")
    a("s_lshl_b32 s52, s52, 3")
    a("s_add_u32 s51, s51, s52")
    a("s_and_b32 s52, s50, 7")
    a("s_add_u32 s51, s51, s52")
    a("s_lshr_b32 s52, s49, 2")
    a("s_lshl_b32 s52, s52, 2")
    a("s_lshr_b32 s53, s50, 3")
    a("s_add_u32 s52, s52, s53")
    a("s_mul_i32 s53, s48, 14")
    a("s_cmp_eq_u32 s48, 3")
    a("s_cselect_b32 s54, 1, 0")
    a("s_sub_u32 s53, s53, s54")
    a("v_lshlrev_b32 v5, 4, v1")
    a(f"v_mov_b32 v26, {OOB}")
    a(f"s_mul_i32 s55, s51, {4*54*1024}")
    for aa in range(4):
        a(f"s_add_u32 s56, s55, {aa*54*1024 + HF_OFF}")
        a(f"v_add_u32 v{6+aa}, s56, v5")
    a("s_mul_i32 s56, s52, 5120")
    a(f"s_add_u32 s56, s56, {WF_OFF}")
    a("v_add_u32 v10, s56, v5")
    a("v_add_u32 v11, 4096, v10")
    a(f"s_mul_i32 s55, s51, {4*8*5120}")
    a("v_lshlrev_b32 v16, 10, v3")
    a("v_lshl_add_u32 v16, v2, 4, v16")
    for aa in range(4):
        a(f"s_add_u32 s56, s55, {aa*8*5120 + PQ_OFF}")
        a(f"v_add_u32 v{12+aa}, s56, v16")
        a(f"v_add_u32 v{17+aa}, s56, v5")
    a("v_and_b32 v22, 3, v2")
    a("v_mov_b32 v21, v5")
    a("v_add_u32 v25, 2048, v5")
    a("v_cmp_gt_u32 vcc, 2, v22")
    a("v_cndmask_b32 v22, v26, v25, vcc")
    a("v_lshlrev_b32 v24, 4, v2")
    a("v_add_u32 v24, 4096, v24")
    a("v_add_u32 v25, 512, v24")
    a("v_cndmask_b32 v25, v26, v25, vcc")
    for h4 in range(4):
        a(f"v_cmp_eq_u32 vcc, {h4}, v3")
        a(f"v_cndmask_b32 v{28+2*h4}, v26, v24, vcc")
        a(f"v_cndmask_b32 v{29+2*h4}, v26, v25, vcc")
    a("s_lshl_b32 s55, s51, 6")
    a("s_lshl_b32 s56, s48, 4")
    a("s_add_u32 s55, s55, s56")
    a("v_lshrrev_b32 v36, 2, v1")
    a("v_and_b32 v37, 3, v1")
    a("v_lshrrev_b32 v38, 1, v36")
    a("v_xor_b32 v38, v38, v37")
    a("v_and_b32 v38, 3, v38")
    a("v_lshl_add_u32 v38, v36, 2, v38")
    a("v_lshlrev_b32 v38, 4, v38")
    a("v_lshrrev_b32 v39, 1, v2")
    a("v_xor_b32 v39, v39, v3")
    a("v_and_b32 v39, 3, v39")
    a("v_lshl_add_u32 v39, v2, 2, v39")
    a("v_lshlrev_b32 v39, 4, v39")
    a("s_mul_i32 s56, s48, 10240")
    a("v_add_u32 v39, s56, v39")
    a("v_add_u32 v4, 81920, v39")
    a("v_add_u32 v36, s55, v36")
    a("v_mul_u32_u24 v36, 1280, v36")
    a("v_lshl_add_u32 v36, v37, 3, v36")
    a("s_mul_i32 s56, s52, 160")
    a("v_add_u32 v36, s56, v36")
    a("s_waitcnt lgkmcnt(0)")
    srd(a, 24, 4, 5, 2621440)
    srd(a, 28, 18, 19, 2621440)
    srd(a, 32, 22, 23, WS_USED)
    stamp(a, 1)
    ACF, ACS, OF, TMP, XP = 0, 80, 40, 216, 246
    FS = [("a", 160), ("a", 196), ("v", 120), ("v", 156), ("v", 40), ("v", 76)]
    KS = [120, 152, 184]
    BS = [112, 128, 144]
    WSL = [160, 180, 200, 220, 160]
    vm = []
    def ld(gid, text):
        a(text); vm.append(gid)
    def R(c, b, n=4): return f"{c}[{b}:{b+n-1}]"
    def issue(g):
        if g < 14:
            c, P = FS[g % 6]
            if g == 0:
                a("s_lshl_b32 s60, s53, 10")
                a("s_mul_i32 s61, s53, 40960")
            else:
                a("s_add_u32 s60, s60, 1024")
                a("s_add_u32 s61, s61, 40960")
            if g == 13:
                a("s_cmp_ge_u32 s48, 2")
                a(f"s_cselect_b32 s60, {OOB}, s60")
                a(f"s_cselect_b32 s61, {OOB}, s61")
            for t in range(4): ld(g, f"buffer_load_dwordx4 {R(c, P+16+4*t)}, v10, s[32:35], s61 offen offset:{1024*t}")
            ld(g, f"buffer_load_dwordx4 {R(c, P+32)}, v11, s[32:35], s61 offen")
            for aa in range(4): ld(g, f"buffer_load_dwordx4 {R(c, P+4*aa)}, v{6+aa}, s[32:35], s60 offen")
        elif g < 22:
            hd = g - 14; h4 = hd & 3; qq = hd >> 2
            P = KS[hd % 3]; B = BS[hd % 3]
            if hd == 0:
                a(f"s_mul_i32 s62, s48, {8*5120}")
                a(f"s_add_u32 s62, s62, {KV_OFF}")
                a("s_mul_i32 s63, s48, 10240")
            else:
                a("s_add_u32 s62, s62, 5120")
                if hd == 4: a("s_add_u32 s63, s63, 5120")
            for i, vo in enumerate((21, 22, 28+2*h4, 29+2*h4)):
                ld(g, f"buffer_load_dwordx4 v[{P+8*i}:{P+8*i+3}], v{vo}, s[32:35], s62 offen")
                ld(g, f"buffer_load_dwordx4 v[{P+8*i+4}:{P+8*i+7}], v{vo}, s[32:35], s62 offen offset:{1024 if i < 2 else 256}")
            for aa in range(4):
                ld(g, f"buffer_load_dwordx4 a[{B+4*aa}:{B+4*aa+3}], v{12+aa}, s[32:35], s63 offen offset:{256*h4}")
            if h4 == 0:
                a("s_add_u32 s64, s63, 4096")
                for aa in range(4):
                    BX = ACS + 16*qq + 4*aa
                    ld(g, f"buffer_load_dwordx4 a[{BX}:{BX+3}], v{17+aa}, s[32:35], s64 offen")
        else:
            m = g - 22
            P = WSL[m]
            if m == 0:
                a("s_mul_i32 s65, s48, 5")
                a("s_add_u32 s65, s65, 54")
                a("s_mul_i32 s65, s65, 40960")
            else:
                a("s_add_u32 s65, s65, 40960")
            for t in range(4): ld(g, f"buffer_load_dwordx4 a[{P+4*t}:{P+4*t+3}], v10, s[32:35], s65 offen offset:{1024*t}")
            ld(g, f"buffer_load_dwordx4 a[{P+16}:{P+19}], v11, s[32:35], s65 offen")
            if m == 3:
                for t in range(5): ld(99, f"buffer_load_dwordx2 v[{XP+2*t}:{XP+1+2*t}], v36, s[24:27], 0 offen offset:{32*t}")
    class Rec:
        def __init__(self): self.l = []
        def __call__(self, t): self.l.append(t)
    def capture(gs):
        nonlocal a
        real = a; rec = Rec(); a = rec
        n0 = len(vm)
        for g in gs: issue(g)
        a = real
        tags = vm[n0:]; del vm[n0:]
        groups = []; cur = []; ti = 0
        for t in rec.l:
            cur.append(t)
            if t.startswith("buffer_load"):
                groups.append((cur, tags[ti])); ti += 1; cur = []
        if cur: groups.append((cur, None))
        return groups
    def play(g):
        for t in g[0]: a(t)
        if g[1] is not None: vm.append(g[1])
    def wait(g):
        last = max(i for i, x in enumerate(vm) if x == g)
        n = len(vm) - 1 - last
        a(f"s_waitcnt vmcnt({min(n, 63)})")
    def mfmas(L, lg):
        k2 = 0
        for nm, m in enumerate(L):
            a(m)
            want = (len(lg) * (nm + 1) + len(L) - 1) // len(L)
            while k2 < min(want, len(lg)):
                play(lg[k2]); k2 += 1
        while k2 < len(lg):
            play(lg[k2]); k2 += 1
    def compute(g, lg):
        wait(g)
        if g < 14:
            c, P = FS[g % 6]
            L = []
            for t in range(5):
                for aa in range(4):
                    ac = ACF + 16*t + 4*aa
                    cc = "0" if g == 0 else f"a[{ac}:{ac+3}]"
                    L.append(f"v_mfma_f32_16x16x32_bf16 a[{ac}:{ac+3}], {R(c, P+16+4*t)}, {R(c, P+4*aa)}, {cc}")
            mfmas(L, lg)
        elif g < 22:
            hd = g - 14; qq = hd >> 2
            P = KS[hd % 3]; B = BS[hd % 3]
            for i in range(4):
                for d in range(4):
                    a(f"v_cvt_pk_bf16_f32 v{TMP+4*i+d}, v{P+8*i+2*d}, v{P+8*i+2*d+1}")
            L = []
            for aa in range(4):
                B0 = B + 4*aa; BX = ACS + 16*qq + 4*aa
                for ot in range(2):
                    D = P + 8*aa + 4*ot
                    L.append(f"v_mfma_f32_16x16x32_bf16 v[{D}:{D+3}], v[{TMP+4*ot}:{TMP+4*ot+3}], a[{B0}:{B0+3}], 0")
                for ot in range(2):
                    D = P + 8*aa + 4*ot
                    L.append(f"v_mfma_f32_16x16x32_bf16 v[{D}:{D+3}], v[{TMP+8+4*ot}:{TMP+8+4*ot+3}], a[{BX}:{BX+3}], v[{D}:{D+3}]")
            mfmas(L, lg)
            for aa in range(4):
                D = P + 8*aa
                a(f"v_add_f32 v{D+5}, 0x358637bd, v{D+5}")
                a(f"v_rcp_f32 v{D+5}, v{D+5}")
            for aa in range(4):
                D = P + 8*aa
                for t in range(5): a(f"v_mul_f32 v{D+t}, v{D+5}, v{D+t}")
                O = OF + 20*aa
                if hd % 2 == 0:
                    j = 5*hd // 2
                    a(f"v_cvt_pk_bf16_f32 v{O+j}, v{D}, v{D+1}")
                    a(f"v_cvt_pk_bf16_f32 v{O+j+1}, v{D+2}, v{D+3}")
                    a(f"v_mov_b32 v{TMP+16+aa}, v{D+4}")
                else:
                    j = (5*hd - 1) // 2
                    a(f"v_cvt_pk_bf16_f32 v{O+j}, v{TMP+16+aa}, v{D}")
                    a(f"v_cvt_pk_bf16_f32 v{O+j+1}, v{D+1}, v{D+2}")
                    a(f"v_cvt_pk_bf16_f32 v{O+j+2}, v{D+3}, v{D+4}")
        else:
            m = g - 22
            P = WSL[m]
            L = []
            for t in range(5):
                for aa in range(4):
                    ac = ACS + 16*t + 4*aa
                    c = "0" if m == 0 else f"a[{ac}:{ac+3}]"
                    L.append(f"v_mfma_f32_16x16x32_bf16 a[{ac}:{ac+3}], a[{P+4*t}:{P+4*t+3}], v[{OF+20*aa+4*m}:{OF+20*aa+4*m+3}], {c}")
            mfmas(L, lg)
    def wr_acc(AC, o2):
        for aa in range(4):
            va = 39 if aa < 2 else 4
            for t in range(5):
                a(f"ds_write_b128 v{va}, a[{AC+16*t+4*aa}:{AC+16*t+4*aa+3}] offset:{(aa & 1)*40960 + o2 + 1024*t}")
    during = {g: [g + 5] for g in range(1, 9)}
    during[0] = [5]
    during[9] = [14]; during[10] = [15, 16]; during[13] = [22]; during[14] = [23, 24, 25]
    for hd in range(1, 6): during.setdefault(14 + hd, []).append(14 + hd + 2)
    during[23] = [26]
    for g in range(5): issue(g)
    for g in range(27):
        if g == 1: stamp(a, 2)
        if g == 14: stamp(a, 3)
        if g == 22: stamp(a, 4)
        compute(g, capture(during.get(g, [])))
        if g == 13: wr_acc(ACF, 0)
    stamp(a, 5)
    wr_acc(ACS, 5120)
    a("s_waitcnt lgkmcnt(0)")
    a("s_barrier")
    FIN = 120
    RB = [120, 40, 80, 160]
    a("s_mul_i32 s55, s48, 40960")
    a("v_add_u32 v4, s55, v38")
    for k in range(4):
        B = RB[k]
        for i in range(10):
            a(f"ds_read_b128 v[{B+4*i}:{B+4*i+3}], v4 offset:{10240*k + 1024*i}")
    for k in range(1, 4):
        B = RB[k]
        a(f"s_waitcnt lgkmcnt({min(15, 10*(3-k))})")
        for i in range(0, 40, 2):
            a(f"v_pk_add_f32 v[{FIN+i}:{FIN+i+1}], v[{FIN+i}:{FIN+i+1}], v[{B+i}:{B+i+1}]")
    a(f"s_mov_b32 s56, {LOG2E}")
    a(f"s_mov_b32 s57, {LOG2E}")
    T = 40
    for i in range(0, 20, 2): a(f"v_pk_mul_f32 v[{T+i}:{T+i+1}], v[{FIN+i}:{FIN+i+1}], s[56:57] op_sel_hi:[1,0]")
    for i in range(20): a(f"v_exp_f32 v{T+i}, -v{T+i}")
    for i in range(0, 20, 2): a(f"v_pk_add_f32 v[{T+i}:{T+i+1}], v[{T+i}:{T+i+1}], 1.0 op_sel_hi:[1,0]")
    for i in range(20): a(f"v_rcp_f32 v{T+i}, v{T+i}")
    for i in range(0, 20, 2): a(f"v_pk_mul_f32 v[{FIN+i}:{FIN+i+1}], v[{FIN+i}:{FIN+i+1}], v[{T+i}:{T+i+1}]")
    a("s_waitcnt vmcnt(0)")
    for t in range(5):
        for d in range(2):
            xr = XP + 2*t + d
            a(f"v_lshlrev_b32 v{T+20}, 16, v{xr}")
            a(f"v_and_b32 v{T+21}, 0xffff0000, v{xr}")
            i = 4*t + 2*d
            a(f"v_pk_fma_f32 v[{T+20}:{T+21}], v[{FIN+20+i}:{FIN+20+i+1}], v[{FIN+i}:{FIN+i+1}], v[{T+20}:{T+21}]")
            a(f"v_cvt_pk_bf16_f32 v{T+22+2*t+d}, v{T+20}, v{T+21}")
        a(f"buffer_store_dwordx2 v[{T+22+2*t}:{T+23+2*t}], v36, s[28:31], 0 offen offset:{32*t}")
    stamp(a, 6)
    if DIAG: a("s_waitcnt vmcnt(0)")
    stamp(a, 7)
    dump_stamps(a, 8, 1, 22, 23)
    a.label("K2_END")
    a("s_endpgm")
    return a

def desc(name, vgpr, sgpr=100):
    acc = min((vgpr + 3) // 4 * 4, 256)
    return f"""
.p2align 6
.amdhsa_kernel {name}
  .amdhsa_next_free_vgpr {vgpr}
  .amdhsa_next_free_sgpr {sgpr}
  .amdhsa_accum_offset {acc}
  .amdhsa_group_segment_fixed_size 0
  .amdhsa_kernarg_size 80
  .amdhsa_user_sgpr_count 2
  .amdhsa_user_sgpr_kernarg_segment_ptr 1
  .amdhsa_system_sgpr_workgroup_id_x 1
.end_amdhsa_kernel
"""

if __name__ == "__main__":
    k1 = gen_k1(); k2 = gen_k2()
    hdr = f"""; generated by dev/gen3.py
; @launch kernel=k1_kernel grid=(256,1,1) block=(512,1,1) lds={K1_LDS}
; @launch kernel=k2_kernel grid=(256,1,1) block=(256,1,1) lds={K2_LDS}
.amdgcn_target "amdgcn-amd-amdhsa--gfx950"
.text
"""
    out = hdr + k1.text() + k2.text() + '.section .rodata,"a"\n' + desc("k1_kernel", 256) + desc("k2_kernel", 512)
    path = sys.argv[1] if len(sys.argv) > 1 and not sys.argv[1].startswith("--") else f"cdna_kernels/{NAME}.s"
    open(path, "w").write(out)
    print("written", path, len(out), "nops", k1.nops, k2.nops)
```

```python
import sys
from asmlib import Asm

NAME = "recurrent_scan__linear_kernel_hedgehog__dense_activation_silu__prompt"
HF_OFF = 0
QF_OFF = 128 * 54 * 1024
OF_OFF = QF_OFF + 128 * 8 * 3 * 1024
WF_OFF = OF_OFF + 128 * 20 * 1024
KV_OFF = WF_OFF + 74 * 40 * 1024
KVQ = 15360
ST_OFF = KV_OFF + 8 * KVQ
CP_OFF = ST_OFF + 16384
WS_USED = CP_OFF + 262144
OOB = 0x40000000
LOG2E = 0x3fb8aa3b
XF = [x[2:] for x in sys.argv if x.startswith("--")]
STM = " sc1"
DIAG = "diag" in XF
DIAG_OFF = 16 << 20
def opt(name, dflt):
    v = [x[len(name):] for x in XF if x.startswith(name) and x[len(name):].isdigit()]
    return int(v[0]) if v else dflt

NS = 3
AOFF = 34816
STAGE = 51200
MISC = NS * STAGE
CSUM = MISC
SDUMP = MISC + 1024
PART = MISC + 2048
K1_LDS = 163840
PHK = 0; PHK_P = 352
VI = 128 * PHK_P; VI_P = 224
WPHI = VI + 128 * VI_P
KVS = WPHI + 4096
KVDUMP = KVS + 15360
KX = KVDUMP + 4096
W2S = 0

def stamp(a, i):
    if not DIAG: return
    a(f"s_memtime s[{80+2*i}:{81+2*i}]")
    a("s_waitcnt lgkmcnt(0)")
def dump_stamps(a, n, kidx, ws_lo, ws_hi):
    if not DIAG: return
    a("s_memrealtime s[96:97]")
    a("s_waitcnt lgkmcnt(0)")
    a(f"s_mov_b32 s76, s{ws_lo}")
    a(f"s_mov_b32 s77, s{ws_hi}")
    a(f"s_mov_b32 s78, {DIAG_OFF + (1 << 20)}")
    a("s_mov_b32 s79, 0x00020000")
    a("s_lshl_b32 s57, s2, 3")
    a("s_add_u32 s57, s57, s48")
    a("s_lshl_b32 s57, s57, 6")
    a(f"s_add_u32 s57, s57, {DIAG_OFF + kidx * 0x40000}")
    a("v_mov_b32 v250, s57")
    for i in range(n):
        a(f"v_mov_b32 v251, s{80+2*i}")
        a(f"buffer_store_dword v251, v250, s[76:79], 0 offen offset:{4*i}")
    a("v_mov_b32 v251, s96")
    a(f"buffer_store_dword v251, v250, s[76:79], 0 offen offset:60")

def srd(a, d, lo, hi, size):
    a(f"s_mov_b32 s{d}, s{lo}")
    a(f"s_mov_b32 s{d+1}, s{hi}")
    a(f"s_mov_b32 s{d+2}, {size}")
    a(f"s_mov_b32 s{d+3}, 0x00020000")
def bf16_round(a, v):
    a(f"v_cvt_pk_bf16_f32 v{v}, v{v}, v{v}")
    a(f"v_lshlrev_b32 v{v}, 16, v{v}")
def emit(a, x):
    if x.startswith("LABEL "): a.label(x[6:])
    else: a(x)

ACC = 64
XA, XB, YA, YB = 128, 136, 168, 176
DC = 208; DS = 216; ONES = 224
ASET = [(228, 229, 230, 231), (232, 233, 234, 235), (236, 237, 238, 239)]
VB = 4
ROLES = {
    0: ([160 + 8*j for j in range(5)] + [320 + 8*j for j in range(3)], 480, 30, 4),
    1: ([8*j for j in range(5)] + [320 + 8*j for j in (3, 4)], 480, 30, 4),
    2: ([32*t for t in range(8)], 544, 34, 5),
    3: ([32*t for t in range(6)], 416, 26, 4),
}
TD = opt("td", 5)

def gen_k1():
    a = Asm()
    a.raw(f".globl k1_kernel\n.p2align 8\n.type k1_kernel,@function\nk1_kernel:")
    a("s_cmp_ge_u32 s2, 256")
    a("s_cbranch_scc1 K1_END")
    stamp(a, 0)
    a("s_load_dwordx16 s[4:19], s[0:1], 0")
    a("s_load_dwordx4 s[20:23], s[0:1], 64")
    a("v_and_b32 v1, 63, v0")
    a("v_and_b32 v2, 15, v0")
    a("v_lshrrev_b32 v3, 4, v1")
    a("v_lshrrev_b32 v24, 6, v0")
    a("v_readfirstlane_b32 s48, v24")
    a("s_and_b32 s49, s2, 7")
    a("s_lshr_b32 s50, s2, 3")
    a("s_and_b32 s51, s49, 1")
    a("s_lshl_b32 s51, s51, 3")
    a("s_and_b32 s66, s50, 7")
    a("s_add_u32 s51, s51, s66")
    a("s_lshr_b32 s52, s49, 1")
    a("s_lshr_b32 s67, s50, 3")
    a("s_lshl_b32 s52, s52, 1")
    a("s_and_b32 s54, s67, 1")
    a("s_add_u32 s52, s52, s54")
    a("s_lshr_b32 s53, s67, 1")
    a("s_and_b32 s54, s48, 3")
    a("s_lshr_b32 s55, s48, 2")
    a("s_mul_i32 s58, s52, 3")
    a("s_add_u32 s58, s58, 3")
    a("s_lshl_b32 s57, s52, 2")
    a("s_cmp_lt_u32 s52, 3")
    a("s_cselect_b32 s58, s57, s58")
    a("s_cselect_b32 s68, 2, 3")
    a("s_cmp_eq_u32 s53, 0")
    a("s_cselect_b32 s68, s55, s68")
    a("s_mov_b32 s59, 30\ns_mov_b32 s64, 30\ns_movk_i32 s65, 480\ns_movk_i32 s69, 2185\ns_mov_b32 s70, 4")
    a("s_cmp_eq_u32 s68, 2")
    a("s_cselect_b32 s59, 32, s59\ns_cselect_b32 s64, 34, s64\ns_cselect_b32 s65, 544, s65\ns_cselect_b32 s69, 1928, s69\ns_cselect_b32 s70, 5, s70")
    a("s_cmp_eq_u32 s68, 3")
    a("s_cselect_b32 s59, 24, s59\ns_cselect_b32 s64, 26, s64\ns_cselect_b32 s65, 416, s65\ns_cselect_b32 s69, 2521, s69")
    a("s_mul_i32 s62, s52, 160")
    a("s_lshl_b32 s57, s58, 7")
    a("s_movk_i32 s63, 3840")
    a("s_cmp_eq_u32 s53, 0")
    a("s_cselect_b32 s62, s62, s57")
    a("s_cselect_b32 s63, s63, 3456")
    a(f"v_mov_b32 v13, {OOB}")
    a("s_mul_i32 s72, s48, s70")
    for jj in range(5):
        a(f"s_add_u32 s57, s72, {jj}")
        a("s_lshl_b32 s57, s57, 6")
        a("v_add_u32 v24, s57, v1")
        a("v_mul_u32_u24 v25, s69, v24")
        a("v_lshrrev_b32 v25, 16, v25")
        a("v_mul_u32_u24 v26, s64, v25")
        a("v_sub_u32 v26, v24, v26")
        a("v_lshrrev_b32 v27, 1, v25")
        a("v_and_b32 v27, 4, v27")
        a("v_xor_b32 v25, v25, v27")
        a("v_mul_u32_u24 v25, s63, v25")
        a("v_lshl_add_u32 v25, v26, 4, v25")
        a("v_add_u32 v25, s62, v25")
        a("v_mul_u32_u24 v27, 26, v26")
        a("v_lshrrev_b32 v27, 8, v27")
        a("v_mul_u32_u24 v27, 1120, v27")
        a("s_cmp_eq_u32 s53, 0")
        a("s_cselect_b64 vcc, -1, 0")
        a("v_cndmask_b32 v27, 0, v27, vcc")
        a("v_add_u32 v25, v25, v27")
        a("v_cmp_gt_u32 vcc, s59, v26")
        a(f"v_cndmask_b32 v{VB+jj}, v13, v25, vcc")
    a("v_lshrrev_b32 v24, 3, v1")
    a("v_xor_b32 v25, v24, v1")
    a("v_and_b32 v25, 7, v25")
    a("v_mul_u32_u24 v24, 1280, v24")
    a("v_lshl_add_u32 v24, v25, 4, v24")
    a("s_lshl_b32 s57, s51, 3")
    a("s_add_u32 s57, s57, s48")
    a("s_mul_i32 s57, s57, 20480")
    a("v_add_u32 v9, s57, v24")
    a("v_add_u32 v10, 10240, v9")
    a("v_and_b32 v24, 1, v1")
    a("v_mul_u32_u24 v24, 156, v24")
    a("v_lshrrev_b32 v25, 1, v1")
    a("v_mul_u32_u24 v25, 1280, v25")
    a("v_add_u32 v24, v24, v25")
    a("v_lshlrev_b32 v25, 7, v1")
    a("s_cmp_eq_u32 s53, 0")
    a("s_cselect_b64 vcc, -1, 0")
    a("v_cndmask_b32 v24, v25, v24, vcc")
    a("s_lshl_b32 s57, s66, 3")
    a("s_add_u32 s57, s57, s48")
    a("s_mul_i32 s57, s57, s63")
    a("s_add_u32 s57, s57, s62")
    a("v_add_u32 v11, s57, v24")
    a("s_lshl_b32 s57, s67, 3")
    a("s_add_u32 s57, s57, s48")
    a("s_lshl_b32 s57, s57, 2")
    a("s_lshl_b32 s61, s51, 7")
    a("s_add_u32 s57, s57, s61")
    a("v_add_u32 v24, s57, v1")
    a("v_mul_u32_u24 v12, 1280, v24")
    a("s_lshl_b32 s57, s53, 3")
    a("s_add_u32 s71, s57, s52")
    a("s_lshl_b32 s57, s71, 3")
    a("s_add_u32 s57, s57, s48")
    a("s_lshl_b32 s61, s51, 7")
    a("s_add_u32 s49, s57, s61")
    a("s_mul_i32 s57, s49, 1280")
    a("v_lshlrev_b32 v24, 5, v1")
    a("v_add_u32 v24, s57, v24")
    a("v_cmp_gt_u32 vcc, 40, v1")
    a("v_cndmask_b32 v14, v13, v24, vcc")
    a("v_mul_u32_u24 v24, 13, v1")
    a("v_lshrrev_b32 v24, 8, v24")
    a("v_mul_u32_u24 v24, 1120, v24")
    a("s_cmp_eq_u32 s53, 0")
    a("s_cselect_b64 vcc, -1, 0")
    a("v_cndmask_b32 v24, 0, v24, vcc")
    a("v_lshl_add_u32 v24, v1, 3, v24")
    a("s_mul_i32 s57, s51, 40")
    a("s_mul_i32 s61, s48, 5")
    a("s_add_u32 s57, s57, s61")
    a("s_mul_i32 s57, s57, s63")
    a("s_add_u32 s57, s57, s62")
    a("v_add_u32 v24, s57, v24")
    a("s_lshl_b32 s57, s59, 1")
    a("v_cmp_gt_u32 vcc, s57, v1")
    a("v_cndmask_b32 v15, v13, v24, vcc")
    A0, A1, B0, B1 = ASET[0]
    a("s_lshl_b32 s57, s54, 12")
    a(f"s_add_u32 s57, s57, {AOFF}")
    a("v_xor_b32 v24, v3, v2")
    a("v_and_b32 v24, 7, v24")
    a("v_lshl_add_u32 v24, v2, 3, v24")
    a("v_lshlrev_b32 v24, 4, v24")
    a(f"v_add_u32 v{A0}, s57, v24")
    a(f"v_xor_b32 v{A1}, 64, v{A0}")
    a("v_and_b32 v26, 3, v1")
    a("v_mul_u32_u24 v27, 40, v26")
    a("v_lshlrev_b32 v26, 3, v26")
    a("s_lshl_b32 s57, s59, 3")
    a("s_mul_i32 s57, s57, s55")
    a("v_add_u32 v26, s57, v26")
    a("s_cmp_eq_u32 s53, 0")
    a("s_cselect_b64 vcc, -1, 0")
    a("v_cndmask_b32 v26, v26, v27, vcc")
    a("v_lshrrev_b32 v24, 2, v1")
    a("v_and_b32 v24, 3, v24")
    a("v_lshl_add_u32 v24, v3, 3, v24")
    a("v_and_b32 v25, 1, v3")
    a("v_lshlrev_b32 v25, 2, v25")
    a("v_add_u32 v27, v24, v25")
    a("v_xor_b32 v25, 4, v25")
    a("v_add_u32 v28, v24, v25")
    a("v_mul_u32_u24 v27, s65, v27")
    a("v_mul_u32_u24 v28, s65, v28")
    a(f"v_add_u32 v{B0}, v27, v26")
    a(f"v_add_u32 v{B1}, v28, v26")
    for st in (1, 2):
        for k in range(4): a(f"v_add_u32 v{ASET[st][k]}, {st*STAGE}, v{ASET[0][k]}")
    for k in range(4): a(f"v_mov_b32 v{ONES+k}, 0x3f803f80")
    a("v_lshlrev_b32 v24, 4, v0")
    a("s_mul_i32 s57, s52, 3200")
    a("v_add_u32 v25, s57, v24")
    a("v_cmp_gt_u32 vcc, 3200, v24")
    a("v_cndmask_b32 v16, v13, v25, vcc")
    a("s_mov_b32 s61, 0")
    a("s_mov_b32 s60, 0")
    a("s_lshl_b32 s56, s63, 6")
    a("s_lshl_b32 s73, s72, 10")
    a("s_lshl_b32 s74, s48, 11")
    a(f"s_add_u32 s74, s74, {AOFF}")
    a("s_sub_u32 s75, s64, s72")
    a("s_waitcnt lgkmcnt(0)")
    stamp(a, 1)
    srd(a, 24, 4, 5, 2621440)
    a("s_cmp_eq_u32 s53, 0")
    a("s_cselect_b32 s28, s6, s14")
    a("s_cselect_b32 s29, s7, s15")
    a(f"s_mov_b32 s30, {640*1728*2}")
    a(f"s_cselect_b32 s30, {640*1920*2}, s30")
    a("s_mov_b32 s31, 0x00020000")
    a(f"s_mul_i32 s57, s52, {KVQ}")
    a(f"s_add_u32 s57, s57, {KV_OFF}")
    a("s_add_u32 s40, s22, s57")
    a("s_addc_u32 s41, s23, 0")
    a(f"s_mov_b32 s42, {KVQ}")
    a("s_mov_b32 s43, 0x00020000")
    srd(a, 32, 22, 23, WS_USED)
    srd(a, 44, 20, 21, 256)
    srd(a, 36, 8, 9, 25600)
    a("s_or_b32 s57, s51, s53")
    a("s_cmp_eq_u32 s57, 0")
    a("s_cbranch_scc0 K1_NOZERO")
    a("v_lshlrev_b32 v24, 4, v0")
    a("v_mov_b32 v28, 0\nv_mov_b32 v29, 0\nv_mov_b32 v30, 0\nv_mov_b32 v31, 0")
    for z in range(2):
        a(f"s_mov_b32 s57, {8192*z}")
        a("buffer_store_dwordx4 v[28:31], v24, s[40:43], s57 offen sc0 sc1")
    a.label("K1_NOZERO")
    if "nolin" not in XF:
        a("s_lshl_b32 s57, s2, 3")
        a("s_add_u32 s57, s57, s48")
        a("s_mul_i32 s57, s57, 1280")
        a("v_lshlrev_b32 v24, 7, v1")
        a("s_mov_b64 exec, 0x3ff")
        srd(a, 76, 6, 7, 640*1920*2)
        a("buffer_load_dword v17, v24, s[76:79], s57 offen")
        a("buffer_load_dword v18, v24, s[24:27], s57 offen")
        srd(a, 92, 14, 15, 640*1728*2)
        a("buffer_load_dword v19, v24, s[92:95], s57 offen")
        if "lin2" in XF:
            srd(a, 76, 16, 17, 640*1728*2)
            a("buffer_load_dword v17, v24, s[76:79], s57 offen")
            srd(a, 92, 10, 11, 640*640*2)
            a("buffer_load_dword v19, v24, s[92:95], s57 offen")
        a("s_mov_b64 exec, -1")
    a("s_cmp_eq_u32 s68, 1")
    a("s_cbranch_scc1 K1_T1")
    a("s_cmp_eq_u32 s68, 2")
    a("s_cbranch_scc1 K1_T2")
    a("s_cmp_eq_u32 s68, 3")
    a("s_cbranch_scc1 K1_T3")
    for ro in range(4):
        a.label(f"K1_T{ro}")
        k1_body(a, ro)
        a("s_branch K1_END")
    a.label("K1_END")
    a("s_endpgm")
    return a

def dma_stage(ro, st):
    imms, pitch, U, nsl = ROLES[ro]
    G = []
    for jj in range(nsl):
        g = []
        maybe = jj >= U - 7*nsl
        if maybe:
            g += [f"s_cmp_gt_i32 s75, {jj}", "s_cselect_b64 exec, -1, 1", f"s_cselect_b32 s57, s73, {SDUMP - st*STAGE - 1024*jj}", f"s_add_u32 m0, s57, {st*STAGE + 1024*jj}"]
        else:
            g += [f"s_add_u32 m0, s73, {st*STAGE + 1024*jj}"]
        g.append(f"buffer_load_dwordx4 v{VB+jj}, s[28:31], s61 offen lds")
        if maybe: g.append("s_mov_b64 exec, -1")
        G.append(g)
    G[-1].append("s_add_u32 s61, s61, s56")
    for jj in range(2):
        G.append([f"s_add_u32 m0, s74, {st*STAGE + 1024*jj}", f"buffer_load_dwordx4 v{9+jj}, s[24:27], s60 offen lds"])
    G[-1].append("s_add_u32 s60, s60, 128")
    return G

def touch(ro, s):
    P = {0: 6, 1: 6, 2: 4, 3: 3}[ro]
    return [f"s_mov_b64 exec, {(1 << P) - 1}", f"s_mul_i32 s57, s56, {s}", "T:buffer_load_dword v62, v11, s[28:31], s57 offen",
            "s_mov_b64 exec, 15", f"T:buffer_load_dword v63, v12, s[24:27], 0 offen offset:{128*s}", "s_mov_b64 exec, -1"]

def frag_reads(ro, A, B, st, ks2):
    imms, pitch, U, nsl = ROLES[ro]
    A0, A1, B0, B1 = ASET[st]
    va = A1 if ks2 else A0
    off = 32 * pitch * ks2
    L = [f"ds_read_b128 v[{A}:{A+3}], v{va}", f"ds_read_b128 v[{A+4}:{A+7}], v{va} offset:2048"]
    for t, im in enumerate(imms):
        L.append(f"ds_read_b64_tr_b16 v[{B+4*t}:{B+4*t+1}], v{B0} offset:{off+im}")
        L.append(f"ds_read_b64_tr_b16 v[{B+4*t+2}:{B+4*t+3}], v{B1} offset:{off+im}")
    return L

def k1_body(a, ro):
    imms, pitch, U, nsl = ROLES[ro]
    NT = len(imms)
    vm = []
    def em(x, tag):
        if x.startswith("T:"):
            a(x[2:]); vm.append("t")
        elif x.startswith("buffer_load"):
            a(x); vm.append(tag)
        else: emit(a, x)
    def waitv(tag, lg=False):
        last = max(i for i, x in enumerate(vm) if x == tag)
        n = min(63, len(vm) - 1 - last)
        a(f"s_waitcnt vmcnt({n})" + (" lgkmcnt(0)" if lg else ""))
    em("buffer_load_dwordx4 v[128:131], v14, s[24:27], 0 offen", "sl")
    em("buffer_load_dwordx4 v[132:135], v14, s[24:27], 0 offen offset:16", "sl")
    a("s_mov_b32 s57, 0")
    for i in range(5):
        em(f"buffer_load_dwordx2 v[{136+2*i}:{137+2*i}], v15, s[28:31], s57 offen", "sl")
        if i < 4: a("s_add_u32 s57, s57, s63")
    for st in range(NS):
        for g in dma_stage(ro, st):
            for x in g: em(x, st)
        if st < NS - 1 and "nobar" not in XF: a("s_barrier")
        if st == NS - 1:
            waitv("sl")
            for i in range(5):
                for d in range(2):
                    a(f"v_lshlrev_b32 v{148+4*i+2*d}, 16, v{136+2*i+d}")
                    a(f"v_and_b32 v{149+4*i+2*d}, 0xffff0000, v{136+2*i+d}")
            for i in range(1, 5):
                a(f"v_pk_add_f32 v[148:149], v[148:149], v[{148+4*i}:{149+4*i}]")
                a(f"v_pk_add_f32 v[150:151], v[150:151], v[{150+4*i}:{151+4*i}]")
            a("v_lshlrev_b32 v24, 4, v0")
            a(f"v_add_u32 v24, {PART}, v24")
            a("ds_write_b128 v24, v[148:151]")
            for d in range(8):
                a(f"v_lshlrev_b32 v{168+2*d}, 16, v{128+d}")
                a(f"v_and_b32 v{169+2*d}, 0xffff0000, v{128+d}")
            a("v_pk_add_f32 v[184:185], v[168:169], v[170:171]")
            for d in range(2, 8): a(f"v_pk_add_f32 v[184:185], v[184:185], v[{168+2*d}:{169+2*d}]")
            a("v_add_f32 v184, v184, v185")
            def xreduce(v):
                for sh in (1, 2, 4, 8): a(f"v_add_f32_dpp v{v}, v{v}, v{v} row_shr:{sh} row_mask:0xf bank_mask:0xf bound_ctrl:0")
                a(f"v_add_f32_dpp v{v}, v{v}, v{v} row_bcast:15 row_mask:0xa bank_mask:0xf")
                a(f"v_add_f32_dpp v{v}, v{v}, v{v} row_bcast:31 row_mask:0xc bank_mask:0xf")
            xreduce(184)
            a("v_readlane_b32 s57, v184, 63")
            a("v_mov_b32 v186, 0x3acccccd")
            a("v_mul_f32 v186, s57, v186")
            a("v_mov_b32 v184, 0")
            a("v_mov_b32 v185, 0")
            a("s_mov_b32 exec_hi, 0xff")
            for d in range(8):
                a(f"v_pk_add_f32 v[{168+2*d}:{169+2*d}], v[{168+2*d}:{169+2*d}], v[186:187] op_sel_hi:[1,0] neg_lo:[0,1] neg_hi:[0,1]")
            for d in range(8):
                a(f"v_pk_fma_f32 v[184:185], v[{168+2*d}:{169+2*d}], v[{168+2*d}:{169+2*d}], v[184:185]")
            a("s_mov_b64 exec, -1")
            a("v_add_f32 v184, v184, v185")
            xreduce(184)
            a("v_readlane_b32 s57, v184, 63")
            a("v_mov_b32 v187, 0x3acccccd")
            a("v_mul_f32 v187, s57, v187")
            bf16_round(a, 186)
            bf16_round(a, 187)
            a("v_add_f32 v187, 0x3727c5ac, v187")
            bf16_round(a, 187)
            a("v_sqrt_f32 v187, v187")
            bf16_round(a, 187)
            a("v_rcp_f32 v187, v187")
            a("s_lshl_b32 s57, s49, 3")
            a(f"s_add_u32 s57, s57, {ST_OFF}")
            a("v_mov_b32 v24, 0")
            a("s_mov_b64 exec, 1")
            a("buffer_store_dwordx2 v[186:187], v24, s[32:35], s57 offen sc0 sc1")
            vm.append("ss")
            a("s_mov_b64 exec, -1")
    if ro < 2:
        em("buffer_load_dwordx4 v[252:255], v16, s[36:39], 0 offen", "aux")
    for sl in range(NS, min(10, TD)):
        for x in touch(ro, sl): em(x, "t")
    stamp(a, 2)
    waitv(0, True)
    a("s_barrier")
    stamp(a, 3)
    a("s_cmp_eq_u32 s48, 7")
    a(f"s_cbranch_scc0 K1_NCP{ro}")
    a("v_lshlrev_b32 v24, 4, v1")
    a(f"v_add_u32 v25, {PART}, v24")
    for k in range(8): a(f"ds_read_b128 v[{168+4*k}:{171+4*k}], v25 offset:{1024*k}")
    a("s_waitcnt lgkmcnt(0)")
    for k in range(1, 8):
        a(f"v_pk_add_f32 v[168:169], v[168:169], v[{168+4*k}:{169+4*k}]")
        a(f"v_pk_add_f32 v[170:171], v[170:171], v[{170+4*k}:{171+4*k}]")
    a("s_lshl_b32 s57, s71, 4")
    a("s_add_u32 s57, s57, s51")
    a("s_lshl_b32 s57, s57, 10")
    a(f"s_add_u32 s57, s57, {CP_OFF}")
    a("buffer_store_dwordx4 v[168:171], v24, s[32:35], s57 offen sc0 sc1")
    a("s_nop 1")
    a.label(f"K1_NCP{ro}")
    if ro == 0:
        a("s_or_b32 s57, s51, s48")
        a("s_cmp_eq_u32 s57, 0")
        a("s_cbranch_scc0 K1_NOFLAG")
        a("s_lshl_b32 s57, s52, 2")
        a("v_mov_b32 v24, s57")
        a("v_mov_b32 v25, 1")
        a("s_mov_b64 exec, 1")
        a("buffer_atomic_add v25, v24, s[44:47], 0 offen")
        a("s_mov_b64 exec, -1")
        a.label("K1_NOFLAG")
    def hooks(s):
        L = []
        if s == 5:
            L += ["s_cmp_eq_u32 s48, 0", f"s_cbranch_scc0 K1_NSG{ro}", "s_lshl_b32 s57, s51, 2", "s_add_u32 s57, s57, 64", "v_mov_b32 v24, s57",
                  "s_lshl_b32 s57, s71, 2", "s_add_u32 s57, s57, 128", "v_mov_b32 v26, s57", "v_mov_b32 v25, 1", "s_mov_b64 exec, 1",
                  "buffer_atomic_add v25, v24, s[44:47], 0 offen", "buffer_atomic_add v25, v26, s[44:47], 0 offen", "s_mov_b64 exec, -1", f"LABEL K1_NSG{ro}"]
        if s == 15:
            L += ["s_lshl_b32 s57, s51, 2", "s_add_u32 s57, s57, 64", "v_mov_b32 v56, s57", "s_lshl_b32 s57, s71, 2", "s_add_u32 s57, s57, 128", "v_mov_b32 v57, s57",
                  "buffer_load_dword v58, v56, s[44:47], 0 offen sc0 sc1", "buffer_load_dword v59, v57, s[44:47], 0 offen sc0 sc1"]
        if s == 17:
            L += ["s_mov_b32 s60, 0", "s_waitcnt vmcnt(0)", f"LABEL K1_PS{ro}", "v_readfirstlane_b32 s57, v58", "v_readfirstlane_b32 s61, v59", "s_min_u32 s57, s57, s61",
                  "s_cmp_ge_u32 s57, 16", f"s_cbranch_scc1 K1_PSD{ro}", "s_add_u32 s60, s60, 1", "s_cmp_ge_u32 s60, 100000", f"s_cbranch_scc1 K1_PSD{ro}", "s_sleep 8",
                  "buffer_load_dword v58, v56, s[44:47], 0 offen sc0 sc1", "buffer_load_dword v59, v57, s[44:47], 0 offen sc0 sc1", "s_waitcnt vmcnt(0)", f"s_branch K1_PS{ro}", f"LABEL K1_PSD{ro}"]
            L += ["s_lshl_b32 s57, s51, 2", "s_add_u32 s57, s57, s54", "s_lshl_b32 s57, s57, 8", f"s_add_u32 s57, s57, {ST_OFF}", "v_lshlrev_b32 v24, 3, v2",
                  "buffer_load_dwordx2 v[20:21], v24, s[32:35], s57 offen sc0 sc1", "buffer_load_dwordx2 v[22:23], v24, s[32:35], s57 offen offset:128 sc0 sc1"]
            L += ["s_cmp_lt_u32 s48, 4", f"s_cbranch_scc0 K1_NCL{ro}", "s_lshl_b32 s57, s71, 14", f"s_add_u32 s57, s57, {CP_OFF}", "s_lshl_b32 s61, s48, 2", "s_add_u32 s57, s57, s61",
                  "v_lshlrev_b32 v24, 4, v1"]
            for p in range(16):
                L += [f"buffer_load_dword v{40+p}, v24, s[32:35], s57 offen offset:{1024*(p & 3)} sc0 sc1"]
                if p & 3 == 3: L += ["s_add_u32 s57, s57, 4096"]
            L += [f"LABEL K1_NCL{ro}"]
        return L
    for s in frag_reads(ro, XA, XB, 0, 0): a(s)
    for s in range(20):
        i = s >> 1; odd = s & 1
        CA, CB, NA, NB = (XA, XB, YA, YB) if not odd else (YA, YB, XA, XB)
        dma = []
        if not odd:
            a("s_waitcnt lgkmcnt(0)")
            rd = frag_reads(ro, NA, NB, i % NS, 1)
            if TD and NS <= i + TD < 10: dma = [touch(ro, i + TD)]
            tag = "t"
        else:
            if i < 9:
                if "nodma" in XF and i + 1 >= NS: a("s_waitcnt lgkmcnt(0)")
                else: waitv(i + 1, True)
                a("s_barrier")
                rd = frag_reads(ro, NA, NB, (i + 1) % NS, 0)
            else:
                a("s_waitcnt lgkmcnt(0)")
                a("s_barrier")
                rd = []
            if i + NS < 10 and "nodma" not in XF: dma = dma_stage(ro, i % NS)
            tag = i + NS
        if "nord" in XF: rd = []
        rd = [[x] for x in rd]
        side = []
        k = 0
        step = max(1, len(rd) // (len(dma) + 1)) if dma else len(rd)
        for d in dma:
            side += rd[k:k+step]; k += step; side.append(d)
        side += rd[k:]
        mf = []
        for t in range(NT):
            for rt in range(2):
                ac = ACC + 8*t + 4*rt
                c = "0" if s == 0 else f"v[{ac}:{ac+3}]"
                mf.append(f"v_mfma_f32_16x16x32_bf16 v[{ac}:{ac+3}], v[{CB+4*t}:{CB+4*t+3}], v[{CA+4*rt}:{CA+4*rt+3}], {c}")
        st_blk = []
        def stat_m(kind):
            L = []
            for rt in range(2):
                ac = DS + 4*rt
                c = "0" if s == 0 else f"v[{ac}:{ac+3}]"
                A_ = ONES if kind == 0 else CA + 4*rt
                L.append(f"v_mfma_f32_16x16x32_bf16 v[{ac}:{ac+3}], v[{A_}:{A_+3}], v[{CA+4*rt}:{CA+4*rt+3}], {c}")
            return L
        if False:
            st_blk = ["s_cmp_eq_u32 s55, 0", f"s_cbranch_scc0 K1_SG{ro}_{s}"] + stat_m(0) + [f"s_branch K1_SE{ro}_{s}", f"LABEL K1_SG{ro}_{s}"] + stat_m(1) + [f"LABEL K1_SE{ro}_{s}"]
        cs = []
        for q in range(4):
            tl = [t for t in range(NT) if t % 4 == q]
            if q < 3: cs += [f"s_cmp_eq_u32 s54, {q}", f"s_cbranch_scc0 K1_CS{ro}_{s}_{q+1}"]
            for k2, t in enumerate(tl):
                ac = DC + 4*k2
                c = "0" if s == 0 else f"v[{ac}:{ac+3}]"
                cs.append(f"v_mfma_f32_16x16x32_bf16 v[{ac}:{ac+3}], v[{CB+4*t}:{CB+4*t+3}], v[{ONES}:{ONES+3}], {c}")
            if q < 3: cs += [f"s_branch K1_CSE{ro}_{s}", f"LABEL K1_CS{ro}_{s}_{q+1}"]
        cs.append(f"LABEL K1_CSE{ro}_{s}")
        nfirst = len(mf) - 3
        per = max(1, -(-len(side) // max(1, nfirst - 1)))
        si = 0
        for k, m in enumerate(mf):
            a(m)
            if k < nfirst:
                for _ in range(per):
                    if si < len(side):
                        for x in side[si]: em(x, tag)
                        si += 1
            if k == nfirst - 1:
                while si < len(side):
                    for x in side[si]: em(x, tag)
                    si += 1
                for x in hooks(s): emit(a, x)
    stamp(a, 4)
    if ro >= 2: w2f_issue(a)
    else:
        a("s_lshl_b32 s57, s52, 2")
        a("v_mov_b32 v60, s57")
        a("buffer_load_dword v61, v60, s[44:47], 0 offen sc0 sc1")
    a("s_waitcnt vmcnt(%d)" % (3 if ro >= 2 else 1))
    a("s_cmp_lt_u32 s48, 4")
    a(f"s_cbranch_scc0 K1_NCS{ro}")
    for p in range(0, 16, 2):
        if p: a(f"v_pk_add_f32 v[40:41], v[40:41], v[{40+p}:{41+p}]")
    a("v_add_f32 v40, v40, v41")
    a("s_lshl_b32 s57, s48, 2")
    a(f"s_add_u32 s57, s57, {CSUM}")
    a("v_lshlrev_b32 v24, 4, v1")
    a("v_add_u32 v24, s57, v24")
    a("ds_write_b32 v24, v40")
    if ro < 2:
        a("v_lshlrev_b32 v29, 4, v0" if False else "v_lshlrev_b32 v25, 4, v0")
        a(f"v_add_u32 v25, {WPHI}, v25")
        a("ds_write_b128 v25, v[252:255]")
    a.label(f"K1_NCS{ro}")
    a("s_waitcnt lgkmcnt(0)")
    a("s_barrier")
    CR = 128
    if ro < 2:
        a("v_mul_u32_u24 v26, 80, v3")
        a(f"v_add_u32 v26, {CSUM}, v26")
        for t, im in enumerate(imms):
            seg, j = im // 160, (im % 160) // 8
            a(f"ds_read_b128 v[{CR+4*t}:{CR+4*t+3}], v26 offset:{16*(20*seg + j)}")
    else:
        a("v_lshlrev_b32 v26, 4, v3")
        a(f"s_mul_i32 s57, s55, {64*NT}")
        a(f"s_add_u32 s57, s57, {CSUM}")
        a("v_add_u32 v26, s57, v26")
        for t in range(NT):
            a(f"ds_read_b128 v[{CR+4*t}:{CR+4*t+3}], v26 offset:{64*t}")
    a("v_mov_b32 v28, v20")
    a("v_mov_b32 v32, v21")
    a("v_mov_b32 v30, v22")
    a("v_mov_b32 v34, v23")
    a("s_waitcnt lgkmcnt(0)")
    for t in range(NT):
        for rt in range(2):
            for h in range(2):
                ac = ACC + 8*t + 4*rt + 2*h
                a(f"v_pk_fma_f32 v[{ac}:{ac+1}], v[{CR+4*t+2*h}:{CR+4*t+2*h+1}], v[{28+2*rt}:{29+2*rt}], v[{ac}:{ac+1}] op_sel_hi:[1,0,1] neg_lo:[0,1,0] neg_hi:[0,1,0]")
    for t in range(NT):
        for rt in range(2):
            for h in range(2):
                ac = ACC + 8*t + 4*rt + 2*h
                a(f"v_pk_mul_f32 v[{ac}:{ac+1}], v[{ac}:{ac+1}], v[{32+2*rt}:{33+2*rt}] op_sel_hi:[1,0]")
    stamp(a, 5)
    if ro < 2: k1_epi_qkv(a, ro)
    else: k1_epi_h(a, ro)
    stamp(a, 6)
    if DIAG: a("s_waitcnt vmcnt(0)")
    stamp(a, 7)
    dump_stamps(a, 8, 0, 22, 23)

def softmax(a, P, E, O, tmp=40):
    t0, t2, t4, t6 = tmp, tmp + 2, tmp + 4, tmp + 6
    a(f"v_max3_f32 v{t0}, v{P}, v{P+1}, v{P+2}")
    a(f"v_min3_f32 v{t2}, v{P}, v{P+1}, v{P+2}")
    for i in range(3, 19, 2):
        a(f"v_max3_f32 v{t0}, v{t0}, v{P+i}, v{P+i+1}")
        a(f"v_min3_f32 v{t2}, v{t2}, v{P+i}, v{P+i+1}")
    a(f"v_max_f32 v{t0}, v{t0}, v{P+19}")
    a(f"v_min_f32 v{t2}, v{t2}, v{P+19}")
    a(f"v_mul_f32 v{t0}, s56, v{t0}")
    a(f"v_mul_f32 v{t2}, s56, v{t2}")
    for i in range(0, 20, 2):
        a(f"v_pk_fma_f32 v[{E+i}:{E+i+1}], v[{P+i}:{P+i+1}], s[56:57], v[{t0}:{t0+1}] op_sel_hi:[1,0,0] neg_lo:[0,0,1] neg_hi:[0,0,1]")
        a(f"v_pk_fma_f32 v[{P+i}:{P+i+1}], v[{P+i}:{P+i+1}], s[56:57], v[{t2}:{t2+1}] op_sel_hi:[1,0,0] neg_lo:[1,0,0] neg_hi:[1,0,0]")
    for i in range(20):
        a(f"v_exp_f32 v{E+i}, v{E+i}")
        a(f"v_exp_f32 v{P+i}, v{P+i}")
    a(f"v_pk_add_f32 v[{t4}:{t4+1}], v[{E}:{E+1}], v[{E+2}:{E+3}]")
    a(f"v_pk_add_f32 v[{t6}:{t6+1}], v[{P}:{P+1}], v[{P+2}:{P+3}]")
    for i in range(4, 20, 2):
        a(f"v_pk_add_f32 v[{t4}:{t4+1}], v[{t4}:{t4+1}], v[{E+i}:{E+i+1}]")
        a(f"v_pk_add_f32 v[{t6}:{t6+1}], v[{t6}:{t6+1}], v[{P+i}:{P+i+1}]")
    a(f"v_add_f32 v{t4}, v{t4}, v{t4+1}")
    a(f"v_add_f32 v{t6}, v{t6}, v{t6+1}")
    a(f"v_rcp_f32 v{t4}, v{t4}")
    a(f"v_rcp_f32 v{t6}, v{t6}")
    for i in range(0, 20, 2):
        a(f"v_pk_mul_f32 v[{E+i}:{E+i+1}], v[{E+i}:{E+i+1}], v[{t4}:{t4+1}] op_sel_hi:[1,0]")
        a(f"v_pk_mul_f32 v[{P+i}:{P+i+1}], v[{P+i}:{P+i+1}], v[{t6}:{t6+1}] op_sel_hi:[1,0]")
    for i in range(10):
        a(f"v_cvt_pk_bf16_f32 v{O+i}, v{E+2*i}, v{E+2*i+1}")
        a(f"v_cvt_pk_bf16_f32 v{O+10+i}, v{P+2*i}, v{P+2*i+1}")

def k1_epi_qkv(a, ch):
    NV = 3 if ch == 0 else 2
    v0j = 0 if ch == 0 else 3
    F0 = 160; VP = 184; WB = 196
    for rt in range(2):
        for t in range(5):
            ac = ACC + 8*t + 4*rt
            a(f"v_cvt_pk_bf16_f32 v{F0+12*rt+2*t}, v{ac}, v{ac+1}")
            a(f"v_cvt_pk_bf16_f32 v{F0+12*rt+2*t+1}, v{ac+2}, v{ac+3}")
        for t in range(NV):
            ac = ACC + 8*(5+t) + 4*rt
            a(f"v_cvt_pk_bf16_f32 v{VP+6*rt+2*t}, v{ac}, v{ac+1}")
            a(f"v_cvt_pk_bf16_f32 v{VP+6*rt+2*t+1}, v{ac+2}, v{ac+3}")
    for z in (F0+10, F0+11, F0+22, F0+23, WB+10, WB+11, WB+22, WB+23): a(f"v_mov_b32 v{z}, 0")
    a("v_lshlrev_b32 v48, 4, v1")
    a("s_mul_i32 s57, s54, 3072")
    a(f"s_add_u32 s57, s57, {KX}")
    a("v_add_u32 v49, s57, v48")
    if ch == 0:
        for m in range(3):
            a(f"ds_write_b128 v49, v[{F0+12+4*m}:{F0+12+4*m+3}] offset:{1024*m}")
    else:
        a("s_lshl_b32 s58, s51, 3")
        a("s_lshl_b32 s59, s54, 1")
        a("s_add_u32 s58, s58, s59")
        a("s_lshl_b32 s58, s58, 3")
        a("s_add_u32 s58, s58, s52")
        a("s_mul_i32 s58, s58, 3072")
        a(f"s_add_u32 s58, s58, {QF_OFF}")
        a(f"s_add_u32 s59, s58, {8*3072}")
        for rt in range(2):
            for m in range(3):
                a(f"buffer_store_dwordx4 v[{F0+12*rt+4*m}:{F0+12*rt+4*m+3}], v48, s[32:35], s{58+rt} offen offset:{1024*m}{STM}")
    a("s_lshl_b32 s57, s54, 5")
    a("v_add_u32 v24, s57, v2")
    a(f"v_mul_u32_u24 v25, {VI_P}, v24")
    a("v_mul_u32_u24 v26, 48, v3")
    a("v_add_u32 v25, v25, v26")
    a(f"v_add_u32 v25, {VI}, v25")
    for rt in range(2):
        for t in range(NV):
            a(f"ds_write_b64 v25, v[{VP+6*rt+2*t}:{VP+6*rt+2*t+1}] offset:{rt*16*VI_P + 8*(v0j+t)}")
    if ch == 1:
        a("v_mov_b32 v32, 0x00003f80")
        a("v_mov_b32 v33, 0")
        for rt in range(2):
            a(f"ds_write_b64 v25, v[32:33] offset:{rt*16*VI_P + 40}")
    wphi_addr(a, WPHI, 34)
    a("s_waitcnt lgkmcnt(0)")
    a("s_barrier")
    if ch == 1:
        for m in range(3):
            a(f"ds_read_b128 v[{F0+4*m}:{F0+4*m+3}], v49 offset:{1024*m}")
        a("s_branch K1_QC")
        return
    a.label("K1_QC")
    ch = 2
    pq_mfma(a, 34, WB, F0, 64)
    a(f"s_mov_b32 s56, {LOG2E}")
    a(f"s_mov_b32 s57, {LOG2E}")
    O = 140
    softmax(a, 64, 104, O)
    a("s_lshl_b32 s57, s55, 4")
    a("v_add_u32 v48, s57, v24")
    a(f"v_mul_u32_u24 v48, {PHK_P}, v48")
    a("v_mul_u32_u24 v49, 80, v3")
    a("v_add_u32 v48, v48, v49")
    for m in range(5):
        a(f"ds_write_b128 v48, v[{O+4*m}:{O+4*m+3}] offset:{PHK + 16*m}")
    a("s_waitcnt lgkmcnt(0)")
    a("s_barrier")
    a("s_lshr_b32 s58, s48, 1")
    a("s_and_b32 s59, s48, 1")
    a("v_lshl_add_u32 v28, v3, 2, v26")
    a(f"v_mul_u32_u24 v29, {PHK_P}, v28")
    a("v_lshl_add_u32 v29, v27, 3, v29")
    a("s_mul_i32 s57, s58, 80")
    a("v_add_u32 v29, s57, v29")
    a(f"v_mul_u32_u24 v30, {VI_P}, v28")
    a("v_lshl_add_u32 v30, v27, 3, v30")
    a("s_mul_i32 s57, s58, 48")
    a("s_lshl_b32 s60, s59, 5")
    a("s_add_u32 s57, s57, s60")
    a(f"s_add_u32 s57, s57, {VI}")
    a("v_add_u32 v30, s57, v30")
    RB = 168
    for kk in range(4):
        B = RB + 16*kk
        for hf in range(2):
            a(f"ds_read_b64_tr_b16 v[{B+2*hf}:{B+2*hf+1}], v30 offset:{(32*kk+16*hf)*VI_P}")
        for ft in range(3):
            for hf in range(2):
                a(f"ds_read_b64_tr_b16 v[{B+4+4*ft+2*hf}:{B+4+4*ft+2*hf+1}], v29 offset:{(32*kk+16*hf)*PHK_P + 32*ft}")
    a("s_lshl_b32 s57, s59, 4")
    a("v_add_u32 v28, s57, v2")
    a("v_lshrrev_b32 v29, 2, v28")
    a("v_mul_u32_u24 v29, 2560, v29")
    a("v_lshl_add_u32 v29, v3, 8, v29")
    a("v_and_b32 v31, 3, v28")
    a("v_lshl_add_u32 v29, v31, 4, v29")
    a("s_lshl_b32 s57, s58, 6")
    a(f"s_add_u32 s57, s57, {KVS}")
    a("v_add_u32 v35, s57, v29")
    a("v_lshlrev_b32 v30, 4, v1")
    a(f"v_add_u32 v30, {KVDUMP}, v30")
    a("v_cmp_gt_u32 vcc, 21, v28")
    a("v_cndmask_b32 v35, v30, v35, vcc")
    a("v_cmp_gt_u32 vcc, 2, v3")
    a("v_cndmask_b32 v36, v30, v35, vcc")
    for kk in range(4):
        B = RB + 16*kk
        a(f"s_waitcnt lgkmcnt({min(15, 8*(3-kk))})")
        for ft in range(3):
            D = 64 + 4*ft
            c = "0" if kk == 0 else f"v[{D}:{D+3}]"
            a(f"v_mfma_f32_16x16x32_bf16 v[{D}:{D+3}], v[{B+4+4*ft}:{B+4+4*ft+3}], v[{B}:{B+3}], {c}")
    a("ds_write_b128 v35, v[64:67]")
    a("ds_write_b128 v35, v[68:71] offset:1024")
    a("ds_write_b128 v36, v[72:75] offset:2048")
    a("s_mov_b32 s60, 0")
    a("s_waitcnt vmcnt(0)")
    a.label(f"K1_POLL{ch}")
    a("v_readfirstlane_b32 s57, v61")
    a("s_cmp_lg_u32 s57, 0")
    a(f"s_cbranch_scc1 K1_POLLDONE{ch}")
    a("s_add_u32 s60, s60, 1")
    a("s_cmp_ge_u32 s60, 100000")
    a(f"s_cbranch_scc1 K1_POLLDONE{ch}")
    a("buffer_load_dword v61, v60, s[44:47], 0 offen sc0 sc1")
    a("s_waitcnt vmcnt(0)")
    a(f"s_branch K1_POLL{ch}")
    a.label(f"K1_POLLDONE{ch}")
    a("s_waitcnt lgkmcnt(0)")
    a("s_barrier")
    a("v_lshlrev_b32 v24, 2, v0")
    a(f"v_add_u32 v25, {KVS}, v24")
    for it in range(8):
        a(f"ds_read_b32 v{28+it}, v25 offset:{2048*it}")
    a("v_lshrrev_b32 v40, 4, v24")
    a("v_and_b32 v40, 3, v40")
    a(f"v_mov_b32 v41, {OOB}")
    a("v_cmp_eq_u32 vcc, 0, v40")
    a("v_cndmask_b32 v42, v41, v24, vcc")
    a("v_cmp_gt_u32 vcc, 512, v24")
    a("v_cndmask_b32 v43, v42, v24, vcc")
    for it in range(8):
        vo = 24 if it < 6 else (43 if it == 6 else 42)
        a(f"s_waitcnt lgkmcnt({7-it})")
        a(f"s_mov_b32 s57, {2048*it}")
        a(f"buffer_atomic_add_f32 v{28+it}, v{vo}, s[40:43], s57 offen")

def wphi_addr(a, base, R):
    a("v_lshrrev_b32 v26, 2, v1")
    a("v_and_b32 v26, 3, v26")
    a("v_and_b32 v27, 3, v1")
    a("v_mul_u32_u24 v28, 800, v3")
    a("v_mul_u32_u24 v29, 40, v26")
    a("v_add_u32 v28, v28, v29")
    a(f"v_add_u32 v28, {base}, v28")
    a(f"v_mov_b32 v29, {base+3200}")
    a("v_cmp_eq_u32 vcc, v27, v3")
    for i in range(5):
        a(f"v_add_u32 v30, {160*i}, v28")
        a(f"v_cndmask_b32 v{R+i}, v29, v30, vcc")

def pq_mfma(a, R, WB, F, D0):
    def wread(j, base):
        for i in range(5):
            a(f"ds_read_b64_tr_b16 v[{base+2*i}:{base+2*i+1}], v{R+i} offset:{8*j}")
    wread(0, WB)
    for j in range(5):
        base = WB + 12*(j & 1)
        if j < 4: wread(j+1, WB + 12*((j+1) & 1))
        a(f"s_waitcnt lgkmcnt({5 if j < 4 else 0})")
        D = D0 + 4*j
        a(f"v_mfma_f32_16x16x32_bf16 v[{D}:{D+3}], v[{base}:{base+3}], v[{F}:{F+3}], 0")
        a(f"v_mfma_f32_16x16x32_bf16 v[{D}:{D+3}], v[{base+4}:{base+7}], v[{F+4}:{F+7}], v[{D}:{D+3}]")
        a(f"v_mfma_f32_16x16x32_bf16 v[{D}:{D+3}], v[{base+8}:{base+11}], v[{F+8}:{F+11}], v[{D}:{D+3}]")

def w2f_issue(a):
    a("s_lshl_b32 s69, s51, 3")
    a("s_add_u32 s69, s69, s52")
    a("s_lshl_b32 s57, s48, 2")
    a("v_add_u32 v24, s57, v3")
    a("v_lshrrev_b32 v25, 3, v24")
    a("v_and_b32 v26, 7, v24")
    a("v_lshrrev_b32 v27, 2, v26")
    a("v_lshlrev_b32 v27, 4, v27")
    a("v_lshl_add_u32 v27, v25, 2, v27")
    a("v_and_b32 v28, 3, v26")
    a("v_add_u32 v32, v27, v28")
    a("v_mul_u32_u24 v31, 20, v25")
    for n in range(3):
        a(f"s_add_u32 s61, s69, {128*n}")
        a("s_mul_i32 s62, s61, 205")
        a("s_lshr_b32 s70, s62, 10")
        a("s_mul_i32 s63, s70, 5")
        a("s_sub_u32 s63, s61, s63")
        a("s_lshl_b32 s71, s63, 8")
        a("s_cmp_ge_u32 s61, 370")
        a(f"s_cselect_b32 s71, {OOB}, s71")
        a("s_lshl_b32 s64, s70, 5")
        a("v_add_u32 v27, s64, v32")
        a("s_sub_u32 s64, s70, 54")
        a("s_max_i32 s64, s64, 0")
        a("s_mul_i32 s65, s64, 205")
        a("s_lshr_b32 s65, s65, 10")
        a("s_mul_i32 s62, s65, 5")
        a("s_sub_u32 s62, s64, s62")
        a("s_lshl_b32 s62, s62, 3")
        a("v_add_u32 v28, s62, v26")
        a("v_cmp_lt_u32 vcc, 19, v28")
        a("v_cndmask_b32 v30, 0, 60, vcc")
        a("v_add3_u32 v29, v28, v30, v31")
        a("s_mul_i32 s65, s65, 160")
        a("v_add_u32 v29, s65, v29")
        a("s_cmp_ge_u32 s70, 54")
        a("s_cselect_b32 s76, s10, s16")
        a("s_cselect_b32 s77, s11, s17")
        a(f"s_mov_b32 s78, {1728*640*2}")
        a(f"s_cselect_b32 s78, {640*640*2}, s78")
        a("s_mov_b32 s79, 0x00020000")
        a("s_cselect_b64 vcc, -1, 0")
        a("v_cndmask_b32 v27, v27, v29, vcc")
        a("v_mul_u32_u24 v27, 1280, v27")
        a("v_lshl_add_u32 v27, v2, 4, v27")
        a("s_lshl_b32 s57, s48, 10")
        a(f"s_add_u32 m0, s57, {W2S + 8192*n}")
        a("buffer_load_dwordx4 v27, s[76:79], s71 offen lds")

def k1_epi_h(a, ro):
    NP = 4 if ro == 2 else 3
    a(f"s_mov_b32 s56, {LOG2E}")
    a(f"s_mov_b32 s57, {LOG2E}")
    a("s_lshl_b32 s60, s51, 3")
    a("s_lshl_b32 s61, s54, 1")
    a("s_add_u32 s60, s60, s61")
    a("s_mul_i32 s60, s60, 54")
    a("s_mul_i32 s61, s52, 3")
    a("s_add_u32 s61, s61, 3")
    a("s_lshl_b32 s62, s52, 2")
    a("s_cmp_lt_u32 s52, 3")
    a("s_cselect_b32 s61, s62, s61")
    a("s_lshl_b32 s61, s61, 1")
    a("s_add_u32 s60, s60, s61")
    a(f"s_mul_i32 s61, s55, {NP}")
    a("s_add_u32 s60, s60, s61")
    a("s_lshl_b32 s60, s60, 10")
    a(f"s_add_u32 s61, s60, {54*1024}")
    a("v_lshlrev_b32 v44, 4, v1")
    for pi in range(NP):
        for rt in range(2):
            prs = [ACC + 8*(2*pi) + 4*rt, ACC + 8*(2*pi) + 4*rt + 2, ACC + 8*(2*pi+1) + 4*rt, ACC + 8*(2*pi+1) + 4*rt + 2]
            T = 128 + 8*((2*pi+rt) & 1)
            for i, v in enumerate(prs): a(f"v_pk_mul_f32 v[{T+2*i}:{T+2*i+1}], v[{v}:{v+1}], s[56:57] op_sel_hi:[1,0]")
            for i in range(8): a(f"v_exp_f32 v{T+i}, -v{T+i}")
            for i in range(4): a(f"v_pk_add_f32 v[{T+2*i}:{T+2*i+1}], v[{T+2*i}:{T+2*i+1}], 1.0 op_sel_hi:[1,0]")
            for i in range(8): a(f"v_rcp_f32 v{T+i}, v{T+i}")
            for i, v in enumerate(prs): a(f"v_pk_mul_f32 v[{v}:{v+1}], v[{v}:{v+1}], v[{T+2*i}:{T+2*i+1}]")
            O = 160 + 4*(2*pi+rt)
            for i, v in enumerate(prs): a(f"v_cvt_pk_bf16_f32 v{O+i}, v{v}, v{v+1}")
            a(f"buffer_store_dwordx4 v[{O}:{O+3}], v44, s[32:35], s{60+rt} offen offset:{1024*pi}{STM}")
    a(f"s_waitcnt vmcnt({2*NP})")
    a("s_barrier")
    a("v_lshrrev_b32 v26, 2, v1")
    a("v_and_b32 v26, 3, v26")
    a("v_and_b32 v27, 3, v1")
    a("v_lshl_add_u32 v28, v3, 3, v26")
    a("v_lshlrev_b32 v28, 8, v28")
    a("v_lshl_add_u32 v28, v27, 3, v28")
    a("s_lshl_b32 s61, s48, 5")
    a(f"s_add_u32 s61, s61, {W2S}")
    a("v_add_u32 v28, s61, v28")
    for n in range(3):
        a(f"ds_read_b64_tr_b16 v[{200+4*n}:{201+4*n}], v28 offset:{8192*n}")
        a(f"ds_read_b64_tr_b16 v[{202+4*n}:{203+4*n}], v28 offset:{8192*n+1024}")
    for n in range(3):
        a(f"s_add_u32 s61, s69, {128*n}")
        a("s_lshl_b32 s62, s61, 3")
        a("s_add_u32 s62, s62, s48")
        a("s_lshl_b32 s62, s62, 10")
        a(f"s_add_u32 s62, s62, {WF_OFF}")
        a("s_cmp_ge_u32 s61, 370")
        a(f"s_cselect_b32 s62, {OOB}, s62")
        a(f"s_waitcnt lgkmcnt({2*(2-n)})")
        a(f"buffer_store_dwordx4 v[{200+4*n}:{203+4*n}], v44, s[32:35], s62 offen{STM}")

K2_LDS = 160 * 1024
K2_WPHI = 0; K2_KVF = 4096; K2_ZERO = 16384
def gen_k2():
    a = Asm()
    a.raw(f".globl k2_kernel\n.p2align 8\n.type k2_kernel,@function\nk2_kernel:")
    a("s_cmp_ge_u32 s2, 256")
    a("s_cbranch_scc1 K2_END")
    stamp(a, 0)
    a("s_load_dwordx2 s[4:5], s[0:1], 0")
    a("s_load_dwordx2 s[8:9], s[0:1], 16")
    a("s_load_dwordx2 s[18:19], s[0:1], 56")
    a("s_load_dwordx4 s[20:23], s[0:1], 64")
    a("v_and_b32 v1, 63, v0")
    a("v_and_b32 v2, 15, v0")
    a("v_lshrrev_b32 v3, 4, v1")
    a("v_lshrrev_b32 v4, 6, v0")
    a("v_readfirstlane_b32 s48, v4")
    a("s_and_b32 s49, s2, 7")
    a("s_lshr_b32 s50, s2, 3")
    a("s_and_b32 s51, s49, 1")
    a("s_lshl_b32 s51, s51, 4")
    a("s_bfe_u32 s52, s49, 0x10001")
    a("s_lshl_b32 s52, s52, 3")
    a("s_add_u32 s51, s51, s52")
    a("s_and_b32 s52, s50, 7")
    a("s_add_u32 s51, s51, s52")
    a("s_lshr_b32 s52, s49, 2")
    a("s_lshl_b32 s52, s52, 2")
    a("s_lshr_b32 s53, s50, 3")
    a("s_add_u32 s52, s52, s53")
    a("s_mul_i32 s53, s48, 14")
    a("s_cmp_eq_u32 s48, 3")
    a("s_cselect_b32 s54, 1, 0")
    a("s_sub_u32 s53, s53, s54")
    a("v_lshlrev_b32 v5, 4, v1")
    a(f"v_mov_b32 v23, {OOB}")
    a(f"s_mul_i32 s55, s51, {4*54*1024}")
    for aa in range(4):
        a(f"s_add_u32 s56, s55, {aa*54*1024 + HF_OFF}")
        a(f"v_add_u32 v{6+aa}, s56, v5")
    a("s_mul_i32 s56, s52, 5120")
    a(f"s_add_u32 s56, s56, {WF_OFF}")
    a("v_add_u32 v10, s56, v5")
    a("v_add_u32 v11, 4096, v10")
    a(f"s_mul_i32 s55, s51, {4*20*1024}")
    a("s_mul_i32 s56, s48, 5120")
    a("s_add_u32 s55, s55, s56")
    for aa in range(4):
        a(f"s_add_u32 s56, s55, {aa*20*1024 + OF_OFF}")
        a(f"v_add_u32 v{12+aa}, s56, v5")
        a(f"v_add_u32 v{16+aa}, 4096, v{12+aa}")
    a("v_lshlrev_b32 v24, 9, v3")
    a("v_lshl_add_u32 v20, v2, 4, v24")
    a("v_lshrrev_b32 v24, 2, v2")
    a("v_lshlrev_b32 v25, 4, v2")
    a(f"v_add_u32 v25, {K2_KVF}, v25")
    a(f"v_mov_b32 v26, {K2_ZERO}")
    a("v_cmp_eq_u32 vcc, v24, v3")
    a("v_cndmask_b32 v116, v26, v25, vcc")
    a("v_lshlrev_b32 v24, 4, v0")
    a("s_mul_i32 s56, s52, 3200")
    a("v_add_u32 v25, s56, v24")
    a("v_cmp_gt_u32 vcc, 3200, v24")
    a("v_cndmask_b32 v21, v23, v25, vcc")
    a("s_lshl_b32 s55, s51, 6")
    a("s_lshl_b32 s56, s48, 4")
    a("s_add_u32 s55, s55, s56")
    a("v_lshrrev_b32 v36, 2, v1")
    a("v_and_b32 v37, 3, v1")
    a("v_lshrrev_b32 v38, 1, v36")
    a("v_xor_b32 v38, v38, v37")
    a("v_and_b32 v38, 3, v38")
    a("v_lshl_add_u32 v38, v36, 2, v38")
    a("v_lshlrev_b32 v38, 4, v38")
    a("v_lshrrev_b32 v39, 1, v2")
    a("v_xor_b32 v39, v39, v3")
    a("v_and_b32 v39, 3, v39")
    a("v_lshl_add_u32 v39, v2, 2, v39")
    a("v_lshlrev_b32 v39, 4, v39")
    a("s_mul_i32 s56, s48, 10240")
    a("v_add_u32 v39, s56, v39")
    a("v_add_u32 v4, 81920, v39")
    a("v_add_u32 v36, s55, v36")
    a("v_mul_u32_u24 v36, 1280, v36")
    a("v_lshl_add_u32 v36, v37, 3, v36")
    a("s_mul_i32 s56, s52, 160")
    a("v_add_u32 v22, s56, v36")
    a("s_waitcnt lgkmcnt(0)")
    srd(a, 24, 4, 5, 2621440)
    srd(a, 28, 18, 19, 2621440)
    srd(a, 32, 22, 23, WS_USED)
    srd(a, 36, 8, 9, 25600)
    srd(a, 44, 20, 21, 256)
    stamp(a, 1)
    ACF, ACS, OF, XP = 0, 80, 40, 246
    FSL = [("v", 40), ("a", 160), ("a", 196), ("v", 120), ("v", 156), ("v", 192), ("v", 76),
           ("v", 40), ("a", 160), ("a", 196), ("v", 120), ("v", 156), ("v", 192), ("a", 160)]
    WSL = [("a", 196), ("a", 216), ("v", 120), ("v", 140), ("v", 160)]
    vm = []
    def ld(gid, text):
        a(text); vm.append(gid)
    def R(c, b, n=4): return f"{c}[{b}:{b+n-1}]"
    def issue(g):
        if g < 14:
            c, P = FSL[g]
            if g == 0:
                a("s_lshl_b32 s60, s53, 10")
                a("s_mul_i32 s61, s53, 40960")
            else:
                a("s_add_u32 s60, s60, 1024")
                a("s_add_u32 s61, s61, 40960")
            if g == 13:
                a("s_cmp_ge_u32 s48, 2")
                a(f"s_cselect_b32 s60, {OOB}, s60")
                a(f"s_cselect_b32 s61, {OOB}, s61")
            for t in range(4): ld(g, f"buffer_load_dwordx4 {R(c, P+16+4*t)}, v10, s[32:35], s61 offen offset:{1024*t}")
            ld(g, f"buffer_load_dwordx4 {R(c, P+32)}, v11, s[32:35], s61 offen")
            for aa in range(4): ld(g, f"buffer_load_dwordx4 {R(c, P+4*aa)}, v{6+aa}, s[32:35], s60 offen")
        elif g < 19:
            m = g - 14
            c, P = WSL[m]
            if m == 0:
                a("s_mul_i32 s65, s48, 5")
                a("s_add_u32 s65, s65, 54")
                a("s_mul_i32 s65, s65, 40960")
            else:
                a("s_add_u32 s65, s65, 40960")
            for t in range(4): ld(g, f"buffer_load_dwordx4 {R(c, P+4*t)}, v10, s[32:35], s65 offen offset:{1024*t}")
            ld(g, f"buffer_load_dwordx4 {R(c, P+16)}, v11, s[32:35], s65 offen")
            if m == 3:
                for t in range(5): ld(99, f"buffer_load_dwordx2 v[{XP+2*t}:{XP+1+2*t}], v22, s[24:27], 0 offen offset:{32*t}")
        else:
            aa = g - 20
            for m in range(4): ld(g, f"buffer_load_dwordx4 v[{OF+20*aa+4*m}:{OF+20*aa+4*m+3}], v{12+aa}, s[32:35], 0 offen offset:{1024*m} sc0 sc1")
            ld(g, f"buffer_load_dwordx4 v[{OF+20*aa+16}:{OF+20*aa+19}], v{16+aa}, s[32:35], 0 offen sc0 sc1")
    class Rec:
        def __init__(self): self.l = []
        def __call__(self, t): self.l.append(t)
    def capture(gs):
        nonlocal a
        real = a; rec = Rec(); a = rec
        n0 = len(vm)
        for g in gs: issue(g)
        a = real
        tags = vm[n0:]; del vm[n0:]
        groups = []; cur = []; ti = 0
        for t in rec.l:
            cur.append(t)
            if t.startswith("buffer_load"):
                groups.append((cur, tags[ti])); ti += 1; cur = []
        if cur: groups.append((cur, None))
        return groups
    def play(g):
        for t in g[0]: a(t)
        if g[1] is not None: vm.append(g[1])
    def wait(*gs):
        last = max(i for i, x in enumerate(vm) if x in gs)
        n = len(vm) - 1 - last
        a(f"s_waitcnt vmcnt({min(n, 63)})")
    def mfmas(L, lg):
        k2 = 0
        for nm, m in enumerate(L):
            a(m)
            want = (len(lg) * (nm + 1) + len(L) - 1) // len(L)
            while k2 < min(want, len(lg)):
                play(lg[k2]); k2 += 1
        while k2 < len(lg):
            play(lg[k2]); k2 += 1
    def wr_acc(AC, o2):
        for aa in range(4):
            va = 39 if aa < 2 else 4
            for t in range(5):
                a(f"ds_write_b128 v{va}, a[{AC+16*t+4*aa}:{AC+16*t+4*aa+3}] offset:{(aa & 1)*40960 + o2 + 1024*t}")
    QF = 192; WB = 204; P_ = 76; E_ = 96; O_ = 228
    ld("wp", "buffer_load_dwordx4 v[248:251], v21, s[36:39], 0 offen")
    a(f"s_mul_i32 s62, s52, {KVQ}")
    a(f"s_add_u32 s62, s62, {KV_OFF}")
    a("s_lshl_b32 s63, s48, 12")
    a("s_add_u32 s62, s62, s63")
    a(f"v_add_u32 v24, s63, v20")
    a(f"v_add_u32 v25, 2048, v24")
    a(f"v_cmp_gt_u32 vcc, {KVQ}, v25")
    a("v_add_u32 v25, 2048, v20")
    a("v_cndmask_b32 v25, v23, v25, vcc")
    ld("kv0", "buffer_load_dwordx4 v[76:79], v20, s[32:35], s62 offen")
    ld("kv0", "buffer_load_dwordx4 v[80:83], v20, s[32:35], s62 offen offset:256")
    ld("kv0", "buffer_load_dwordx4 v[84:87], v25, s[32:35], s62 offen")
    ld("kv0", "buffer_load_dwordx4 v[88:91], v25, s[32:35], s62 offen offset:256")
    a("s_lshl_b32 s64, s51, 2")
    a("s_add_u32 s64, s64, s48")
    a("s_lshl_b32 s66, s64, 3")
    a("s_add_u32 s66, s66, s52")
    a("s_mul_i32 s66, s66, 3072")
    a(f"s_add_u32 s66, s66, {QF_OFF}")
    for m in range(3):
        ld("qf", f"buffer_load_dwordx4 v[{QF+4*m}:{QF+4*m+3}], v5, s[32:35], s66 offen offset:{1024*m}")
    for g in range(2): issue(g)
    def opart1():
        wait("wp")
        a("v_lshlrev_b32 v24, 4, v0")
        a(f"ds_write_b128 v24, v[248:251] offset:{K2_WPHI}")
        for z in range(4): a(f"v_mov_b32 v{252+z}, 0")
        a(f"ds_write_b128 v24, v[252:255] offset:{K2_ZERO}")
        a(f"ds_write_b128 v24, v[252:255] offset:{K2_ZERO+4096}")
        a("s_lshl_b32 s63, s48, 11")
        a(f"s_add_u32 s63, s63, {K2_KVF}")
        a("v_add_u32 v24, s63, v5")
        wait("kv0")
        for h in range(2):
            for d in range(4):
                a(f"v_cvt_pk_bf16_f32 v{76+8*h+d}, v{76+8*h+2*d}, v{76+8*h+2*d+1}")
            a(f"ds_write_b128 v24, v[{76+8*h}:{76+8*h+3}] offset:{1024*h}")
        wphi_addr(a, K2_WPHI, 31)
        for z in (WB+10, WB+11, WB+22, WB+23): a(f"v_mov_b32 v{z}, 0")
        wait("qf")
        a("s_waitcnt lgkmcnt(0)")
        a("s_barrier")
    def opart2(u):
        pq_mfma(a, 31, WB, QF, P_)
        a(f"s_mov_b32 s56, {LOG2E}")
        a(f"s_mov_b32 s57, {LOG2E}")
        softmax(a, P_, E_, O_, tmp=248)
    def opart3(u):
        AB = [192, 196, 200, 204, 208, 212, 216, 220, 224, 112]
        def kread(j):
            for m in range(5):
                b = AB[5*(j & 1) + m]
                a(f"ds_read_b128 v[{b}:{b+3}], v116 offset:{256*(5*j+m)}")
        kread(0)
        for j in range(6):
            if j < 5: kread(j + 1)
            a(f"s_waitcnt lgkmcnt({5 if j < 5 else 0})")
            D = 76 + 4*j
            for m in range(5):
                b = AB[5*(j & 1) + m]
                c = "0" if m == 0 else f"v[{D}:{D+3}]"
                a(f"v_mfma_f32_16x16x32_bf16 v[{D}:{D+3}], v[{b}:{b+3}], v[{O_+4*m}:{O_+4*m+3}], {c}")
        a("v_add_f32 v96, 0x358637bd, v96")
        a("v_rcp_f32 v96, v96")
        for i in range(0, 20, 2):
            a(f"v_pk_mul_f32 v[{76+i}:{77+i}], v[{76+i}:{77+i}], v[96:97] op_sel_hi:[1,0]")
        for i in range(10):
            a(f"v_cvt_pk_bf16_f32 v{100+i}, v{76+2*i}, v{77+2*i}")
        a("s_mul_i32 s66, s64, 20")
        a("s_lshr_b32 s67, s52, 1")
        a("s_mul_i32 s67, s67, 5")
        a("s_add_u32 s66, s66, s67")
        a("s_lshl_b32 s66, s66, 10")
        a(f"s_add_u32 s66, s66, {OF_OFF}")
        a("s_and_b32 s67, s52, 1")
        a("s_cmp_eq_u32 s67, 0")
        a(f"s_cbranch_scc0 K2_OODD{u}")
        a("buffer_store_dwordx4 v[100:103], v5, s[32:35], s66 offen sc0 sc1")
        a("buffer_store_dwordx4 v[104:107], v5, s[32:35], s66 offen offset:1024 sc0 sc1")
        a("buffer_store_dwordx2 v[108:109], v5, s[32:35], s66 offen offset:2048 sc0 sc1")
        a(f"s_branch K2_OST{u}")
        a.label(f"K2_OODD{u}")
        a("buffer_store_dwordx2 v[100:101], v5, s[32:35], s66 offen offset:2056 sc0 sc1")
        a("buffer_store_dwordx4 v[102:105], v5, s[32:35], s66 offen offset:3072 sc0 sc1")
        a("s_add_u32 s66, s66, 4096")
        a("buffer_store_dwordx4 v[106:109], v5, s[32:35], s66 offen sc0 sc1")
        a.label(f"K2_OST{u}")
    opart1()
    issue(2)
    opart2(0)
    issue(3)
    opart3(0)
    issue(4); issue(5)
    during = {g: [g + 6] for g in range(0, 7)}
    during[9] = [13]; during[10] = [14, 15]; during[11] = [16]
    for g in range(14):
        wait(g)
        c, P = FSL[g]
        L = []
        for t in range(5):
            for aa in range(4):
                ac = ACF + 16*t + 4*aa
                cc = "0" if g == 0 else f"a[{ac}:{ac+3}]"
                L.append(f"v_mfma_f32_16x16x32_bf16 a[{ac}:{ac+3}], {R(c, P+16+4*t)}, {R(c, P+4*aa)}, {cc}")
        mfmas(L, capture(during.get(g, [])))
        if g == 0: stamp(a, 2)
        if g == 2:
            wait(4)
            a("s_barrier")
            a("s_cmp_eq_u32 s48, 0")
            a("s_cbranch_scc0 K2_NOSIG")
            a("s_lshl_b32 s67, s51, 2")
            a("v_mov_b32 v24, s67")
            a("v_mov_b32 v25, 1")
            a("s_mov_b64 exec, 1")
            a("buffer_atomic_add v25, v24, s[44:47], 0 offen")
            a("s_mov_b64 exec, -1")
            a.label("K2_NOSIG")
        if g == 10:
            a("s_lshl_b32 s67, s51, 2")
            a("v_mov_b32 v24, s67")
            ld("poll", "buffer_load_dword v25, v24, s[44:47], 0 offen sc0 sc1")
        if g == 11:
            a("s_mov_b32 s68, 0")
            wait("poll")
            a.label("K2_POLL")
            a("v_readfirstlane_b32 s67, v25")
            a("s_cmp_ge_u32 s67, 8")
            a("s_cbranch_scc1 K2_POLLDONE")
            a("s_add_u32 s68, s68, 1")
            a("s_cmp_ge_u32 s68, 200000")
            a("s_cbranch_scc1 K2_POLLDONE")
            a("s_sleep 8")
            a("buffer_load_dword v25, v24, s[44:47], 0 offen sc0 sc1")
            a("s_waitcnt vmcnt(0)")
            a("s_branch K2_POLL")
            a.label("K2_POLLDONE")
            during[12] = [20, 21, 22, 23, 17, 18]
    stamp(a, 3)
    wr_acc(ACF, 0)
    stamp(a, 4)
    for m in range(5):
        wait(14 + m, 23)
        c_, P = WSL[m]
        L = []
        for t in range(5):
            for aa in range(4):
                ac = ACS + 16*t + 4*aa
                c = "0" if m == 0 else f"a[{ac}:{ac+3}]"
                L.append(f"v_mfma_f32_16x16x32_bf16 a[{ac}:{ac+3}], {R(c_, P+4*t)}, v[{OF+20*aa+4*m}:{OF+20*aa+4*m+3}], {c}")
        mfmas(L, [])
    stamp(a, 5)
    wr_acc(ACS, 5120)
    a("s_waitcnt lgkmcnt(0)")
    a("s_barrier")
    FIN = 120
    RB = [120, 40, 80, 160]
    a("s_mul_i32 s55, s48, 40960")
    a("v_add_u32 v4, s55, v38")
    for k in range(4):
        B = RB[k]
        for i in range(10):
            a(f"ds_read_b128 v[{B+4*i}:{B+4*i+3}], v4 offset:{10240*k + 1024*i}")
    for k in range(1, 4):
        B = RB[k]
        a(f"s_waitcnt lgkmcnt({min(15, 10*(3-k))})")
        for i in range(0, 40, 2):
            a(f"v_pk_add_f32 v[{FIN+i}:{FIN+i+1}], v[{FIN+i}:{FIN+i+1}], v[{B+i}:{B+i+1}]")
    a(f"s_mov_b32 s56, {LOG2E}")
    a(f"s_mov_b32 s57, {LOG2E}")
    T = 40
    for i in range(0, 20, 2): a(f"v_pk_mul_f32 v[{T+i}:{T+i+1}], v[{FIN+i}:{FIN+i+1}], s[56:57] op_sel_hi:[1,0]")
    for i in range(20): a(f"v_exp_f32 v{T+i}, -v{T+i}")
    for i in range(0, 20, 2): a(f"v_pk_add_f32 v[{T+i}:{T+i+1}], v[{T+i}:{T+i+1}], 1.0 op_sel_hi:[1,0]")
    for i in range(20): a(f"v_rcp_f32 v{T+i}, v{T+i}")
    for i in range(0, 20, 2): a(f"v_pk_mul_f32 v[{FIN+i}:{FIN+i+1}], v[{FIN+i}:{FIN+i+1}], v[{T+i}:{T+i+1}]")
    a("s_waitcnt vmcnt(0)")
    for t in range(5):
        for d in range(2):
            xr = XP + 2*t + d
            a(f"v_lshlrev_b32 v{T+20}, 16, v{xr}")
            a(f"v_and_b32 v{T+21}, 0xffff0000, v{xr}")
            i = 4*t + 2*d
            a(f"v_pk_fma_f32 v[{T+20}:{T+21}], v[{FIN+20+i}:{FIN+20+i+1}], v[{FIN+i}:{FIN+i+1}], v[{T+20}:{T+21}]")
            a(f"v_cvt_pk_bf16_f32 v{T+22+2*t+d}, v{T+20}, v{T+21}")
        a(f"buffer_store_dwordx2 v[{T+22+2*t}:{T+23+2*t}], v22, s[28:31], 0 offen offset:{32*t}")
    stamp(a, 6)
    if DIAG: a("s_waitcnt vmcnt(0)")
    stamp(a, 7)
    dump_stamps(a, 8, 1, 22, 23)
    a.label("K2_END")
    a("s_endpgm")
    return a

def desc(name, vgpr, sgpr=100):
    acc = min((vgpr + 3) // 4 * 4, 256)
    return f"""
.p2align 6
.amdhsa_kernel {name}
  .amdhsa_next_free_vgpr {vgpr}
  .amdhsa_next_free_sgpr {sgpr}
  .amdhsa_accum_offset {acc}
  .amdhsa_group_segment_fixed_size 0
  .amdhsa_kernarg_size 80
  .amdhsa_user_sgpr_count 2
  .amdhsa_user_sgpr_kernarg_segment_ptr 1
  .amdhsa_system_sgpr_workgroup_id_x 1
.end_amdhsa_kernel
"""

if __name__ == "__main__":
    k1 = gen_k1(); k2 = gen_k2()
    hdr = f"""; generated by dev/gen6.py
; @launch kernel=k1_kernel grid=(256,1,1) block=(512,1,1) lds={K1_LDS}
; @launch kernel=k2_kernel grid=(256,1,1) block=(256,1,1) lds={K2_LDS}
.amdgcn_target "amdgcn-amd-amdhsa--gfx950"
.text
"""
    out = hdr + k1.text() + k2.text() + '.section .rodata,"a"\n' + desc("k1_kernel", 256) + desc("k2_kernel", 512)
    path = sys.argv[1] if len(sys.argv) > 1 and not sys.argv[1].startswith("--") else f"cdna_kernels/{NAME}.s"
    open(path, "w").write(out)
    print("written", path, len(out), "nops", k1.nops, k2.nops)
```

```python
import sys
from asmlib import Asm

NAME = "recurrent_scan__linear_kernel_hedgehog__dense_activation_silu__prompt"
HF_OFF = 0
QF_OFF = 128 * 54 * 1024
OF_OFF = QF_OFF + 128 * 8 * 3 * 1024
WF_OFF = OF_OFF + 128 * 20 * 1024
KV_OFF = WF_OFF + 74 * 40 * 1024
KVQ = 15360
ST_OFF = KV_OFF + 8 * KVQ
CP_OFF = ST_OFF + 16384
CNT_OFF = CP_OFF + 262144
WS_USED = CNT_OFF + 8192
OOB = 0x40000000
LOG2E = 0x3fb8aa3b
XF = [x[2:] for x in sys.argv if x.startswith("--")]
STM = " sc1"
DIAG = "diag" in XF
DIAG_OFF = 16 << 20
def opt(name, dflt):
    v = [x[len(name):] for x in XF if x.startswith(name) and x[len(name):].isdigit()]
    return int(v[0]) if v else dflt

NS = 3
AOFF = 34816
STAGE = 51200
MISC = NS * STAGE
CSUM = MISC
SDUMP = MISC + 1024
PART = MISC + 2048
K1_LDS = 163840
PHK = 0; PHK_P = 352
VI = 128 * PHK_P; VI_P = 224
WPHI = VI + 128 * VI_P
KVS = WPHI + 4096
KVDUMP = KVS + 15360
KX = KVDUMP + 4096
W2S = 0

def stamp(a, i):
    if not DIAG: return
    a(f"s_memtime s[{80+2*i}:{81+2*i}]")
    a("s_waitcnt lgkmcnt(0)")
def dump_stamps(a, n, kidx, ws_lo, ws_hi):
    if not DIAG: return
    a("s_memrealtime s[96:97]")
    a("s_waitcnt lgkmcnt(0)")
    a(f"s_mov_b32 s76, s{ws_lo}")
    a(f"s_mov_b32 s77, s{ws_hi}")
    a(f"s_mov_b32 s78, {DIAG_OFF + (1 << 20)}")
    a("s_mov_b32 s79, 0x00020000")
    a("s_lshl_b32 s57, s2, 3")
    a("s_add_u32 s57, s57, s48")
    a("s_lshl_b32 s57, s57, 6")
    a(f"s_add_u32 s57, s57, {DIAG_OFF + kidx * 0x40000}")
    a("v_mov_b32 v250, s57")
    for i in range(n):
        a(f"v_mov_b32 v251, s{80+2*i}")
        a(f"buffer_store_dword v251, v250, s[76:79], 0 offen offset:{4*i}")
    a("v_mov_b32 v251, s96")
    a(f"buffer_store_dword v251, v250, s[76:79], 0 offen offset:60")

def srd(a, d, lo, hi, size):
    a(f"s_mov_b32 s{d}, s{lo}")
    a(f"s_mov_b32 s{d+1}, s{hi}")
    a(f"s_mov_b32 s{d+2}, {size}")
    a(f"s_mov_b32 s{d+3}, 0x00020000")
def bf16_round(a, v):
    a(f"v_cvt_pk_bf16_f32 v{v}, v{v}, v{v}")
    a(f"v_lshlrev_b32 v{v}, 16, v{v}")
def emit(a, x):
    if x.startswith("LABEL "): a.label(x[6:])
    else: a(x)

ACC = 64
XA, XB, YA, YB = 128, 136, 168, 176
DC = 208; DS = 216; ONES = 224
ASET = [(228, 229, 230, 231), (232, 233, 234, 235), (236, 237, 238, 239)]
VB = 4
ROLES = {
    0: ([160 + 8*j for j in range(5)] + [320 + 8*j for j in range(3)], 480, 30, 4),
    1: ([8*j for j in range(5)] + [320 + 8*j for j in (3, 4)], 480, 30, 4),
    2: ([32*t for t in range(8)], 544, 34, 5),
    3: ([32*t for t in range(6)], 416, 26, 4),
}
TD = opt("td", 0)
NPRO = opt("np", 2)

def gen_k1():
    a = Asm()
    a.raw(f".globl k1_kernel\n.p2align 8\n.type k1_kernel,@function\nk1_kernel:")
    a("s_cmp_ge_u32 s2, 256")
    a("s_cbranch_scc1 K1_END")
    stamp(a, 0)
    a("s_load_dwordx16 s[4:19], s[0:1], 0")
    a("s_load_dwordx4 s[20:23], s[0:1], 64")
    a("v_and_b32 v1, 63, v0")
    a("v_and_b32 v2, 15, v0")
    a("v_lshrrev_b32 v3, 4, v1")
    a("v_lshrrev_b32 v24, 6, v0")
    a("v_readfirstlane_b32 s48, v24")
    a("s_and_b32 s49, s2, 7")
    a("s_lshr_b32 s50, s2, 3")
    a("s_and_b32 s51, s49, 1")
    a("s_lshl_b32 s51, s51, 3")
    a("s_and_b32 s66, s50, 7")
    a("s_add_u32 s51, s51, s66")
    a("s_lshr_b32 s52, s49, 1")
    a("s_lshr_b32 s67, s50, 3")
    a("s_lshl_b32 s52, s52, 1")
    a("s_and_b32 s54, s67, 1")
    a("s_add_u32 s52, s52, s54")
    a("s_lshr_b32 s53, s67, 1")
    a("s_and_b32 s54, s48, 3")
    a("s_lshr_b32 s55, s48, 2")
    a("s_mul_i32 s58, s52, 3")
    a("s_add_u32 s58, s58, 3")
    a("s_lshl_b32 s57, s52, 2")
    a("s_cmp_lt_u32 s52, 3")
    a("s_cselect_b32 s58, s57, s58")
    a("s_cselect_b32 s68, 2, 3")
    a("s_cmp_eq_u32 s53, 0")
    a("s_cselect_b32 s68, s55, s68")
    a("s_mov_b32 s59, 30\ns_mov_b32 s64, 30\ns_movk_i32 s65, 480\ns_movk_i32 s69, 2185\ns_mov_b32 s70, 4")
    a("s_cmp_eq_u32 s68, 2")
    a("s_cselect_b32 s59, 32, s59\ns_cselect_b32 s64, 34, s64\ns_cselect_b32 s65, 544, s65\ns_cselect_b32 s69, 1928, s69\ns_cselect_b32 s70, 5, s70")
    a("s_cmp_eq_u32 s68, 3")
    a("s_cselect_b32 s59, 24, s59\ns_cselect_b32 s64, 26, s64\ns_cselect_b32 s65, 416, s65\ns_cselect_b32 s69, 2521, s69")
    a("s_mul_i32 s62, s52, 160")
    a("s_lshl_b32 s57, s58, 7")
    a("s_movk_i32 s63, 3840")
    a("s_cmp_eq_u32 s53, 0")
    a("s_cselect_b32 s62, s62, s57")
    a("s_cselect_b32 s63, s63, 3456")
    a(f"v_mov_b32 v13, {OOB}")
    a("s_mul_i32 s72, s48, s70")
    for jj in range(5):
        a(f"s_add_u32 s57, s72, {jj}")
        a("s_lshl_b32 s57, s57, 6")
        a("v_add_u32 v24, s57, v1")
        a("v_mul_u32_u24 v25, s69, v24")
        a("v_lshrrev_b32 v25, 16, v25")
        a("v_mul_u32_u24 v26, s64, v25")
        a("v_sub_u32 v26, v24, v26")
        a("v_lshrrev_b32 v27, 1, v25")
        a("v_and_b32 v27, 4, v27")
        a("v_xor_b32 v25, v25, v27")
        a("v_mul_u32_u24 v25, s63, v25")
        a("v_lshl_add_u32 v25, v26, 4, v25")
        a("v_add_u32 v25, s62, v25")
        a("v_mul_u32_u24 v27, 26, v26")
        a("v_lshrrev_b32 v27, 8, v27")
        a("v_mul_u32_u24 v27, 1120, v27")
        a("s_cmp_eq_u32 s53, 0")
        a("s_cselect_b64 vcc, -1, 0")
        a("v_cndmask_b32 v27, 0, v27, vcc")
        a("v_add_u32 v25, v25, v27")
        a("v_cmp_gt_u32 vcc, s59, v26")
        a(f"v_cndmask_b32 v{VB+jj}, v13, v25, vcc")
    a("v_lshrrev_b32 v24, 3, v1")
    a("v_xor_b32 v25, v24, v1")
    a("v_and_b32 v25, 7, v25")
    a("v_mul_u32_u24 v24, 1280, v24")
    a("v_lshl_add_u32 v24, v25, 4, v24")
    a("s_lshl_b32 s57, s51, 3")
    a("s_add_u32 s57, s57, s48")
    a("s_mul_i32 s57, s57, 20480")
    a("v_add_u32 v9, s57, v24")
    a("v_add_u32 v10, 10240, v9")
    a("v_and_b32 v24, 1, v1")
    a("v_mul_u32_u24 v24, 156, v24")
    a("v_lshrrev_b32 v25, 1, v1")
    a("v_mul_u32_u24 v25, 1280, v25")
    a("v_add_u32 v24, v24, v25")
    a("v_lshlrev_b32 v25, 7, v1")
    a("s_cmp_eq_u32 s53, 0")
    a("s_cselect_b64 vcc, -1, 0")
    a("v_cndmask_b32 v24, v25, v24, vcc")
    a("s_lshl_b32 s57, s66, 3")
    a("s_add_u32 s57, s57, s48")
    a("s_mul_i32 s57, s57, s63")
    a("s_add_u32 s57, s57, s62")
    a("v_add_u32 v11, s57, v24")
    a("s_lshl_b32 s57, s67, 3")
    a("s_add_u32 s57, s57, s48")
    a("s_lshl_b32 s57, s57, 2")
    a("s_lshl_b32 s61, s51, 7")
    a("s_add_u32 s57, s57, s61")
    a("v_add_u32 v24, s57, v1")
    a("v_mul_u32_u24 v12, 1280, v24")
    a("s_lshl_b32 s57, s53, 3")
    a("s_add_u32 s71, s57, s52")
    a("s_lshl_b32 s57, s71, 3")
    a("s_add_u32 s57, s57, s48")
    a("s_lshl_b32 s61, s51, 7")
    a("s_add_u32 s49, s57, s61")
    a("s_mul_i32 s57, s49, 1280")
    a("v_lshlrev_b32 v24, 5, v1")
    a("v_add_u32 v24, s57, v24")
    a("v_cmp_gt_u32 vcc, 40, v1")
    a("v_cndmask_b32 v14, v13, v24, vcc")
    a("v_mul_u32_u24 v24, 13, v1")
    a("v_lshrrev_b32 v24, 8, v24")
    a("v_mul_u32_u24 v24, 1120, v24")
    a("s_cmp_eq_u32 s53, 0")
    a("s_cselect_b64 vcc, -1, 0")
    a("v_cndmask_b32 v24, 0, v24, vcc")
    a("v_lshl_add_u32 v24, v1, 3, v24")
    a("s_mul_i32 s57, s51, 40")
    a("s_mul_i32 s61, s48, 5")
    a("s_add_u32 s57, s57, s61")
    a("s_mul_i32 s57, s57, s63")
    a("s_add_u32 s57, s57, s62")
    a("v_add_u32 v24, s57, v24")
    a("s_lshl_b32 s57, s59, 1")
    a("v_cmp_gt_u32 vcc, s57, v1")
    a("v_cndmask_b32 v15, v13, v24, vcc")
    A0, A1, B0, B1 = ASET[0]
    a("s_lshl_b32 s57, s54, 12")
    a(f"s_add_u32 s57, s57, {AOFF}")
    a("v_xor_b32 v24, v3, v2")
    a("v_and_b32 v24, 7, v24")
    a("v_lshl_add_u32 v24, v2, 3, v24")
    a("v_lshlrev_b32 v24, 4, v24")
    a(f"v_add_u32 v{A0}, s57, v24")
    a(f"v_xor_b32 v{A1}, 64, v{A0}")
    a("v_and_b32 v26, 3, v1")
    a("v_mul_u32_u24 v27, 40, v26")
    a("v_lshlrev_b32 v26, 3, v26")
    a("s_lshl_b32 s57, s59, 3")
    a("s_mul_i32 s57, s57, s55")
    a("v_add_u32 v26, s57, v26")
    a("s_cmp_eq_u32 s53, 0")
    a("s_cselect_b64 vcc, -1, 0")
    a("v_cndmask_b32 v26, v26, v27, vcc")
    a("v_lshrrev_b32 v24, 2, v1")
    a("v_and_b32 v24, 3, v24")
    a("v_lshl_add_u32 v24, v3, 3, v24")
    a("v_and_b32 v25, 1, v3")
    a("v_lshlrev_b32 v25, 2, v25")
    a("v_add_u32 v27, v24, v25")
    a("v_xor_b32 v25, 4, v25")
    a("v_add_u32 v28, v24, v25")
    a("v_mul_u32_u24 v27, s65, v27")
    a("v_mul_u32_u24 v28, s65, v28")
    a(f"v_add_u32 v{B0}, v27, v26")
    a(f"v_add_u32 v{B1}, v28, v26")
    for st in (1, 2):
        for k in range(4): a(f"v_add_u32 v{ASET[st][k]}, {st*STAGE}, v{ASET[0][k]}")
    for k in range(4): a(f"v_mov_b32 v{ONES+k}, 0x3f803f80")
    a("v_lshlrev_b32 v24, 4, v0")
    a("s_mul_i32 s57, s52, 3200")
    a("v_add_u32 v25, s57, v24")
    a("v_cmp_gt_u32 vcc, 3200, v24")
    a("v_cndmask_b32 v16, v13, v25, vcc")
    a("s_mov_b32 s61, 0")
    a("s_mov_b32 s60, 0")
    a("s_lshl_b32 s56, s63, 6")
    a("s_lshl_b32 s73, s72, 10")
    a("s_lshl_b32 s74, s48, 11")
    a(f"s_add_u32 s74, s74, {AOFF}")
    a("s_sub_u32 s75, s64, s72")
    a("s_waitcnt lgkmcnt(0)")
    stamp(a, 1)
    srd(a, 24, 4, 5, 2621440)
    a("s_cmp_eq_u32 s53, 0")
    a("s_cselect_b32 s28, s6, s14")
    a("s_cselect_b32 s29, s7, s15")
    a(f"s_mov_b32 s30, {640*1728*2}")
    a(f"s_cselect_b32 s30, {640*1920*2}, s30")
    a("s_mov_b32 s31, 0x00020000")
    a(f"s_mul_i32 s57, s52, {KVQ}")
    a(f"s_add_u32 s57, s57, {KV_OFF}")
    a("s_add_u32 s40, s22, s57")
    a("s_addc_u32 s41, s23, 0")
    a(f"s_mov_b32 s42, {KVQ}")
    a("s_mov_b32 s43, 0x00020000")
    srd(a, 32, 22, 23, WS_USED)
    srd(a, 44, 20, 21, 256)
    srd(a, 36, 8, 9, 25600)
    a("s_or_b32 s57, s51, s53")
    a("s_cmp_eq_u32 s57, 0")
    a("s_cbranch_scc0 K1_NOZERO")
    a("v_lshlrev_b32 v24, 4, v0")
    a("v_mov_b32 v28, 0\nv_mov_b32 v29, 0\nv_mov_b32 v30, 0\nv_mov_b32 v31, 0")
    for z in range(2):
        a(f"s_mov_b32 s57, {8192*z}")
        a("buffer_store_dwordx4 v[28:31], v24, s[40:43], s57 offen sc0 sc1")
    a("s_cmp_eq_u32 s52, 0")
    a("s_cbranch_scc0 K1_NOZERO")
    a(f"s_mov_b32 s57, {CNT_OFF}")
    a("buffer_store_dwordx4 v[28:31], v24, s[32:35], s57 offen sc0 sc1")
    a.label("K1_NOZERO")
    if "lin" in XF:
        a("s_lshl_b32 s57, s2, 3")
        a("s_add_u32 s57, s57, s48")
        a("s_mul_i32 s57, s57, 1280")
        a("v_lshlrev_b32 v24, 7, v1")
        a("s_mov_b64 exec, 0x3ff")
        srd(a, 76, 6, 7, 640*1920*2)
        a("buffer_load_dword v17, v24, s[76:79], s57 offen")
        a("buffer_load_dword v18, v24, s[24:27], s57 offen")
        srd(a, 92, 14, 15, 640*1728*2)
        a("buffer_load_dword v19, v24, s[92:95], s57 offen")
        if "lin2" in XF:
            srd(a, 76, 16, 17, 640*1728*2)
            a("buffer_load_dword v17, v24, s[76:79], s57 offen")
            srd(a, 92, 10, 11, 640*640*2)
            a("buffer_load_dword v19, v24, s[92:95], s57 offen")
        a("s_mov_b64 exec, -1")
    a("s_cmp_eq_u32 s68, 1")
    a("s_cbranch_scc1 K1_T1")
    a("s_cmp_eq_u32 s68, 2")
    a("s_cbranch_scc1 K1_T2")
    a("s_cmp_eq_u32 s68, 3")
    a("s_cbranch_scc1 K1_T3")
    for ro in range(4):
        a.label(f"K1_T{ro}")
        k1_body(a, ro)
        if ro != 1: a("s_branch K1_P2")
    a.label("K1_P2")
    phase2(a)
    a.label("K1_END")
    a("s_endpgm")
    return a

def dma_stage(ro, st):
    imms, pitch, U, nsl = ROLES[ro]
    G = []
    for jj in range(nsl):
        g = []
        maybe = jj >= U - 7*nsl
        if maybe:
            g += [f"s_cmp_gt_i32 s75, {jj}", "s_cselect_b64 exec, -1, 1", f"s_cselect_b32 s57, s73, {SDUMP - st*STAGE - 1024*jj}", f"s_add_u32 m0, s57, {st*STAGE + 1024*jj}"]
        else:
            g += [f"s_add_u32 m0, s73, {st*STAGE + 1024*jj}"]
        g.append(f"buffer_load_dwordx4 v{VB+jj}, s[28:31], s61 offen lds")
        if maybe: g.append("s_mov_b64 exec, -1")
        G.append(g)
    G[-1].append("s_add_u32 s61, s61, s56")
    for jj in range(2):
        G.append([f"s_add_u32 m0, s74, {st*STAGE + 1024*jj}", f"buffer_load_dwordx4 v{9+jj}, s[24:27], s60 offen lds"])
    G[-1].append("s_add_u32 s60, s60, 128")
    return G

def touch(ro, s):
    P = {0: 6, 1: 6, 2: 4, 3: 3}[ro]
    return [f"s_mov_b64 exec, {(1 << P) - 1}", f"s_mul_i32 s57, s56, {s}", "T:buffer_load_dword v62, v11, s[28:31], s57 offen",
            "s_mov_b64 exec, 15", f"T:buffer_load_dword v63, v12, s[24:27], 0 offen offset:{128*s}", "s_mov_b64 exec, -1"]

def frag_reads(ro, A, B, st, ks2):
    imms, pitch, U, nsl = ROLES[ro]
    A0, A1, B0, B1 = ASET[st]
    va = A1 if ks2 else A0
    off = 32 * pitch * ks2
    L = [f"ds_read_b128 v[{A}:{A+3}], v{va}", f"ds_read_b128 v[{A+4}:{A+7}], v{va} offset:2048"]
    for t, im in enumerate(imms):
        L.append(f"ds_read_b64_tr_b16 v[{B+4*t}:{B+4*t+1}], v{B0} offset:{off+im}")
        L.append(f"ds_read_b64_tr_b16 v[{B+4*t+2}:{B+4*t+3}], v{B1} offset:{off+im}")
    return L

def k1_body(a, ro):
    imms, pitch, U, nsl = ROLES[ro]
    NT = len(imms)
    vm = []
    def em(x, tag):
        if x.startswith("T:"):
            a(x[2:]); vm.append("t")
        elif x.startswith("buffer_load"):
            a(x); vm.append(tag[1].pop(0) if isinstance(tag, tuple) else tag)
        else: emit(a, x)
    def waitv(tag, lg=False):
        last = max(i for i, x in enumerate(vm) if x == tag)
        n = min(63, len(vm) - 1 - last)
        a(f"s_waitcnt vmcnt({n})" + (" lgkmcnt(0)" if lg else ""))
    em("buffer_load_dwordx4 v[128:131], v14, s[24:27], 0 offen", "sl")
    em("buffer_load_dwordx4 v[132:135], v14, s[24:27], 0 offen offset:16", "sl")
    a("s_mov_b32 s57, 0")
    for i in range(5):
        em(f"buffer_load_dwordx2 v[{136+2*i}:{137+2*i}], v15, s[28:31], s57 offen", "sl")
        if i < 4: a("s_add_u32 s57, s57, s63")
    for st in range(NPRO):
        for g in dma_stage(ro, st):
            for x in g: em(x, st)
        if st < NPRO - 1 and "nobar" not in XF: a("s_barrier")
        if st == NPRO - 1:
            waitv("sl")
            for i in range(5):
                for d in range(2):
                    a(f"v_lshlrev_b32 v{148+4*i+2*d}, 16, v{136+2*i+d}")
                    a(f"v_and_b32 v{149+4*i+2*d}, 0xffff0000, v{136+2*i+d}")
            for i in range(1, 5):
                a(f"v_pk_add_f32 v[148:149], v[148:149], v[{148+4*i}:{149+4*i}]")
                a(f"v_pk_add_f32 v[150:151], v[150:151], v[{150+4*i}:{151+4*i}]")
            a("v_lshlrev_b32 v24, 4, v0")
            a(f"v_add_u32 v24, {PART}, v24")
            a("ds_write_b128 v24, v[148:151]")
            for d in range(8):
                a(f"v_lshlrev_b32 v{168+2*d}, 16, v{128+d}")
                a(f"v_and_b32 v{169+2*d}, 0xffff0000, v{128+d}")
            a("v_pk_add_f32 v[184:185], v[168:169], v[170:171]")
            for d in range(2, 8): a(f"v_pk_add_f32 v[184:185], v[184:185], v[{168+2*d}:{169+2*d}]")
            a("v_add_f32 v184, v184, v185")
            def xreduce(v):
                for sh in (1, 2, 4, 8): a(f"v_add_f32_dpp v{v}, v{v}, v{v} row_shr:{sh} row_mask:0xf bank_mask:0xf bound_ctrl:0")
                a(f"v_add_f32_dpp v{v}, v{v}, v{v} row_bcast:15 row_mask:0xa bank_mask:0xf")
                a(f"v_add_f32_dpp v{v}, v{v}, v{v} row_bcast:31 row_mask:0xc bank_mask:0xf")
            xreduce(184)
            a("v_readlane_b32 s57, v184, 63")
            a("v_mov_b32 v186, 0x3acccccd")
            a("v_mul_f32 v186, s57, v186")
            a("v_mov_b32 v184, 0")
            a("v_mov_b32 v185, 0")
            a("s_mov_b32 exec_hi, 0xff")
            for d in range(8):
                a(f"v_pk_add_f32 v[{168+2*d}:{169+2*d}], v[{168+2*d}:{169+2*d}], v[186:187] op_sel_hi:[1,0] neg_lo:[0,1] neg_hi:[0,1]")
            for d in range(8):
                a(f"v_pk_fma_f32 v[184:185], v[{168+2*d}:{169+2*d}], v[{168+2*d}:{169+2*d}], v[184:185]")
            a("s_mov_b64 exec, -1")
            a("v_add_f32 v184, v184, v185")
            xreduce(184)
            a("v_readlane_b32 s57, v184, 63")
            a("v_mov_b32 v187, 0x3acccccd")
            a("v_mul_f32 v187, s57, v187")
            bf16_round(a, 186)
            bf16_round(a, 187)
            a("v_add_f32 v187, 0x3727c5ac, v187")
            bf16_round(a, 187)
            a("v_sqrt_f32 v187, v187")
            bf16_round(a, 187)
            a("v_rcp_f32 v187, v187")
            a("s_lshl_b32 s57, s49, 3")
            a(f"s_add_u32 s57, s57, {ST_OFF}")
            a("v_mov_b32 v24, 0")
            a("s_mov_b64 exec, 1")
            a("buffer_store_dwordx2 v[186:187], v24, s[32:35], s57 offen sc0 sc1")
            vm.append("ss")
            a("s_mov_b64 exec, -1")
    if ro < 2:
        em("buffer_load_dwordx4 v[252:255], v16, s[36:39], 0 offen", "aux")
    for sl in range(NS, min(10, TD)):
        for x in touch(ro, sl): em(x, "t")
    if ro == 3: w2f_prep(a)
    stamp(a, 2)
    waitv(0, True)
    a("s_barrier")
    stamp(a, 3)
    a("s_cmp_eq_u32 s48, 7")
    a(f"s_cbranch_scc0 K1_NCP{ro}")
    a("v_lshlrev_b32 v24, 4, v1")
    a(f"v_add_u32 v25, {PART}, v24")
    for k in range(8): a(f"ds_read_b128 v[{168+4*k}:{171+4*k}], v25 offset:{1024*k}")
    a("s_waitcnt lgkmcnt(0)")
    for k in range(1, 8):
        a(f"v_pk_add_f32 v[168:169], v[168:169], v[{168+4*k}:{169+4*k}]")
        a(f"v_pk_add_f32 v[170:171], v[170:171], v[{170+4*k}:{171+4*k}]")
    a("s_lshl_b32 s57, s71, 4")
    a("s_add_u32 s57, s57, s51")
    a("s_lshl_b32 s57, s57, 10")
    a(f"s_add_u32 s57, s57, {CP_OFF}")
    a("buffer_store_dwordx4 v[168:171], v24, s[32:35], s57 offen sc0 sc1")
    a("s_nop 1")
    a.label(f"K1_NCP{ro}")
    if ro == 0:
        a("s_or_b32 s57, s51, s48")
        a("s_cmp_eq_u32 s57, 0")
        a("s_cbranch_scc0 K1_NOFLAG")
        a("s_lshl_b32 s57, s52, 2")
        a("v_mov_b32 v24, s57")
        a("v_mov_b32 v25, 1")
        a("s_mov_b64 exec, 1")
        a("buffer_atomic_add v25, v24, s[44:47], 0 offen")
        a("s_mov_b64 exec, -1")
        a.label("K1_NOFLAG")
    def hooks(s):
        L = []
        if ro == 3 and s in (5, 6, 8, 9): L += w2f_out({5: 0, 6: 1, 8: 2, 9: 3}[s])
        if ro == 3 and s == 11: L += w2f_out(4)
        if s == 15: L += ["v_mov_b32 v17, 0", "buffer_load_dword v17, v17, s[44:47], 0 offen sc0 sc1"]
        if s == 5:
            L += ["s_cmp_eq_u32 s48, 0", f"s_cbranch_scc0 K1_NSG{ro}", "s_lshl_b32 s57, s51, 2", "s_add_u32 s57, s57, 64", "v_mov_b32 v24, s57",
                  "s_lshl_b32 s57, s71, 2", "s_add_u32 s57, s57, 128", "v_mov_b32 v26, s57", "v_mov_b32 v25, 1", "s_mov_b64 exec, 1",
                  "buffer_atomic_add v25, v24, s[44:47], 0 offen", "buffer_atomic_add v25, v26, s[44:47], 0 offen", "s_mov_b64 exec, -1", f"LABEL K1_NSG{ro}"]
        if s == 15:
            L += ["s_lshl_b32 s57, s51, 2", "s_add_u32 s57, s57, 64", "v_mov_b32 v56, s57", "s_lshl_b32 s57, s71, 2", "s_add_u32 s57, s57, 128", "v_mov_b32 v57, s57",
                  "buffer_load_dword v58, v56, s[44:47], 0 offen sc0 sc1", "buffer_load_dword v59, v57, s[44:47], 0 offen sc0 sc1"]
        if s == 17:
            L += ["s_mov_b32 s60, 0", "s_waitcnt vmcnt(0)", f"LABEL K1_PS{ro}", "v_readfirstlane_b32 s57, v58", "v_readfirstlane_b32 s61, v59", "s_and_b32 s57, s57, 0xff", "s_min_u32 s57, s57, s61",
                  "s_cmp_ge_u32 s57, 16", f"s_cbranch_scc1 K1_PSD{ro}", "s_add_u32 s60, s60, 1", "s_cmp_ge_u32 s60, 100000", f"s_cbranch_scc1 K1_PSD{ro}", "s_sleep 8",
                  "buffer_load_dword v58, v56, s[44:47], 0 offen sc0 sc1", "buffer_load_dword v59, v57, s[44:47], 0 offen sc0 sc1", "s_waitcnt vmcnt(0)", f"s_branch K1_PS{ro}", f"LABEL K1_PSD{ro}"]
            L += ["s_lshl_b32 s57, s51, 2", "s_add_u32 s57, s57, s54", "s_lshl_b32 s57, s57, 8", f"s_add_u32 s57, s57, {ST_OFF}", "v_lshlrev_b32 v24, 3, v2",
                  "buffer_load_dwordx2 v[20:21], v24, s[32:35], s57 offen sc0 sc1", "buffer_load_dwordx2 v[22:23], v24, s[32:35], s57 offen offset:128 sc0 sc1"]
            L += ["s_cmp_lt_u32 s48, 4", f"s_cbranch_scc0 K1_NCL{ro}", "s_lshl_b32 s57, s71, 14", f"s_add_u32 s57, s57, {CP_OFF}", "s_lshl_b32 s61, s48, 2", "s_add_u32 s57, s57, s61",
                  "v_lshlrev_b32 v24, 4, v1"]
            for p in range(16):
                L += [f"buffer_load_dword v{40+p}, v24, s[32:35], s57 offen offset:{1024*(p & 3)} sc0 sc1"]
                if p & 3 == 3: L += ["s_add_u32 s57, s57, 4096"]
            L += [f"LABEL K1_NCL{ro}"]
        return L
    for s in frag_reads(ro, XA, XB, 0, 0): a(s)
    for s in range(20):
        i = s >> 1; odd = s & 1
        CA, CB, NA, NB = (XA, XB, YA, YB) if not odd else (YA, YB, XA, XB)
        dma = []
        if not odd:
            a("s_waitcnt lgkmcnt(0)")
            rd = frag_reads(ro, NA, NB, i % NS, 1)
            if TD and NS <= i + TD < 10: dma = [touch(ro, i + TD)]
            tag = "t"
            if s == 0 and NPRO < 3:
                dma = sum((dma_stage(ro, st2) for st2 in range(NPRO, 3)), [])
                tagl = [st2 for st2 in range(NPRO, 3) for _ in range(nsl + 2)]
                tag = ("L", tagl)
        else:
            if i < 9:
                if "nodma" in XF and i + 1 >= NS: a("s_waitcnt lgkmcnt(0)")
                else: waitv(i + 1, True)
                a("s_barrier")
                rd = frag_reads(ro, NA, NB, (i + 1) % NS, 0)
            else:
                a("s_waitcnt lgkmcnt(0)")
                a("s_barrier")
                rd = []
            if i + NS < 10 and "nodma" not in XF: dma = dma_stage(ro, i % NS)
            if ro == 3 and s == 1: dma = [w2f_dma(n_) for n_ in range(4)] + dma
            if ro == 3 and s == 7: dma = [w2f_dma(4)] + dma
            tag = i + NS
        if "nord" in XF: rd = []
        rd = [[x] for x in rd]
        side = []
        k = 0
        step = max(1, len(rd) // (len(dma) + 1)) if dma else len(rd)
        for d in dma:
            side += rd[k:k+step]; k += step; side.append(d)
        side += rd[k:]
        mf = []
        for t in range(NT):
            for rt in range(2):
                ac = ACC + 8*t + 4*rt
                c = "0" if s == 0 else f"v[{ac}:{ac+3}]"
                mf.append(f"v_mfma_f32_16x16x32_bf16 v[{ac}:{ac+3}], v[{CB+4*t}:{CB+4*t+3}], v[{CA+4*rt}:{CA+4*rt+3}], {c}")
        st_blk = []
        def stat_m(kind):
            L = []
            for rt in range(2):
                ac = DS + 4*rt
                c = "0" if s == 0 else f"v[{ac}:{ac+3}]"
                A_ = ONES if kind == 0 else CA + 4*rt
                L.append(f"v_mfma_f32_16x16x32_bf16 v[{ac}:{ac+3}], v[{A_}:{A_+3}], v[{CA+4*rt}:{CA+4*rt+3}], {c}")
            return L
        if False:
            st_blk = ["s_cmp_eq_u32 s55, 0", f"s_cbranch_scc0 K1_SG{ro}_{s}"] + stat_m(0) + [f"s_branch K1_SE{ro}_{s}", f"LABEL K1_SG{ro}_{s}"] + stat_m(1) + [f"LABEL K1_SE{ro}_{s}"]
        cs = []
        for q in range(4):
            tl = [t for t in range(NT) if t % 4 == q]
            if q < 3: cs += [f"s_cmp_eq_u32 s54, {q}", f"s_cbranch_scc0 K1_CS{ro}_{s}_{q+1}"]
            for k2, t in enumerate(tl):
                ac = DC + 4*k2
                c = "0" if s == 0 else f"v[{ac}:{ac+3}]"
                cs.append(f"v_mfma_f32_16x16x32_bf16 v[{ac}:{ac+3}], v[{CB+4*t}:{CB+4*t+3}], v[{ONES}:{ONES+3}], {c}")
            if q < 3: cs += [f"s_branch K1_CSE{ro}_{s}", f"LABEL K1_CS{ro}_{s}_{q+1}"]
        cs.append(f"LABEL K1_CSE{ro}_{s}")
        nfirst = len(mf) - 3
        per = max(1, -(-len(side) // max(1, nfirst - 1)))
        si = 0
        for k, m in enumerate(mf):
            a(m)
            if k < nfirst:
                for _ in range(per):
                    if si < len(side):
                        for x in side[si]: em(x, tag)
                        si += 1
            if k == nfirst - 1:
                while si < len(side):
                    for x in side[si]: em(x, tag)
                    si += 1
                for x in hooks(s): emit(a, x)
    stamp(a, 4)
    if ro < 2:
        a("s_lshl_b32 s57, s52, 2")
        a("v_mov_b32 v60, s57")
        a("buffer_load_dword v61, v60, s[44:47], 0 offen sc0 sc1")
    a("s_waitcnt vmcnt(%d)" % (0 if ro >= 2 else 1))
    a("s_cmp_lt_u32 s48, 4")
    a(f"s_cbranch_scc0 K1_NCS{ro}")
    for p in range(0, 16, 2):
        if p: a(f"v_pk_add_f32 v[40:41], v[40:41], v[{40+p}:{41+p}]")
    a("v_add_f32 v40, v40, v41")
    a("s_lshl_b32 s57, s48, 2")
    a(f"s_add_u32 s57, s57, {CSUM}")
    a("v_lshlrev_b32 v24, 4, v1")
    a("v_add_u32 v24, s57, v24")
    a("ds_write_b32 v24, v40")
    if ro < 2:
        a("v_lshlrev_b32 v29, 4, v0" if False else "v_lshlrev_b32 v25, 4, v0")
        a(f"v_add_u32 v25, {WPHI}, v25")
        a("ds_write_b128 v25, v[252:255]")
    a.label(f"K1_NCS{ro}")
    a("s_waitcnt lgkmcnt(0)")
    a("s_barrier")
    a("s_cmp_eq_u32 s48, 0")
    a(f"s_cbranch_scc0 K1_NZ{ro}")
    a("v_readfirstlane_b32 s57, v17")
    a("s_cmp_lg_u32 s57, 0")
    a(f"s_cbranch_scc1 K1_ZOK{ro}")
    a("v_mov_b32 v24, 0")
    spin(a, f"K1_SZ{ro}", ["buffer_load_dword v25, v24, s[44:47], 0 offen sc0 sc1"], ["v_readfirstlane_b32 s57, v25", "s_cmp_lg_u32 s57, 0"])
    a.label(f"K1_ZOK{ro}")
    if ro == 3:
        a("v_mov_b32 v25, 1")
        a(f"s_mov_b32 s57, {CNT_OFF}")
        a("v_lshlrev_b32 v26, 7, v1")
        a("s_mov_b64 exec, 0xffff")
        a("buffer_atomic_add v25, v26, s[32:35], s57 offen offset:4")
        a("s_mov_b64 exec, -1")
    a.label(f"K1_NZ{ro}")
    CR = 128
    if ro < 2:
        a("v_mul_u32_u24 v26, 80, v3")
        a(f"v_add_u32 v26, {CSUM}, v26")
        for t, im in enumerate(imms):
            seg, j = im // 160, (im % 160) // 8
            a(f"ds_read_b128 v[{CR+4*t}:{CR+4*t+3}], v26 offset:{16*(20*seg + j)}")
    else:
        a("v_lshlrev_b32 v26, 4, v3")
        a(f"s_mul_i32 s57, s55, {64*NT}")
        a(f"s_add_u32 s57, s57, {CSUM}")
        a("v_add_u32 v26, s57, v26")
        for t in range(NT):
            a(f"ds_read_b128 v[{CR+4*t}:{CR+4*t+3}], v26 offset:{64*t}")
    a("v_mov_b32 v28, v20")
    a("v_mov_b32 v32, v21")
    a("v_mov_b32 v30, v22")
    a("v_mov_b32 v34, v23")
    a("s_waitcnt lgkmcnt(0)")
    for t in range(NT):
        for rt in range(2):
            for h in range(2):
                ac = ACC + 8*t + 4*rt + 2*h
                a(f"v_pk_fma_f32 v[{ac}:{ac+1}], v[{CR+4*t+2*h}:{CR+4*t+2*h+1}], v[{28+2*rt}:{29+2*rt}], v[{ac}:{ac+1}] op_sel_hi:[1,0,1] neg_lo:[0,1,0] neg_hi:[0,1,0]")
    for t in range(NT):
        for rt in range(2):
            for h in range(2):
                ac = ACC + 8*t + 4*rt + 2*h
                a(f"v_pk_mul_f32 v[{ac}:{ac+1}], v[{ac}:{ac+1}], v[{32+2*rt}:{33+2*rt}] op_sel_hi:[1,0]")
    stamp(a, 5)
    if ro < 2: k1_epi_qkv(a, ro)
    else: k1_epi_h(a, ro)
def softmax(a, P, E, O, tmp=40):
    t0, t2, t4, t6 = tmp, tmp + 2, tmp + 4, tmp + 6
    a(f"v_max3_f32 v{t0}, v{P}, v{P+1}, v{P+2}")
    a(f"v_min3_f32 v{t2}, v{P}, v{P+1}, v{P+2}")
    for i in range(3, 19, 2):
        a(f"v_max3_f32 v{t0}, v{t0}, v{P+i}, v{P+i+1}")
        a(f"v_min3_f32 v{t2}, v{t2}, v{P+i}, v{P+i+1}")
    a(f"v_max_f32 v{t0}, v{t0}, v{P+19}")
    a(f"v_min_f32 v{t2}, v{t2}, v{P+19}")
    a(f"v_mul_f32 v{t0}, s56, v{t0}")
    a(f"v_mul_f32 v{t2}, s56, v{t2}")
    for i in range(0, 20, 2):
        a(f"v_pk_fma_f32 v[{E+i}:{E+i+1}], v[{P+i}:{P+i+1}], s[56:57], v[{t0}:{t0+1}] op_sel_hi:[1,0,0] neg_lo:[0,0,1] neg_hi:[0,0,1]")
        a(f"v_pk_fma_f32 v[{P+i}:{P+i+1}], v[{P+i}:{P+i+1}], s[56:57], v[{t2}:{t2+1}] op_sel_hi:[1,0,0] neg_lo:[1,0,0] neg_hi:[1,0,0]")
    for i in range(20):
        a(f"v_exp_f32 v{E+i}, v{E+i}")
        a(f"v_exp_f32 v{P+i}, v{P+i}")
    a(f"v_pk_add_f32 v[{t4}:{t4+1}], v[{E}:{E+1}], v[{E+2}:{E+3}]")
    a(f"v_pk_add_f32 v[{t6}:{t6+1}], v[{P}:{P+1}], v[{P+2}:{P+3}]")
    for i in range(4, 20, 2):
        a(f"v_pk_add_f32 v[{t4}:{t4+1}], v[{t4}:{t4+1}], v[{E+i}:{E+i+1}]")
        a(f"v_pk_add_f32 v[{t6}:{t6+1}], v[{t6}:{t6+1}], v[{P+i}:{P+i+1}]")
    a(f"v_add_f32 v{t4}, v{t4}, v{t4+1}")
    a(f"v_add_f32 v{t6}, v{t6}, v{t6+1}")
    a(f"v_rcp_f32 v{t4}, v{t4}")
    a(f"v_rcp_f32 v{t6}, v{t6}")
    for i in range(0, 20, 2):
        a(f"v_pk_mul_f32 v[{E+i}:{E+i+1}], v[{E+i}:{E+i+1}], v[{t4}:{t4+1}] op_sel_hi:[1,0]")
        a(f"v_pk_mul_f32 v[{P+i}:{P+i+1}], v[{P+i}:{P+i+1}], v[{t6}:{t6+1}] op_sel_hi:[1,0]")
    for i in range(10):
        a(f"v_cvt_pk_bf16_f32 v{O+i}, v{E+2*i}, v{E+2*i+1}")
        a(f"v_cvt_pk_bf16_f32 v{O+10+i}, v{P+2*i}, v{P+2*i+1}")

def k1_epi_qkv(a, ch):
    NV = 3 if ch == 0 else 2
    v0j = 0 if ch == 0 else 3
    F0 = 160; VP = 184; WB = 196
    for rt in range(2):
        for t in range(5):
            ac = ACC + 8*t + 4*rt
            a(f"v_cvt_pk_bf16_f32 v{F0+12*rt+2*t}, v{ac}, v{ac+1}")
            a(f"v_cvt_pk_bf16_f32 v{F0+12*rt+2*t+1}, v{ac+2}, v{ac+3}")
        for t in range(NV):
            ac = ACC + 8*(5+t) + 4*rt
            a(f"v_cvt_pk_bf16_f32 v{VP+6*rt+2*t}, v{ac}, v{ac+1}")
            a(f"v_cvt_pk_bf16_f32 v{VP+6*rt+2*t+1}, v{ac+2}, v{ac+3}")
    for z in (F0+10, F0+11, F0+22, F0+23, WB+10, WB+11, WB+22, WB+23): a(f"v_mov_b32 v{z}, 0")
    a("v_lshlrev_b32 v48, 4, v1")
    a("s_mul_i32 s57, s54, 3072")
    a(f"s_add_u32 s57, s57, {KX}")
    a("v_add_u32 v49, s57, v48")
    if ch == 0:
        for m in range(3):
            a(f"ds_write_b128 v49, v[{F0+12+4*m}:{F0+12+4*m+3}] offset:{1024*m}")
    else:
        a("s_lshl_b32 s58, s51, 3")
        a("s_lshl_b32 s59, s54, 1")
        a("s_add_u32 s58, s58, s59")
        a("s_lshl_b32 s58, s58, 3")
        a("s_add_u32 s58, s58, s52")
        a("s_mul_i32 s58, s58, 3072")
        a(f"s_add_u32 s58, s58, {QF_OFF}")
        a(f"s_add_u32 s59, s58, {8*3072}")
        for rt in range(2):
            for m in range(3):
                a(f"buffer_store_dwordx4 v[{F0+12*rt+4*m}:{F0+12*rt+4*m+3}], v48, s[32:35], s{58+rt} offen offset:{1024*m}{STM}")
    a("s_lshl_b32 s57, s54, 5")
    a("v_add_u32 v24, s57, v2")
    a(f"v_mul_u32_u24 v25, {VI_P}, v24")
    a("v_mul_u32_u24 v26, 48, v3")
    a("v_add_u32 v25, v25, v26")
    a(f"v_add_u32 v25, {VI}, v25")
    for rt in range(2):
        for t in range(NV):
            a(f"ds_write_b64 v25, v[{VP+6*rt+2*t}:{VP+6*rt+2*t+1}] offset:{rt*16*VI_P + 8*(v0j+t)}")
    if ch == 1:
        a("v_mov_b32 v32, 0x00003f80")
        a("v_mov_b32 v33, 0")
        for rt in range(2):
            a(f"ds_write_b64 v25, v[32:33] offset:{rt*16*VI_P + 40}")
    wphi_addr(a, WPHI, 34)
    a("s_waitcnt lgkmcnt(0)")
    a("s_barrier")
    if ch == 1:
        for m in range(3):
            a(f"ds_read_b128 v[{F0+4*m}:{F0+4*m+3}], v49 offset:{1024*m}")
        a("s_branch K1_QC")
        return
    a.label("K1_QC")
    ch = 2
    pq_mfma(a, 34, WB, F0, 64)
    a(f"s_mov_b32 s56, {LOG2E}")
    a(f"s_mov_b32 s57, {LOG2E}")
    O = 140
    softmax(a, 64, 104, O)
    a("s_lshl_b32 s57, s55, 4")
    a("v_add_u32 v48, s57, v24")
    a(f"v_mul_u32_u24 v48, {PHK_P}, v48")
    a("v_mul_u32_u24 v49, 80, v3")
    a("v_add_u32 v48, v48, v49")
    for m in range(5):
        a(f"ds_write_b128 v48, v[{O+4*m}:{O+4*m+3}] offset:{PHK + 16*m}")
    a("s_waitcnt vmcnt(0) lgkmcnt(0)")
    a("s_barrier")
    a("s_cmp_eq_u32 s48, 0")
    a("s_cbranch_scc0 K1_NQS")
    a("s_lshl_b32 s57, s51, 7")
    a(f"s_add_u32 s57, s57, {CNT_OFF + 8}")
    a("v_mov_b32 v28, s57")
    a("v_mov_b32 v29, 1")
    a("s_mov_b64 exec, 1")
    a("buffer_atomic_add v29, v28, s[32:35], 0 offen")
    a("s_mov_b64 exec, -1")
    a.label("K1_NQS")
    a("s_lshr_b32 s58, s48, 1")
    a("s_and_b32 s59, s48, 1")
    a("v_lshl_add_u32 v28, v3, 2, v26")
    a(f"v_mul_u32_u24 v29, {PHK_P}, v28")
    a("v_lshl_add_u32 v29, v27, 3, v29")
    a("s_mul_i32 s57, s58, 80")
    a("v_add_u32 v29, s57, v29")
    a(f"v_mul_u32_u24 v30, {VI_P}, v28")
    a("v_lshl_add_u32 v30, v27, 3, v30")
    a("s_mul_i32 s57, s58, 48")
    a("s_lshl_b32 s60, s59, 5")
    a("s_add_u32 s57, s57, s60")
    a(f"s_add_u32 s57, s57, {VI}")
    a("v_add_u32 v30, s57, v30")
    RB = 168
    for kk in range(4):
        B = RB + 16*kk
        for hf in range(2):
            a(f"ds_read_b64_tr_b16 v[{B+2*hf}:{B+2*hf+1}], v30 offset:{(32*kk+16*hf)*VI_P}")
        for ft in range(3):
            for hf in range(2):
                a(f"ds_read_b64_tr_b16 v[{B+4+4*ft+2*hf}:{B+4+4*ft+2*hf+1}], v29 offset:{(32*kk+16*hf)*PHK_P + 32*ft}")
    a("s_lshl_b32 s57, s59, 4")
    a("v_add_u32 v28, s57, v2")
    a("v_lshrrev_b32 v29, 2, v28")
    a("v_mul_u32_u24 v29, 2560, v29")
    a("v_lshl_add_u32 v29, v3, 8, v29")
    a("v_and_b32 v31, 3, v28")
    a("v_lshl_add_u32 v29, v31, 4, v29")
    a("s_lshl_b32 s57, s58, 6")
    a(f"s_add_u32 s57, s57, {KVS}")
    a("v_add_u32 v35, s57, v29")
    a("v_lshlrev_b32 v30, 4, v1")
    a(f"v_add_u32 v30, {KVDUMP}, v30")
    a("v_cmp_gt_u32 vcc, 21, v28")
    a("v_cndmask_b32 v35, v30, v35, vcc")
    a("v_cmp_gt_u32 vcc, 2, v3")
    a("v_cndmask_b32 v36, v30, v35, vcc")
    for kk in range(4):
        B = RB + 16*kk
        a(f"s_waitcnt lgkmcnt({min(15, 8*(3-kk))})")
        for ft in range(3):
            D = 64 + 4*ft
            c = "0" if kk == 0 else f"v[{D}:{D+3}]"
            a(f"v_mfma_f32_16x16x32_bf16 v[{D}:{D+3}], v[{B+4+4*ft}:{B+4+4*ft+3}], v[{B}:{B+3}], {c}")
    a("ds_write_b128 v35, v[64:67]")
    a("ds_write_b128 v35, v[68:71] offset:1024")
    a("ds_write_b128 v36, v[72:75] offset:2048")
    a("s_mov_b32 s60, 0")
    a("s_waitcnt vmcnt(0)")
    a.label(f"K1_POLL{ch}")
    a("v_readfirstlane_b32 s57, v61")
    a("s_cmp_lg_u32 s57, 0")
    a(f"s_cbranch_scc1 K1_POLLDONE{ch}")
    a("s_add_u32 s60, s60, 1")
    a("s_cmp_ge_u32 s60, 100000")
    a(f"s_cbranch_scc1 K1_POLLDONE{ch}")
    a("buffer_load_dword v61, v60, s[44:47], 0 offen sc0 sc1")
    a("s_waitcnt vmcnt(0)")
    a(f"s_branch K1_POLL{ch}")
    a.label(f"K1_POLLDONE{ch}")
    a("s_waitcnt lgkmcnt(0)")
    a("s_barrier")
    a("v_lshlrev_b32 v24, 2, v0")
    a(f"v_add_u32 v25, {KVS}, v24")
    for it in range(8):
        a(f"ds_read_b32 v{28+it}, v25 offset:{2048*it}")
    a("v_lshrrev_b32 v40, 4, v24")
    a("v_and_b32 v40, 3, v40")
    a(f"v_mov_b32 v41, {OOB}")
    a("v_cmp_eq_u32 vcc, 0, v40")
    a("v_cndmask_b32 v42, v41, v24, vcc")
    a("v_cmp_gt_u32 vcc, 512, v24")
    a("v_cndmask_b32 v43, v42, v24, vcc")
    for it in range(8):
        vo = 24 if it < 6 else (43 if it == 6 else 42)
        a(f"s_waitcnt lgkmcnt({7-it})")
        a(f"s_mov_b32 s57, {2048*it}")
        a(f"buffer_atomic_add_f32 v{28+it}, v{vo}, s[40:43], s57 offen")

def wphi_addr(a, base, R):
    a("v_lshrrev_b32 v26, 2, v1")
    a("v_and_b32 v26, 3, v26")
    a("v_and_b32 v27, 3, v1")
    a("v_mul_u32_u24 v28, 800, v3")
    a("v_mul_u32_u24 v29, 40, v26")
    a("v_add_u32 v28, v28, v29")
    a(f"v_add_u32 v28, {base}, v28")
    a(f"v_mov_b32 v29, {base+3200}")
    a("v_cmp_eq_u32 vcc, v27, v3")
    for i in range(5):
        a(f"v_add_u32 v30, {160*i}, v28")
        a(f"v_cndmask_b32 v{R+i}, v29, v30, vcc")

def pq_mfma(a, R, WB, F, D0):
    def wread(j, base):
        for i in range(5):
            a(f"ds_read_b64_tr_b16 v[{base+2*i}:{base+2*i+1}], v{R+i} offset:{8*j}")
    wread(0, WB)
    for j in range(5):
        base = WB + 12*(j & 1)
        if j < 4: wread(j+1, WB + 12*((j+1) & 1))
        a(f"s_waitcnt lgkmcnt({5 if j < 4 else 0})")
        D = D0 + 4*j
        a(f"v_mfma_f32_16x16x32_bf16 v[{D}:{D+3}], v[{base}:{base+3}], v[{F}:{F+3}], 0")
        a(f"v_mfma_f32_16x16x32_bf16 v[{D}:{D+3}], v[{base+4}:{base+7}], v[{F+4}:{F+7}], v[{D}:{D+3}]")
        a(f"v_mfma_f32_16x16x32_bf16 v[{D}:{D+3}], v[{base+8}:{base+11}], v[{F+8}:{F+11}], v[{D}:{D+3}]")

def w2f_prep(a):
    a("s_mul_i32 s69, s51, 5")
    a("s_add_u32 s69, s69, s52")
    a("s_sub_u32 s69, s69, 3")
    a("s_lshl_b32 s57, s48, 2")
    a("v_add_u32 v24, s57, v3")
    a("v_lshrrev_b32 v25, 3, v24")
    a("v_and_b32 v26, 7, v24")
    a("v_lshrrev_b32 v27, 2, v26")
    a("v_lshlrev_b32 v27, 4, v27")
    a("v_lshl_add_u32 v27, v25, 2, v27")
    a("v_and_b32 v28, 3, v26")
    a("v_add_u32 v32, v27, v28")
    a("v_mul_u32_u24 v31, 20, v25")
    a("s_mov_b32 s98, 0")
    for n in range(5):
        a(f"s_add_u32 s64, s69, {80*n}")
        a("s_mul_i32 s65, s64, 205")
        a("s_lshr_b32 s70, s65, 10")
        a("s_mul_i32 s65, s70, 5")
        a("s_sub_u32 s65, s64, s65")
        a("s_lshl_b32 s72, s65, 8")
        a("s_cmp_ge_u32 s64, 370")
        a(f"s_cselect_b32 s72, {OOB}, s72")
        a("s_lshl_b32 s76, s70, 5")
        a("v_add_u32 v27, s76, v32")
        a("s_sub_u32 s76, s70, 54")
        a("s_max_i32 s76, s76, 0")
        a("s_mul_i32 s77, s76, 205")
        a("s_lshr_b32 s77, s77, 10")
        a("s_mul_i32 s65, s77, 5")
        a("s_sub_u32 s65, s76, s65")
        a("s_lshl_b32 s65, s65, 3")
        a("v_add_u32 v28, s65, v26")
        a("v_cmp_lt_u32 vcc, 19, v28")
        a("v_cndmask_b32 v30, 0, 60, vcc")
        a("v_add3_u32 v29, v28, v30, v31")
        a("s_mul_i32 s77, s77, 160")
        a("v_add_u32 v29, s77, v29")
        a("s_cmp_ge_u32 s70, 54")
        a(f"s_cselect_b32 s65, {1 << n}, 0")
        a("s_cselect_b64 vcc, -1, 0")
        a("s_or_b32 s98, s98, s65")
        a("v_cndmask_b32 v27, v27, v29, vcc")
        a("v_mul_u32_u24 v27, 1280, v27")
        a("v_lshl_add_u32 v27, v2, 4, v27")
        a(f"v_add_u32 v{217+n}, s72, v27")
    a("v_lshrrev_b32 v26, 2, v1")
    a("v_and_b32 v26, 3, v26")
    a("v_and_b32 v27, 3, v1")
    a("v_lshl_add_u32 v28, v3, 3, v26")
    a("v_lshlrev_b32 v28, 8, v28")
    a("v_lshl_add_u32 v28, v27, 3, v28")
    a("s_lshl_b32 s57, s48, 5")
    a("v_add_u32 v211, s57, v28")
    a("v_lshlrev_b32 v216, 4, v1")

W2B = [PART, 26624, STAGE + 26624, 2*STAGE + 26624, PART]
def w2f_dma(n):
    return [f"s_bitcmp1_b32 s98, {n}", "s_cselect_b32 s76, s10, s16", "s_cselect_b32 s77, s11, s17", f"s_mov_b32 s78, {1728*640*2}", f"s_cselect_b32 s78, {640*640*2}, s78",
            "s_mov_b32 s79, 0x00020000", "s_lshl_b32 s57, s48, 10", f"s_add_u32 m0, s57, {W2B[n]}", f"T:buffer_load_dwordx4 v{217+n}, s[76:79], 0 offen lds"]

def w2f_out(n):
    return [f"v_add_u32 v210, {W2B[n]}, v211", "ds_read_b64_tr_b16 v[212:213], v210", "ds_read_b64_tr_b16 v[214:215], v210 offset:1024",
            f"s_add_u32 s64, s69, {80*n}", "s_lshl_b32 s65, s64, 3", "s_add_u32 s65, s65, s48", "s_lshl_b32 s65, s65, 10", f"s_add_u32 s65, s65, {WF_OFF}",
            "s_cmp_ge_u32 s64, 370", f"s_cselect_b32 s65, {OOB}, s65", "s_waitcnt lgkmcnt(0)", f"buffer_store_dwordx4 v[212:215], v216, s[32:35], s65 offen{STM}", "s_nop 1"]

def k1_epi_h(a, ro):
    NP = 4 if ro == 2 else 3
    a(f"s_mov_b32 s56, {LOG2E}")
    a(f"s_mov_b32 s57, {LOG2E}")
    a("s_lshl_b32 s60, s51, 3")
    a("s_lshl_b32 s61, s54, 1")
    a("s_add_u32 s60, s60, s61")
    a("s_mul_i32 s60, s60, 54")
    a("s_mul_i32 s61, s52, 3")
    a("s_add_u32 s61, s61, 3")
    a("s_lshl_b32 s62, s52, 2")
    a("s_cmp_lt_u32 s52, 3")
    a("s_cselect_b32 s61, s62, s61")
    a("s_lshl_b32 s61, s61, 1")
    a("s_add_u32 s60, s60, s61")
    a(f"s_mul_i32 s61, s55, {NP}")
    a("s_add_u32 s60, s60, s61")
    a("s_lshl_b32 s60, s60, 10")
    a(f"s_add_u32 s61, s60, {54*1024}")
    a("v_lshlrev_b32 v44, 4, v1")
    for pi in range(NP):
        for rt in range(2):
            prs = [ACC + 8*(2*pi) + 4*rt, ACC + 8*(2*pi) + 4*rt + 2, ACC + 8*(2*pi+1) + 4*rt, ACC + 8*(2*pi+1) + 4*rt + 2]
            T = 128 + 8*((2*pi+rt) & 1)
            for i, v in enumerate(prs): a(f"v_pk_mul_f32 v[{T+2*i}:{T+2*i+1}], v[{v}:{v+1}], s[56:57] op_sel_hi:[1,0]")
            for i in range(8): a(f"v_exp_f32 v{T+i}, -v{T+i}")
            for i in range(4): a(f"v_pk_add_f32 v[{T+2*i}:{T+2*i+1}], v[{T+2*i}:{T+2*i+1}], 1.0 op_sel_hi:[1,0]")
            for i in range(8): a(f"v_rcp_f32 v{T+i}, v{T+i}")
            for i, v in enumerate(prs): a(f"v_pk_mul_f32 v[{v}:{v+1}], v[{v}:{v+1}], v[{T+2*i}:{T+2*i+1}]")
            O = 160 + 4*(2*pi+rt)
            for i, v in enumerate(prs): a(f"v_cvt_pk_bf16_f32 v{O+i}, v{v}, v{v+1}")
            a(f"buffer_store_dwordx4 v[{O}:{O+3}], v44, s[32:35], s{60+rt} offen offset:{1024*pi}{STM}")

K2_LDS = 160 * 1024
def spin(a, name, loads, cond):
    a("s_mov_b32 s68, 0")
    a.label(f"{name}")
    for x in loads: a(x)
    a("s_waitcnt vmcnt(0)")
    for x in cond: a(x)
    a(f"s_cbranch_scc1 {name}_D")
    a("s_add_u32 s68, s68, 1")
    a("s_cmp_ge_u32 s68, 100000")
    a(f"s_cbranch_scc1 {name}_D")
    a("s_sleep %d" % opt("sl", 10))
    a(f"s_branch {name}")
    a.label(f"{name}_D")

def phase2(a):
    stamp(a, 6)
    a("s_waitcnt vmcnt(0) lgkmcnt(0)")
    a("s_barrier")
    a("s_cmp_eq_u32 s48, 0")
    a("s_cbranch_scc0 P2_NSIG")
    a("v_mov_b32 v25, 1")
    a(f"s_mov_b32 s58, {CNT_OFF}")
    a("s_cmp_eq_u32 s53, 0")
    a("s_cbranch_scc1 P2_SQ")
    a("s_lshl_b32 s57, s51, 7")
    a("v_mov_b32 v24, s57")
    a("v_lshlrev_b32 v26, 7, v1")
    a("s_mov_b64 exec, 1")
    a("buffer_atomic_add v25, v24, s[32:35], s58 offen")
    a("s_branch P2_SE")
    a.label("P2_SQ")
    a("s_lshl_b32 s57, s52, 7")
    a("s_add_u32 s57, s57, 2048")
    a("v_mov_b32 v24, s57")
    a("s_mov_b64 exec, 1")
    a("buffer_atomic_add v25, v24, s[32:35], s58 offen")
    a.label("P2_SE")
    a("s_mov_b64 exec, -1")
    a.label("P2_NSIG")
    a("s_and_b32 s49, s2, 7")
    a("s_lshr_b32 s50, s2, 3")
    a("s_and_b32 s51, s49, 1")
    a("s_lshl_b32 s51, s51, 4")
    a("s_bfe_u32 s52, s49, 0x10001")
    a("s_lshl_b32 s52, s52, 3")
    a("s_add_u32 s51, s51, s52")
    a("s_and_b32 s52, s50, 7")
    a("s_add_u32 s51, s51, s52")
    a("s_lshr_b32 s52, s49, 2")
    a("s_lshl_b32 s52, s52, 2")
    a("s_lshr_b32 s53, s50, 3")
    a("s_add_u32 s52, s52, s53")
    srd(a, 28, 18, 19, 2621440)
    a("v_lshlrev_b32 v5, 4, v1")
    a(f"v_mov_b32 v23, {OOB}")
    a("s_mul_i32 s56, s52, 5120")
    a(f"s_add_u32 s56, s56, {WF_OFF}")
    a("v_add_u32 v10, s56, v5")
    a("v_add_u32 v11, 4096, v10")
    a("s_mul_i32 s66, s48, 20480")
    a("v_lshrrev_b32 v24, 1, v2")
    a("v_xor_b32 v24, v24, v3")
    a("v_and_b32 v24, 3, v24")
    a("v_lshl_add_u32 v24, v2, 2, v24")
    a("v_lshlrev_b32 v24, 4, v24")
    a("v_add_u32 v13, s66, v24")
    a("v_lshrrev_b32 v14, 2, v1")
    a("v_and_b32 v15, 3, v1")
    a("v_lshrrev_b32 v24, 1, v14")
    a("v_xor_b32 v24, v24, v15")
    a("v_and_b32 v24, 3, v24")
    a("v_lshl_add_u32 v24, v14, 2, v24")
    a("v_lshlrev_b32 v12, 4, v24")
    a("s_cmp_ge_u32 s48, 4")
    a("s_cbranch_scc1 P2_OW")
    a(f"s_mul_i32 s55, s51, {4*54*1024}")
    for aa in range(4):
        a(f"s_add_u32 s56, s55, {aa*54*1024 + HF_OFF}")
        a(f"v_add_u32 v{6+aa}, s56, v5")
    a("s_mul_i32 s53, s48, 14")
    a("s_cmp_eq_u32 s48, 3")
    a("s_cselect_b32 s57, 1, 0")
    a("s_sub_u32 s53, s53, s57")
    a("s_lshl_b32 s60, s53, 10")
    a("s_mul_i32 s61, s53, 40960")
    a("s_lshr_b32 s62, s48, 1")
    a("s_lshr_b32 s57, s51, 1")
    a("s_lshl_b32 s57, s57, 7")
    a(f"s_add_u32 s57, s57, {CNT_OFF}")
    a("v_mov_b32 v24, s57")
    spin(a, "P2_SF", ["buffer_load_dwordx2 v[26:27], v24, s[32:35], 0 offen sc0 sc1"],
         ["v_readfirstlane_b32 s57, v26", "v_readfirstlane_b32 s58, v27", "s_mul_i32 s57, s57, 10", "s_min_u32 s57, s57, s58", "s_cmp_ge_u32 s57, 80"])
    a("s_branch P2_GEMM")
    a.label("P2_OW")
    a("s_setprio 3")
    WP = 0; KVF = 4096; ZR = 12288
    a("s_mul_i32 s56, s52, 3200")
    for k in range(4):
        a(f"v_add_u32 v24, {1024*k}, v5")
        a("v_add_u32 v25, s56, v24")
        a("v_cmp_gt_u32 vcc, 3200, v24")
        a("v_cndmask_b32 v25, v23, v25, vcc")
        a(f"buffer_load_dwordx4 v[{144+4*k}:{147+4*k}], v25, s[36:39], 0 offen")
    a("v_add_u32 v16, s66, v5")
    for z in range(4): a(f"v_mov_b32 v{160+z}, 0")
    for k in range(8): a(f"ds_write_b128 v16, v[160:163] offset:{ZR + 1024*k}")
    a("s_waitcnt vmcnt(0)")
    for k in range(4): a(f"ds_write_b128 v16, v[{144+4*k}:{147+4*k}] offset:{WP + 1024*k}")
    a("s_lshr_b32 s57, s51, 1")
    a("s_lshl_b32 s57, s57, 7")
    a(f"s_add_u32 s57, s57, {CNT_OFF + 8}")
    a("v_mov_b32 v24, s57")
    spin(a, "P2_SQ2", ["buffer_load_dword v25, v24, s[32:35], 0 offen sc0 sc1"], ["v_readfirstlane_b32 s57, v25", "s_cmp_ge_u32 s57, 8"])
    a("s_lshl_b32 s64, s51, 2")
    a("s_sub_u32 s57, s48, 4")
    a("s_add_u32 s64, s64, s57")
    a("s_lshl_b32 s65, s64, 3")
    a("s_add_u32 s65, s65, s52")
    a("s_mul_i32 s65, s65, 3072")
    a(f"s_add_u32 s65, s65, {QF_OFF}")
    for m in range(3):
        a(f"buffer_load_dwordx4 v[{208+4*m}:{211+4*m}], v5, s[32:35], s65 offen offset:{1024*m} sc0 sc1")
    a("v_lshrrev_b32 v26, 2, v1")
    a("v_and_b32 v26, 3, v26")
    a("v_and_b32 v27, 3, v1")
    a("v_mul_u32_u24 v28, 800, v3")
    a("v_mul_u32_u24 v29, 40, v26")
    a("v_add3_u32 v28, v28, v29, s66")
    a(f"v_add_u32 v29, {WP+3200}, v0" if False else f"v_mov_b32 v29, {WP+3200}")
    a("v_add_u32 v29, s66, v29")
    a("v_cmp_eq_u32 vcc, v27, v3")
    for i in range(5):
        a(f"v_add_u32 v30, {WP+160*i}, v28")
        a(f"v_cndmask_b32 v{31+i}, v29, v30, vcc")
    a("v_lshrrev_b32 v24, 2, v2")
    a("v_lshlrev_b32 v25, 4, v2")
    a(f"v_add_u32 v25, {KVF}, v25")
    a(f"v_mov_b32 v28, {ZR}")
    a("v_cmp_eq_u32 vcc, v24, v3")
    a("v_cndmask_b32 v17, v28, v25, vcc")
    a("v_add_u32 v17, s66, v17")
    WB = 144
    a("s_waitcnt vmcnt(0) lgkmcnt(0)")
    for z in (WB+10, WB+11, WB+22, WB+23): a(f"v_mov_b32 v{z}, 0")
    a(f"s_mov_b32 s56, {LOG2E}")
    a(f"s_mov_b32 s57, {LOG2E}")
    a("s_mul_i32 s65, s64, 20")
    a("s_lshr_b32 s67, s52, 1")
    a("s_mul_i32 s67, s67, 5")
    a("s_add_u32 s65, s65, s67")
    a("s_lshl_b32 s65, s65, 10")
    a(f"s_add_u32 s65, s65, {OF_OFF}")
    pq_mfma(a, 31, WB, 208, 64)
    softmax(a, 64, 84, 104, tmp=40)
    a("s_lshl_b32 s57, s52, 7")
    a(f"s_add_u32 s57, s57, {CNT_OFF + 2048}")
    a("v_mov_b32 v24, s57")
    spin(a, "P2_SK", ["buffer_load_dword v25, v24, s[32:35], 0 offen sc0 sc1"], ["v_readfirstlane_b32 s57, v25", "s_cmp_ge_u32 s57, 16"])
    a("v_lshlrev_b32 v24, 9, v3")
    a("v_lshl_add_u32 v20, v2, 4, v24")
    a(f"s_mul_i32 s62, s52, {KVQ}")
    a(f"s_add_u32 s62, s62, {KV_OFF}")
    a("v_add_u32 v24, 14336, v20")
    a(f"v_cmp_gt_u32 vcc, {KVQ}, v24")
    a("v_cndmask_b32 v21, v23, v20, vcc")
    for gq in range(8):
        vo = 20 if gq < 7 else 21
        a(f"buffer_load_dwordx4 v[{144+8*gq}:{147+8*gq}], v{vo}, s[32:35], s62 offen sc0 sc1")
        a(f"buffer_load_dwordx4 v[{148+8*gq}:{151+8*gq}], v{vo}, s[32:35], s62 offen offset:256 sc0 sc1")
        a("s_add_u32 s62, s62, 2048")
    a("s_waitcnt vmcnt(0)")
    for gq in range(8):
        for d in range(4):
            a(f"v_cvt_pk_bf16_f32 v{144+8*gq+d}, v{144+8*gq+2*d}, v{144+8*gq+2*d+1}")
        a(f"ds_write_b128 v16, v[{144+8*gq}:{147+8*gq}] offset:{KVF + 1024*gq}")
    a("s_waitcnt lgkmcnt(0)")
    AB = [168, 172, 176, 180, 184, 188, 192, 196, 200, 204]
    def kread(j):
        for m in range(5):
            b = AB[5*(j & 1) + m]
            a(f"ds_read_b128 v[{b}:{b+3}], v17 offset:{256*(5*j+m)}")
    kread(0)
    for j in range(6):
        if j < 5: kread(j + 1)
        a(f"s_waitcnt lgkmcnt({5 if j < 5 else 0})")
        D = 64 + 4*j
        for m in range(5):
            b = AB[5*(j & 1) + m]
            c = "0" if m == 0 else f"v[{D}:{D+3}]"
            a(f"v_mfma_f32_16x16x32_bf16 v[{D}:{D+3}], v[{b}:{b+3}], v[{104+4*m}:{107+4*m}], {c}")
    a("v_add_f32 v84, 0x358637bd, v84")
    a("v_rcp_f32 v84, v84")
    for i in range(0, 20, 2):
        a(f"v_pk_mul_f32 v[{64+i}:{65+i}], v[{64+i}:{65+i}], v[84:85] op_sel_hi:[1,0]")
    for i in range(10):
        a(f"v_cvt_pk_bf16_f32 v{124+i}, v{64+2*i}, v{65+2*i}")
    a("s_and_b32 s67, s52, 1")
    a("s_cmp_eq_u32 s67, 0")
    a("s_cbranch_scc0 P2_OODD")
    a("buffer_store_dwordx4 v[124:127], v5, s[32:35], s65 offen sc0 sc1")
    a("buffer_store_dwordx4 v[128:131], v5, s[32:35], s65 offen offset:1024 sc0 sc1")
    a("buffer_store_dwordx2 v[132:133], v5, s[32:35], s65 offen offset:2048 sc0 sc1")
    a("s_branch P2_OST")
    a.label("P2_OODD")
    a("buffer_store_dwordx2 v[124:125], v5, s[32:35], s65 offen offset:2056 sc0 sc1")
    a("buffer_store_dwordx4 v[126:129], v5, s[32:35], s65 offen offset:3072 sc0 sc1")
    a("s_add_u32 s67, s65, 4096")
    a("buffer_store_dwordx4 v[130:133], v5, s[32:35], s67 offen sc0 sc1")
    a.label("P2_OST")
    a("s_waitcnt vmcnt(0)")
    a("s_lshl_b32 s57, s51, 7")
    a(f"s_add_u32 s57, s57, {CNT_OFF + 3072}")
    a("v_mov_b32 v24, s57")
    a("v_mov_b32 v25, 1")
    a("s_mov_b64 exec, 1")
    a("buffer_atomic_add v25, v24, s[32:35], 0 offen")
    a("s_mov_b64 exec, -1")
    a(f"s_mul_i32 s55, s51, {4*20*1024}")
    for aa in range(4):
        a(f"s_add_u32 s56, s55, {aa*20*1024 + OF_OFF}")
        a(f"v_add_u32 v{6+aa}, s56, v5")
    a("s_sub_u32 s53, s48, 4")
    a("s_mul_i32 s53, s53, 5")
    a("s_lshl_b32 s60, s53, 10")
    a("s_add_u32 s53, s53, 54")
    a("s_mul_i32 s61, s53, 40960")
    a("s_mov_b32 s62, 0")
    a("s_lshr_b32 s57, s51, 1")
    a("s_lshl_b32 s57, s57, 7")
    a(f"s_add_u32 s57, s57, {CNT_OFF + 4}")
    a("v_mov_b32 v26, s57")
    spin(a, "P2_SW", ["buffer_load_dword v27, v26, s[32:35], 0 offen sc0 sc1"], ["v_readfirstlane_b32 s58, v27", "s_cmp_ge_u32 s58, 80"])
    for m in range(5):
        for tt_ in range(4): a(f"buffer_load_dwordx4 v[{144+20*m+4*tt_}:{147+20*m+4*tt_}], v10, s[32:35], s61 offen offset:{1024*tt_} sc1")
        a(f"buffer_load_dwordx4 v[{160+20*m}:{163+20*m}], v11, s[32:35], s61 offen sc1")
        a("s_add_u32 s61, s61, 40960")
    spin(a, "P2_SO", ["buffer_load_dword v25, v24, s[32:35], 0 offen sc0 sc1"], ["v_readfirstlane_b32 s57, v25", "s_cmp_ge_u32 s57, 32"])
    a.label("P2_GEMM")
    stamp(a, 7)
    AC = 64
    FB = [144, 180, 216, 28]
    vm = []
    def issue_list(g):
        P = FB[g % 4]
        L = []
        pre = []
        if g > 0: pre = ["s_add_u32 s60, s60, 1024", "s_add_u32 s61, s61, 40960"]
        if g == 13: pre += ["s_cmp_eq_u32 s62, 1", f"s_cselect_b32 s60, {OOB}, s60", f"s_cselect_b32 s61, {OOB}, s61"]
        for t in range(4): L.append(f"buffer_load_dwordx4 v[{P+16+4*t}:{P+19+4*t}], v10, s[32:35], s61 offen offset:{1024*t} sc1")
        L.append(f"buffer_load_dwordx4 v[{P+32}:{P+35}], v11, s[32:35], s61 offen sc1")
        for aa in range(4): L.append(f"buffer_load_dwordx4 v[{P+4*aa}:{P+4*aa+3}], v{6+aa}, s[32:35], s60 offen sc1")
        return [(pre + [L[0]], g)] + [([x], g) for x in L[1:]]
    def play(gr):
        for t in gr[0]: a(t)
        vm.append(gr[1])
    def gemm(NST, tagp):
        del vm[:]
        for g in range(3):
            for gr in issue_list(g): play(gr)
        for g in range(NST):
            last = max(i for i, x in enumerate(vm) if x == g)
            a(f"s_waitcnt vmcnt({len(vm) - 1 - last})")
            P = FB[g % 4]
            lg = issue_list(g + 3) if g + 3 < NST else []
            k2 = 0; nm = 0
            for t in range(5):
                for aa in range(4):
                    ac = AC + 16*t + 4*aa
                    cc = "0" if g == 0 else f"v[{ac}:{ac+3}]"
                    a(f"v_mfma_f32_16x16x32_bf16 v[{ac}:{ac+3}], v[{P+16+4*t}:{P+19+4*t}], v[{P+4*aa}:{P+4*aa+3}], {cc}")
                    nm += 1
                    want = (len(lg) * nm + 19) // 20
                    while k2 < min(want, len(lg)):
                        play(lg[k2]); k2 += 1
    a("s_cmp_ge_u32 s48, 4")
    a("s_cbranch_scc1 P2_G5")
    gemm(14, "f")
    a("s_branch P2_GE")
    a.label("P2_G5")
    OB = [28, 44, 244]
    def oreg(m, aa):
        if m < 2: return OB[m] + 4*aa
        if m == 2: return (244, 248, 252, 60)[aa]
        return OB[m - 3] + 4*aa
    def oload(m):
        for aa in range(4):
            r = oreg(m, aa)
            a(f"buffer_load_dwordx4 v[{r}:{r+3}], v{6+aa}, s[32:35], s60 offen offset:{1024*m if m < 4 else 0} sc1" if m < 4 else f"buffer_load_dwordx4 v[{r}:{r+3}], v{6+aa}, s[32:35], s63 offen sc1")
    a("s_add_u32 s63, s60, 4096")
    for m in range(3): oload(m)
    for m in range(5):
        a(f"s_waitcnt vmcnt({(8, 8, 8, 4, 0)[m]})")
        for tt_ in range(5):
            for aa in range(4):
                ac = AC + 16*tt_ + 4*aa
                cc = "0" if m == 0 else f"v[{ac}:{ac+3}]"
                r = oreg(m, aa)
                a(f"v_mfma_f32_16x16x32_bf16 v[{ac}:{ac+3}], v[{144+20*m+4*tt_}:{147+20*m+4*tt_}], v[{r}:{r+3}], {cc}")
        if m < 2: oload(m + 3)
    a.label("P2_GE")
    a("s_lshl_b32 s55, s51, 6")
    a("s_and_b32 s56, s48, 3")
    a("s_lshl_b32 s56, s56, 4")
    a("s_add_u32 s55, s55, s56")
    a("v_add_u32 v24, s55, v14")
    a("v_mul_u32_u24 v24, 1280, v24")
    a("v_lshl_add_u32 v24, v15, 3, v24")
    a("s_mul_i32 s56, s52, 160")
    a("v_add_u32 v22, s56, v24")
    XP = 28
    for t in range(5): a(f"buffer_load_dwordx2 v[{XP+2*t}:{XP+1+2*t}], v22, s[24:27], 0 offen offset:{32*t}")
    for aa in range(4):
        for t in range(5):
            a(f"ds_write_b128 v13, v[{AC+16*t+4*aa}:{AC+16*t+4*aa+3}] offset:{5120*aa + 1024*t}")
    a("s_waitcnt lgkmcnt(0)")
    a("s_barrier")
    a("s_cmp_ge_u32 s48, 4")
    a("s_cbranch_scc1 P2_DONE")
    a("s_mul_i32 s55, s48, 5120")
    a("v_add_u32 v4, s55, v12")
    a("v_add_u32 v21, 61440, v4")
    a("v_add_u32 v20, 122880, v4")
    for k in range(8):
        B = 64 + 20*k
        va = (4, 21, 20)[k // 3]
        for t in range(5):
            a(f"ds_read_b128 v[{B+4*t}:{B+4*t+3}], v{va} offset:{20480*(k % 3) + 1024*t}")
    for k in (1, 2, 3, 5, 6, 7):
        a(f"s_waitcnt lgkmcnt({min(15, 5*(7-k))})")
        D_ = 64 if k < 4 else 144
        for i in range(0, 20, 2):
            a(f"v_pk_add_f32 v[{D_+i}:{D_+i+1}], v[{D_+i}:{D_+i+1}], v[{64+20*k+i}:{65+20*k+i}]")
    a(f"s_mov_b32 s56, {LOG2E}")
    a(f"s_mov_b32 s57, {LOG2E}")
    FIN = 64; S_ = 144; T = 84
    for i in range(0, 20, 2): a(f"v_pk_mul_f32 v[{T+i}:{T+i+1}], v[{FIN+i}:{FIN+i+1}], s[56:57] op_sel_hi:[1,0]")
    for i in range(20): a(f"v_exp_f32 v{T+i}, -v{T+i}")
    for i in range(0, 20, 2): a(f"v_pk_add_f32 v[{T+i}:{T+i+1}], v[{T+i}:{T+i+1}], 1.0 op_sel_hi:[1,0]")
    for i in range(20): a(f"v_rcp_f32 v{T+i}, v{T+i}")
    for i in range(0, 20, 2): a(f"v_pk_mul_f32 v[{FIN+i}:{FIN+i+1}], v[{FIN+i}:{FIN+i+1}], v[{T+i}:{T+i+1}]")
    a("s_waitcnt vmcnt(0)")
    for t in range(5):
        for d in range(2):
            xr = XP + 2*t + d
            a(f"v_lshlrev_b32 v{T+20}, 16, v{xr}")
            a(f"v_and_b32 v{T+21}, 0xffff0000, v{xr}")
            i = 4*t + 2*d
            a(f"v_pk_fma_f32 v[{T+20}:{T+21}], v[{S_+i}:{S_+i+1}], v[{FIN+i}:{FIN+i+1}], v[{T+20}:{T+21}]")
            a(f"v_cvt_pk_bf16_f32 v{T+22+2*t+d}, v{T+20}, v{T+21}")
        a(f"buffer_store_dwordx2 v[{T+22+2*t}:{T+23+2*t}], v22, s[28:31], 0 offen offset:{32*t}")
    a.label("P2_DONE")
    if DIAG:
        a("s_waitcnt vmcnt(0)")
        stamp(a, 1)
    dump_stamps(a, 8, 0, 22, 23)

def desc(name, vgpr, sgpr=100):
    acc = min((vgpr + 3) // 4 * 4, 256)
    return f"""
.p2align 6
.amdhsa_kernel {name}
  .amdhsa_next_free_vgpr {vgpr}
  .amdhsa_next_free_sgpr {sgpr}
  .amdhsa_accum_offset {acc}
  .amdhsa_group_segment_fixed_size 0
  .amdhsa_kernarg_size 80
  .amdhsa_user_sgpr_count 2
  .amdhsa_user_sgpr_kernarg_segment_ptr 1
  .amdhsa_system_sgpr_workgroup_id_x 1
.end_amdhsa_kernel
"""

if __name__ == "__main__":
    k1 = gen_k1()
    hdr = f"""; generated by dev/gen8.py
; @launch kernel=k1_kernel grid=(256,1,1) block=(512,1,1) lds={K1_LDS}
.amdgcn_target "amdgcn-amd-amdhsa--gfx950"
.text
"""
    out = hdr + k1.text() + '.section .rodata,"a"\n' + desc("k1_kernel", 256)
    path = sys.argv[1] if len(sys.argv) > 1 and not sys.argv[1].startswith("--") else f"cdna_kernels/{NAME}.s"
    open(path, "w").write(out)
    print("written", path, len(out), "nops", k1.nops)
```

```python
import sys
from asmlib import Asm

NAME = "recurrent_scan__linear_kernel_hedgehog__dense_activation_silu__prompt"
HF_OFF = 0
QF_OFF = 128 * 54 * 1024
OF_OFF = QF_OFF + 128 * 8 * 3 * 1024
WF_OFF = OF_OFF + 128 * 20 * 1024
KV_OFF = WF_OFF + 74 * 40 * 1024
KVQ = 15360
ST_OFF = KV_OFF + 8 * KVQ
CP_OFF = ST_OFF + 16384
CNT_OFF = CP_OFF + 262144
WS_USED = CNT_OFF + 8192
OOB = 0x40000000
LOG2E = 0x3fb8aa3b
XF = [x[2:] for x in sys.argv if x.startswith("--")]
STM = " sc1"
LDM = "" if "plain" in XF else " sc1"
DIAG = "diag" in XF
DIAG_OFF = 16 << 20
def opt(name, dflt):
    v = [x[len(name):] for x in XF if x.startswith(name) and x[len(name):].isdigit()]
    return int(v[0]) if v else dflt

NS = 3
AOFF = 34816
STAGE = 51200
MISC = NS * STAGE
CSUM = MISC
SDUMP = MISC + 1024
PART = MISC + 2048
K1_LDS = 163840
PHK = 0; PHK_P = 352
VI = 128 * PHK_P; VI_P = 224
WPHI = VI + 128 * VI_P
KVS = WPHI + 4096
KVDUMP = KVS + 15360
KX = KVDUMP + 4096
W2S = 0

def stamp(a, i):
    if not DIAG: return
    a(f"s_memtime s[{80+2*i}:{81+2*i}]")
    a("s_waitcnt lgkmcnt(0)")
def dump_stamps(a, n, kidx, ws_lo, ws_hi):
    if not DIAG: return
    a("s_memrealtime s[96:97]")
    a("s_waitcnt lgkmcnt(0)")
    a(f"s_mov_b32 s76, s{ws_lo}")
    a(f"s_mov_b32 s77, s{ws_hi}")
    a(f"s_mov_b32 s78, {DIAG_OFF + (1 << 20)}")
    a("s_mov_b32 s79, 0x00020000")
    a("s_lshl_b32 s57, s2, 3")
    a("s_add_u32 s57, s57, s48")
    a("s_lshl_b32 s57, s57, 6")
    a(f"s_add_u32 s57, s57, {DIAG_OFF + kidx * 0x40000}")
    a("v_mov_b32 v250, s57")
    for i in range(n):
        a(f"v_mov_b32 v251, s{80+2*i}")
        a(f"buffer_store_dword v251, v250, s[76:79], 0 offen offset:{4*i}")
    a("v_mov_b32 v251, s96")
    a(f"buffer_store_dword v251, v250, s[76:79], 0 offen offset:60")

def srd(a, d, lo, hi, size):
    a(f"s_mov_b32 s{d}, s{lo}")
    a(f"s_mov_b32 s{d+1}, s{hi}")
    a(f"s_mov_b32 s{d+2}, {size}")
    a(f"s_mov_b32 s{d+3}, 0x00020000")
def bf16_round(a, v):
    a(f"v_cvt_pk_bf16_f32 v{v}, v{v}, v{v}")
    a(f"v_lshlrev_b32 v{v}, 16, v{v}")
def emit(a, x):
    if x.startswith("LABEL "): a.label(x[6:])
    else: a(x)

ACC = 64
XA, XB, YA, YB = 128, 136, 168, 176
DC = 208; DS = 216; ONES = 224
ASET = [(228, 229, 230, 231), (232, 233, 234, 235), (236, 237, 238, 239)]
VB = 4
ROLES = {
    0: ([160 + 8*j for j in range(5)] + [320 + 8*j for j in range(3)], 480, 30, 4),
    1: ([8*j for j in range(5)] + [320 + 8*j for j in (3, 4)], 480, 30, 4),
    2: ([32*t for t in range(8)], 544, 34, 5),
    3: ([32*t for t in range(6)], 416, 26, 4),
}
TD = opt("td", 0)
NPRO = opt("np", 2)

def gen_k1():
    a = Asm()
    a.raw(f".globl k1_kernel\n.p2align 8\n.type k1_kernel,@function\nk1_kernel:")
    a("s_cmp_ge_u32 s2, 256")
    a("s_cbranch_scc1 K1_END")
    stamp(a, 0)
    a("s_load_dwordx16 s[4:19], s[0:1], 0")
    a("s_load_dwordx4 s[20:23], s[0:1], 64")
    a("v_and_b32 v1, 63, v0")
    a("v_and_b32 v2, 15, v0")
    a("v_lshrrev_b32 v3, 4, v1")
    a("v_lshrrev_b32 v24, 6, v0")
    a("v_readfirstlane_b32 s48, v24")
    a("s_and_b32 s49, s2, 7")
    a("s_lshr_b32 s50, s2, 3")
    a("s_and_b32 s51, s49, 1")
    a("s_lshl_b32 s51, s51, 3")
    a("s_and_b32 s66, s50, 7")
    a("s_add_u32 s51, s51, s66")
    a("s_lshr_b32 s52, s49, 1")
    a("s_lshr_b32 s67, s50, 3")
    a("s_lshl_b32 s52, s52, 1")
    a("s_and_b32 s54, s67, 1")
    a("s_add_u32 s52, s52, s54")
    a("s_lshr_b32 s53, s67, 1")
    a("s_and_b32 s54, s48, 3")
    a("s_lshr_b32 s55, s48, 2")
    a("s_mul_i32 s58, s52, 3")
    a("s_add_u32 s58, s58, 3")
    a("s_lshl_b32 s57, s52, 2")
    a("s_cmp_lt_u32 s52, 3")
    a("s_cselect_b32 s58, s57, s58")
    a("s_cselect_b32 s68, 2, 3")
    a("s_cmp_eq_u32 s53, 0")
    a("s_cselect_b32 s68, s55, s68")
    a("s_mov_b32 s59, 30\ns_mov_b32 s64, 30\ns_movk_i32 s65, 480\ns_movk_i32 s69, 2185\ns_mov_b32 s70, 4")
    a("s_cmp_eq_u32 s68, 2")
    a("s_cselect_b32 s59, 32, s59\ns_cselect_b32 s64, 34, s64\ns_cselect_b32 s65, 544, s65\ns_cselect_b32 s69, 1928, s69\ns_cselect_b32 s70, 5, s70")
    a("s_cmp_eq_u32 s68, 3")
    a("s_cselect_b32 s59, 24, s59\ns_cselect_b32 s64, 26, s64\ns_cselect_b32 s65, 416, s65\ns_cselect_b32 s69, 2521, s69")
    a("s_mul_i32 s62, s52, 160")
    a("s_lshl_b32 s57, s58, 7")
    a("s_movk_i32 s63, 3840")
    a("s_cmp_eq_u32 s53, 0")
    a("s_cselect_b32 s62, s62, s57")
    a("s_cselect_b32 s63, s63, 3456")
    a(f"v_mov_b32 v13, {OOB}")
    a("s_mul_i32 s72, s48, s70")
    for jj in range(5):
        a(f"s_add_u32 s57, s72, {jj}")
        a("s_lshl_b32 s57, s57, 6")
        a("v_add_u32 v24, s57, v1")
        a("v_mul_u32_u24 v25, s69, v24")
        a("v_lshrrev_b32 v25, 16, v25")
        a("v_mul_u32_u24 v26, s64, v25")
        a("v_sub_u32 v26, v24, v26")
        a("v_lshrrev_b32 v27, 1, v25")
        a("v_and_b32 v27, 4, v27")
        a("v_xor_b32 v25, v25, v27")
        a("v_mul_u32_u24 v25, s63, v25")
        a("v_lshl_add_u32 v25, v26, 4, v25")
        a("v_add_u32 v25, s62, v25")
        a("v_mul_u32_u24 v27, 26, v26")
        a("v_lshrrev_b32 v27, 8, v27")
        a("v_mul_u32_u24 v27, 1120, v27")
        a("s_cmp_eq_u32 s53, 0")
        a("s_cselect_b64 vcc, -1, 0")
        a("v_cndmask_b32 v27, 0, v27, vcc")
        a("v_add_u32 v25, v25, v27")
        a("v_cmp_gt_u32 vcc, s59, v26")
        a(f"v_cndmask_b32 v{VB+jj}, v13, v25, vcc")
    a("v_lshrrev_b32 v24, 3, v1")
    a("v_xor_b32 v25, v24, v1")
    a("v_and_b32 v25, 7, v25")
    a("v_mul_u32_u24 v24, 1280, v24")
    a("v_lshl_add_u32 v24, v25, 4, v24")
    a("s_lshl_b32 s57, s51, 3")
    a("s_add_u32 s57, s57, s48")
    a("s_mul_i32 s57, s57, 20480")
    a("v_add_u32 v9, s57, v24")
    a("v_add_u32 v10, 10240, v9")
    a("v_and_b32 v24, 1, v1")
    a("v_mul_u32_u24 v24, 156, v24")
    a("v_lshrrev_b32 v25, 1, v1")
    a("v_mul_u32_u24 v25, 1280, v25")
    a("v_add_u32 v24, v24, v25")
    a("v_lshlrev_b32 v25, 7, v1")
    a("s_cmp_eq_u32 s53, 0")
    a("s_cselect_b64 vcc, -1, 0")
    a("v_cndmask_b32 v24, v25, v24, vcc")
    a("s_lshl_b32 s57, s66, 3")
    a("s_add_u32 s57, s57, s48")
    a("s_mul_i32 s57, s57, s63")
    a("s_add_u32 s57, s57, s62")
    a("v_add_u32 v11, s57, v24")
    a("s_lshl_b32 s57, s67, 3")
    a("s_add_u32 s57, s57, s48")
    a("s_lshl_b32 s57, s57, 2")
    a("s_lshl_b32 s61, s51, 7")
    a("s_add_u32 s57, s57, s61")
    a("v_add_u32 v24, s57, v1")
    a("v_mul_u32_u24 v12, 1280, v24")
    a("s_lshl_b32 s57, s53, 3")
    a("s_add_u32 s71, s57, s52")
    a("s_lshl_b32 s57, s71, 3")
    a("s_add_u32 s57, s57, s48")
    a("s_lshl_b32 s61, s51, 7")
    a("s_add_u32 s49, s57, s61")
    a("s_mul_i32 s57, s49, 1280")
    a("v_lshlrev_b32 v24, 5, v1")
    a("v_add_u32 v24, s57, v24")
    a("v_cmp_gt_u32 vcc, 40, v1")
    a("v_cndmask_b32 v14, v13, v24, vcc")
    a("v_mul_u32_u24 v24, 13, v1")
    a("v_lshrrev_b32 v24, 8, v24")
    a("v_mul_u32_u24 v24, 1120, v24")
    a("s_cmp_eq_u32 s53, 0")
    a("s_cselect_b64 vcc, -1, 0")
    a("v_cndmask_b32 v24, 0, v24, vcc")
    a("v_lshl_add_u32 v24, v1, 3, v24")
    a("s_mul_i32 s57, s51, 40")
    a("s_mul_i32 s61, s48, 5")
    a("s_add_u32 s57, s57, s61")
    a("s_mul_i32 s57, s57, s63")
    a("s_add_u32 s57, s57, s62")
    a("v_add_u32 v24, s57, v24")
    a("s_lshl_b32 s57, s59, 1")
    a("v_cmp_gt_u32 vcc, s57, v1")
    a("v_cndmask_b32 v15, v13, v24, vcc")
    A0, A1, B0, B1 = ASET[0]
    a("s_lshl_b32 s57, s54, 12")
    a(f"s_add_u32 s57, s57, {AOFF}")
    a("v_xor_b32 v24, v3, v2")
    a("v_and_b32 v24, 7, v24")
    a("v_lshl_add_u32 v24, v2, 3, v24")
    a("v_lshlrev_b32 v24, 4, v24")
    a(f"v_add_u32 v{A0}, s57, v24")
    a(f"v_xor_b32 v{A1}, 64, v{A0}")
    a("v_and_b32 v26, 3, v1")
    a("v_mul_u32_u24 v27, 40, v26")
    a("v_lshlrev_b32 v26, 3, v26")
    a("s_lshl_b32 s57, s59, 3")
    a("s_mul_i32 s57, s57, s55")
    a("v_add_u32 v26, s57, v26")
    a("s_cmp_eq_u32 s53, 0")
    a("s_cselect_b64 vcc, -1, 0")
    a("v_cndmask_b32 v26, v26, v27, vcc")
    a("v_lshrrev_b32 v24, 2, v1")
    a("v_and_b32 v24, 3, v24")
    a("v_lshl_add_u32 v24, v3, 3, v24")
    a("v_and_b32 v25, 1, v3")
    a("v_lshlrev_b32 v25, 2, v25")
    a("v_add_u32 v27, v24, v25")
    a("v_xor_b32 v25, 4, v25")
    a("v_add_u32 v28, v24, v25")
    a("v_mul_u32_u24 v27, s65, v27")
    a("v_mul_u32_u24 v28, s65, v28")
    a(f"v_add_u32 v{B0}, v27, v26")
    a(f"v_add_u32 v{B1}, v28, v26")
    for st in (1, 2):
        for k in range(4): a(f"v_add_u32 v{ASET[st][k]}, {st*STAGE}, v{ASET[0][k]}")
    for k in range(4): a(f"v_mov_b32 v{ONES+k}, 0x3f803f80")
    a("v_lshlrev_b32 v24, 4, v0")
    a("s_mul_i32 s57, s52, 3200")
    a("v_add_u32 v25, s57, v24")
    a("v_cmp_gt_u32 vcc, 3200, v24")
    a("v_cndmask_b32 v16, v13, v25, vcc")
    a("s_mov_b32 s61, 0")
    a("s_mov_b32 s60, 0")
    a("s_lshl_b32 s56, s63, 6")
    a("s_lshl_b32 s73, s72, 10")
    a("s_lshl_b32 s74, s48, 11")
    a(f"s_add_u32 s74, s74, {AOFF}")
    a("s_sub_u32 s75, s64, s72")
    a("s_waitcnt lgkmcnt(0)")
    stamp(a, 1)
    srd(a, 24, 4, 5, 2621440)
    a("s_cmp_eq_u32 s53, 0")
    a("s_cselect_b32 s28, s6, s14")
    a("s_cselect_b32 s29, s7, s15")
    a(f"s_mov_b32 s30, {640*1728*2}")
    a(f"s_cselect_b32 s30, {640*1920*2}, s30")
    a("s_mov_b32 s31, 0x00020000")
    a(f"s_mul_i32 s57, s52, {KVQ}")
    a(f"s_add_u32 s57, s57, {KV_OFF}")
    a("s_add_u32 s40, s22, s57")
    a("s_addc_u32 s41, s23, 0")
    a(f"s_mov_b32 s42, {KVQ}")
    a("s_mov_b32 s43, 0x00020000")
    srd(a, 32, 22, 23, WS_USED)
    srd(a, 44, 20, 21, 256)
    srd(a, 36, 8, 9, 25600)
    a("s_or_b32 s57, s51, s53")
    a("s_cmp_eq_u32 s57, 0")
    a("s_cbranch_scc0 K1_NOZERO")
    a("v_lshlrev_b32 v24, 4, v0")
    a("v_mov_b32 v28, 0\nv_mov_b32 v29, 0\nv_mov_b32 v30, 0\nv_mov_b32 v31, 0")
    for z in range(2):
        a(f"s_mov_b32 s57, {8192*z}")
        a("buffer_store_dwordx4 v[28:31], v24, s[40:43], s57 offen sc0 sc1")
    a("s_cmp_eq_u32 s52, 0")
    a("s_cbranch_scc0 K1_NOZERO")
    a(f"s_mov_b32 s57, {CNT_OFF}")
    a("buffer_store_dwordx4 v[28:31], v24, s[32:35], s57 offen sc0 sc1")
    a.label("K1_NOZERO")
    if "lin" in XF:
        a("s_lshl_b32 s57, s2, 3")
        a("s_add_u32 s57, s57, s48")
        a("s_mul_i32 s57, s57, 1280")
        a("v_lshlrev_b32 v24, 7, v1")
        a("s_mov_b64 exec, 0x3ff")
        srd(a, 76, 6, 7, 640*1920*2)
        a("buffer_load_dword v17, v24, s[76:79], s57 offen")
        a("buffer_load_dword v18, v24, s[24:27], s57 offen")
        srd(a, 92, 14, 15, 640*1728*2)
        a("buffer_load_dword v19, v24, s[92:95], s57 offen")
        if "lin2" in XF:
            srd(a, 76, 16, 17, 640*1728*2)
            a("buffer_load_dword v17, v24, s[76:79], s57 offen")
            srd(a, 92, 10, 11, 640*640*2)
            a("buffer_load_dword v19, v24, s[92:95], s57 offen")
        a("s_mov_b64 exec, -1")
    a("s_cmp_eq_u32 s68, 1")
    a("s_cbranch_scc1 K1_T1")
    a("s_cmp_eq_u32 s68, 2")
    a("s_cbranch_scc1 K1_T2")
    a("s_cmp_eq_u32 s68, 3")
    a("s_cbranch_scc1 K1_T3")
    for ro in range(4):
        a.label(f"K1_T{ro}")
        k1_body(a, ro)
        if ro != 1: a("s_branch K1_P2")
    a.label("K1_P2")
    phase2(a)
    a.label("K1_END")
    a("s_endpgm")
    return a

def dma_stage(ro, st):
    imms, pitch, U, nsl = ROLES[ro]
    G = []
    for jj in range(nsl):
        g = []
        maybe = jj >= U - 7*nsl
        if maybe:
            g += [f"s_cmp_gt_i32 s75, {jj}", "s_cselect_b64 exec, -1, 1", f"s_cselect_b32 s57, s73, {SDUMP - st*STAGE - 1024*jj}", f"s_add_u32 m0, s57, {st*STAGE + 1024*jj}"]
        else:
            g += [f"s_add_u32 m0, s73, {st*STAGE + 1024*jj}"]
        g.append(f"buffer_load_dwordx4 v{VB+jj}, s[28:31], s61 offen lds")
        if maybe: g.append("s_mov_b64 exec, -1")
        G.append(g)
    G[-1].append("s_add_u32 s61, s61, s56")
    for jj in range(2):
        G.append([f"s_add_u32 m0, s74, {st*STAGE + 1024*jj}", f"buffer_load_dwordx4 v{9+jj}, s[24:27], s60 offen lds"])
    G[-1].append("s_add_u32 s60, s60, 128")
    return G

def touch(ro, s):
    P = {0: 6, 1: 6, 2: 4, 3: 3}[ro]
    return [f"s_mov_b64 exec, {(1 << P) - 1}", f"s_mul_i32 s57, s56, {s}", "T:buffer_load_dword v62, v11, s[28:31], s57 offen",
            "s_mov_b64 exec, 15", f"T:buffer_load_dword v63, v12, s[24:27], 0 offen offset:{128*s}", "s_mov_b64 exec, -1"]

def frag_reads(ro, A, B, st, ks2):
    imms, pitch, U, nsl = ROLES[ro]
    A0, A1, B0, B1 = ASET[st]
    va = A1 if ks2 else A0
    off = 32 * pitch * ks2
    L = [f"ds_read_b128 v[{A}:{A+3}], v{va}", f"ds_read_b128 v[{A+4}:{A+7}], v{va} offset:2048"]
    for t, im in enumerate(imms):
        L.append(f"ds_read_b64_tr_b16 v[{B+4*t}:{B+4*t+1}], v{B0} offset:{off+im}")
        L.append(f"ds_read_b64_tr_b16 v[{B+4*t+2}:{B+4*t+3}], v{B1} offset:{off+im}")
    return L

def k1_body(a, ro):
    imms, pitch, U, nsl = ROLES[ro]
    NT = len(imms)
    vm = []
    def em(x, tag):
        if x.startswith("T:"):
            a(x[2:]); vm.append("t")
        elif x.startswith("buffer_load"):
            a(x); vm.append(tag[1].pop(0) if isinstance(tag, tuple) else tag)
        else: emit(a, x)
    def waitv(tag, lg=False):
        last = max(i for i, x in enumerate(vm) if x == tag)
        n = min(63, len(vm) - 1 - last)
        a(f"s_waitcnt vmcnt({n})" + (" lgkmcnt(0)" if lg else ""))
    em("buffer_load_dwordx4 v[128:131], v14, s[24:27], 0 offen", "sl")
    em("buffer_load_dwordx4 v[132:135], v14, s[24:27], 0 offen offset:16", "sl")
    a("s_mov_b32 s57, 0")
    for i in range(5):
        em(f"buffer_load_dwordx2 v[{136+2*i}:{137+2*i}], v15, s[28:31], s57 offen", "sl")
        if i < 4: a("s_add_u32 s57, s57, s63")
    for st in range(NPRO):
        for g in dma_stage(ro, st):
            for x in g: em(x, st)
        if st < NPRO - 1 and "nobar" not in XF: a("s_barrier")
        if st == NPRO - 1:
            waitv("sl")
            for i in range(5):
                for d in range(2):
                    a(f"v_lshlrev_b32 v{148+4*i+2*d}, 16, v{136+2*i+d}")
                    a(f"v_and_b32 v{149+4*i+2*d}, 0xffff0000, v{136+2*i+d}")
            for i in range(1, 5):
                a(f"v_pk_add_f32 v[148:149], v[148:149], v[{148+4*i}:{149+4*i}]")
                a(f"v_pk_add_f32 v[150:151], v[150:151], v[{150+4*i}:{151+4*i}]")
            a("v_lshlrev_b32 v24, 4, v0")
            a(f"v_add_u32 v24, {PART}, v24")
            a("ds_write_b128 v24, v[148:151]")
            for d in range(8):
                a(f"v_lshlrev_b32 v{168+2*d}, 16, v{128+d}")
                a(f"v_and_b32 v{169+2*d}, 0xffff0000, v{128+d}")
            a("v_pk_add_f32 v[184:185], v[168:169], v[170:171]")
            for d in range(2, 8): a(f"v_pk_add_f32 v[184:185], v[184:185], v[{168+2*d}:{169+2*d}]")
            a("v_add_f32 v184, v184, v185")
            def xreduce(v):
                for sh in (1, 2, 4, 8): a(f"v_add_f32_dpp v{v}, v{v}, v{v} row_shr:{sh} row_mask:0xf bank_mask:0xf bound_ctrl:0")
                a(f"v_add_f32_dpp v{v}, v{v}, v{v} row_bcast:15 row_mask:0xa bank_mask:0xf")
                a(f"v_add_f32_dpp v{v}, v{v}, v{v} row_bcast:31 row_mask:0xc bank_mask:0xf")
            xreduce(184)
            a("v_readlane_b32 s57, v184, 63")
            a("v_mov_b32 v186, 0x3acccccd")
            a("v_mul_f32 v186, s57, v186")
            a("v_mov_b32 v184, 0")
            a("v_mov_b32 v185, 0")
            a("s_mov_b32 exec_hi, 0xff")
            for d in range(8):
                a(f"v_pk_add_f32 v[{168+2*d}:{169+2*d}], v[{168+2*d}:{169+2*d}], v[186:187] op_sel_hi:[1,0] neg_lo:[0,1] neg_hi:[0,1]")
            for d in range(8):
                a(f"v_pk_fma_f32 v[184:185], v[{168+2*d}:{169+2*d}], v[{168+2*d}:{169+2*d}], v[184:185]")
            a("s_mov_b64 exec, -1")
            a("v_add_f32 v184, v184, v185")
            xreduce(184)
            a("v_readlane_b32 s57, v184, 63")
            a("v_mov_b32 v187, 0x3acccccd")
            a("v_mul_f32 v187, s57, v187")
            bf16_round(a, 186)
            bf16_round(a, 187)
            a("v_add_f32 v187, 0x3727c5ac, v187")
            bf16_round(a, 187)
            a("v_sqrt_f32 v187, v187")
            bf16_round(a, 187)
            a("v_rcp_f32 v187, v187")
            a("s_lshl_b32 s57, s49, 3")
            a(f"s_add_u32 s57, s57, {ST_OFF}")
            a("v_mov_b32 v24, 0")
            a("s_mov_b64 exec, 1")
            a("buffer_store_dwordx2 v[186:187], v24, s[32:35], s57 offen sc0 sc1")
            vm.append("ss")
            a("s_mov_b64 exec, -1")
    if ro < 2:
        em("buffer_load_dwordx4 v[252:255], v16, s[36:39], 0 offen", "aux")
    for sl in range(NS, min(10, TD)):
        for x in touch(ro, sl): em(x, "t")
    if ro == 3: w2f_prep(a)
    stamp(a, 2)
    waitv(0, True)
    a("s_barrier")
    stamp(a, 3)
    a("s_cmp_eq_u32 s48, 7")
    a(f"s_cbranch_scc0 K1_NCP{ro}")
    a("v_lshlrev_b32 v24, 4, v1")
    a(f"v_add_u32 v25, {PART}, v24")
    for k in range(8): a(f"ds_read_b128 v[{168+4*k}:{171+4*k}], v25 offset:{1024*k}")
    a("s_waitcnt lgkmcnt(0)")
    for k in range(1, 8):
        a(f"v_pk_add_f32 v[168:169], v[168:169], v[{168+4*k}:{169+4*k}]")
        a(f"v_pk_add_f32 v[170:171], v[170:171], v[{170+4*k}:{171+4*k}]")
    a("s_lshl_b32 s57, s71, 4")
    a("s_add_u32 s57, s57, s51")
    a("s_lshl_b32 s57, s57, 10")
    a(f"s_add_u32 s57, s57, {CP_OFF}")
    a("buffer_store_dwordx4 v[168:171], v24, s[32:35], s57 offen sc0 sc1")
    a("s_nop 1")
    a.label(f"K1_NCP{ro}")
    if ro == 0:
        a("s_or_b32 s57, s51, s48")
        a("s_cmp_eq_u32 s57, 0")
        a("s_cbranch_scc0 K1_NOFLAG")
        a("s_lshl_b32 s57, s52, 2")
        a("v_mov_b32 v24, s57")
        a("v_mov_b32 v25, 1")
        a("s_mov_b64 exec, 1")
        a("buffer_atomic_add v25, v24, s[44:47], 0 offen")
        a("s_mov_b64 exec, -1")
        a.label("K1_NOFLAG")
    def hooks(s):
        L = []
        if ro == 3 and s in (5, 6, 8, 9): L += w2f_out({5: 0, 6: 1, 8: 2, 9: 3}[s])
        if ro == 3 and s == 11: L += w2f_out(4)
        if s == 15: L += ["v_mov_b32 v17, 0", "buffer_load_dword v17, v17, s[44:47], 0 offen sc0 sc1"]
        if s == 5:
            L += ["s_cmp_eq_u32 s48, 0", f"s_cbranch_scc0 K1_NSG{ro}", "s_lshl_b32 s57, s51, 2", "s_add_u32 s57, s57, 64", "v_mov_b32 v24, s57",
                  "s_lshl_b32 s57, s71, 2", "s_add_u32 s57, s57, 128", "v_mov_b32 v26, s57", "v_mov_b32 v25, 1", "s_mov_b64 exec, 1",
                  "buffer_atomic_add v25, v24, s[44:47], 0 offen", "buffer_atomic_add v25, v26, s[44:47], 0 offen", "s_mov_b64 exec, -1", f"LABEL K1_NSG{ro}"]
        if s == 15:
            L += ["s_lshl_b32 s57, s51, 2", "s_add_u32 s57, s57, 64", "v_mov_b32 v56, s57", "s_lshl_b32 s57, s71, 2", "s_add_u32 s57, s57, 128", "v_mov_b32 v57, s57",
                  "buffer_load_dword v58, v56, s[44:47], 0 offen sc0 sc1", "buffer_load_dword v59, v57, s[44:47], 0 offen sc0 sc1"]
        if s == 17:
            L += ["s_mov_b32 s60, 0", "s_waitcnt vmcnt(0)", f"LABEL K1_PS{ro}", "v_readfirstlane_b32 s57, v58", "v_readfirstlane_b32 s61, v59", "s_and_b32 s57, s57, 0xff", "s_min_u32 s57, s57, s61",
                  "s_cmp_ge_u32 s57, 16", f"s_cbranch_scc1 K1_PSD{ro}", "s_add_u32 s60, s60, 1", "s_cmp_ge_u32 s60, 100000", f"s_cbranch_scc1 K1_PSD{ro}", "s_sleep 8",
                  "buffer_load_dword v58, v56, s[44:47], 0 offen sc0 sc1", "buffer_load_dword v59, v57, s[44:47], 0 offen sc0 sc1", "s_waitcnt vmcnt(0)", f"s_branch K1_PS{ro}", f"LABEL K1_PSD{ro}"]
            L += ["s_lshl_b32 s57, s51, 2", "s_add_u32 s57, s57, s54", "s_lshl_b32 s57, s57, 8", f"s_add_u32 s57, s57, {ST_OFF}", "v_lshlrev_b32 v24, 3, v2",
                  "buffer_load_dwordx2 v[20:21], v24, s[32:35], s57 offen sc0 sc1", "buffer_load_dwordx2 v[22:23], v24, s[32:35], s57 offen offset:128 sc0 sc1"]
            L += ["s_cmp_lt_u32 s48, 4", f"s_cbranch_scc0 K1_NCL{ro}", "s_lshl_b32 s57, s71, 14", f"s_add_u32 s57, s57, {CP_OFF}", "s_lshl_b32 s61, s48, 2", "s_add_u32 s57, s57, s61",
                  "v_lshlrev_b32 v24, 4, v1"]
            for p in range(16):
                L += [f"buffer_load_dword v{40+p}, v24, s[32:35], s57 offen offset:{1024*(p & 3)} sc0 sc1"]
                if p & 3 == 3: L += ["s_add_u32 s57, s57, 4096"]
            L += [f"LABEL K1_NCL{ro}"]
        return L
    for s in frag_reads(ro, XA, XB, 0, 0): a(s)
    for s in range(20):
        i = s >> 1; odd = s & 1
        CA, CB, NA, NB = (XA, XB, YA, YB) if not odd else (YA, YB, XA, XB)
        dma = []
        if not odd:
            a("s_waitcnt lgkmcnt(0)")
            rd = frag_reads(ro, NA, NB, i % NS, 1)
            if TD and NS <= i + TD < 10: dma = [touch(ro, i + TD)]
            tag = "t"
            if s == 0 and NPRO < 3:
                dma = sum((dma_stage(ro, st2) for st2 in range(NPRO, 3)), [])
                tagl = [st2 for st2 in range(NPRO, 3) for _ in range(nsl + 2)]
                tag = ("L", tagl)
        else:
            if i < 9:
                if "nodma" in XF and i + 1 >= NS: a("s_waitcnt lgkmcnt(0)")
                else: waitv(i + 1, True)
                a("s_barrier")
                rd = frag_reads(ro, NA, NB, (i + 1) % NS, 0)
            else:
                a("s_waitcnt lgkmcnt(0)")
                a("s_barrier")
                rd = []
            if i + NS < 10 and "nodma" not in XF: dma = dma_stage(ro, i % NS)
            if ro == 3 and s == 1: dma = [w2f_dma(n_) for n_ in range(4)] + dma
            if ro == 3 and s == 7: dma = [w2f_dma(4)] + dma
            tag = i + NS
        if "nord" in XF: rd = []
        rd = [[x] for x in rd]
        side = []
        k = 0
        step = max(1, len(rd) // (len(dma) + 1)) if dma else len(rd)
        for d in dma:
            side += rd[k:k+step]; k += step; side.append(d)
        side += rd[k:]
        mf = []
        for t in range(NT):
            for rt in range(2):
                ac = ACC + 8*t + 4*rt
                c = "0" if s == 0 else f"v[{ac}:{ac+3}]"
                mf.append(f"v_mfma_f32_16x16x32_bf16 v[{ac}:{ac+3}], v[{CB+4*t}:{CB+4*t+3}], v[{CA+4*rt}:{CA+4*rt+3}], {c}")
        st_blk = []
        def stat_m(kind):
            L = []
            for rt in range(2):
                ac = DS + 4*rt
                c = "0" if s == 0 else f"v[{ac}:{ac+3}]"
                A_ = ONES if kind == 0 else CA + 4*rt
                L.append(f"v_mfma_f32_16x16x32_bf16 v[{ac}:{ac+3}], v[{A_}:{A_+3}], v[{CA+4*rt}:{CA+4*rt+3}], {c}")
            return L
        if False:
            st_blk = ["s_cmp_eq_u32 s55, 0", f"s_cbranch_scc0 K1_SG{ro}_{s}"] + stat_m(0) + [f"s_branch K1_SE{ro}_{s}", f"LABEL K1_SG{ro}_{s}"] + stat_m(1) + [f"LABEL K1_SE{ro}_{s}"]
        cs = []
        for q in range(4):
            tl = [t for t in range(NT) if t % 4 == q]
            if q < 3: cs += [f"s_cmp_eq_u32 s54, {q}", f"s_cbranch_scc0 K1_CS{ro}_{s}_{q+1}"]
            for k2, t in enumerate(tl):
                ac = DC + 4*k2
                c = "0" if s == 0 else f"v[{ac}:{ac+3}]"
                cs.append(f"v_mfma_f32_16x16x32_bf16 v[{ac}:{ac+3}], v[{CB+4*t}:{CB+4*t+3}], v[{ONES}:{ONES+3}], {c}")
            if q < 3: cs += [f"s_branch K1_CSE{ro}_{s}", f"LABEL K1_CS{ro}_{s}_{q+1}"]
        cs.append(f"LABEL K1_CSE{ro}_{s}")
        nfirst = len(mf) - 3
        per = max(1, -(-len(side) // max(1, nfirst - 1)))
        si = 0
        for k, m in enumerate(mf):
            a(m)
            if k < nfirst:
                for _ in range(per):
                    if si < len(side):
                        for x in side[si]: em(x, tag)
                        si += 1
            if k == nfirst - 1:
                while si < len(side):
                    for x in side[si]: em(x, tag)
                    si += 1
                for x in hooks(s): emit(a, x)
    stamp(a, 4)
    if ro < 2:
        a("s_lshl_b32 s57, s52, 2")
        a("v_mov_b32 v60, s57")
        a("buffer_load_dword v61, v60, s[44:47], 0 offen sc0 sc1")
    a("s_waitcnt vmcnt(%d)" % (0 if ro >= 2 else 1))
    a("s_cmp_lt_u32 s48, 4")
    a(f"s_cbranch_scc0 K1_NCS{ro}")
    for p in range(0, 16, 2):
        if p: a(f"v_pk_add_f32 v[40:41], v[40:41], v[{40+p}:{41+p}]")
    a("v_add_f32 v40, v40, v41")
    a("s_lshl_b32 s57, s48, 2")
    a(f"s_add_u32 s57, s57, {CSUM}")
    a("v_lshlrev_b32 v24, 4, v1")
    a("v_add_u32 v24, s57, v24")
    a("ds_write_b32 v24, v40")
    if ro < 2:
        a("v_lshlrev_b32 v29, 4, v0" if False else "v_lshlrev_b32 v25, 4, v0")
        a(f"v_add_u32 v25, {WPHI}, v25")
        a("ds_write_b128 v25, v[252:255]")
    a.label(f"K1_NCS{ro}")
    a("s_waitcnt lgkmcnt(0)")
    a("s_barrier")
    a("s_cmp_eq_u32 s48, 0")
    a(f"s_cbranch_scc0 K1_NZ{ro}")
    a("v_readfirstlane_b32 s57, v17")
    a("s_cmp_lg_u32 s57, 0")
    a(f"s_cbranch_scc1 K1_ZOK{ro}")
    a("v_mov_b32 v24, 0")
    spin(a, f"K1_SZ{ro}", ["buffer_load_dword v25, v24, s[44:47], 0 offen sc0 sc1"], ["v_readfirstlane_b32 s57, v25", "s_cmp_lg_u32 s57, 0"])
    a.label(f"K1_ZOK{ro}")
    if ro == 3:
        a("v_mov_b32 v25, 1")
        a(f"s_mov_b32 s57, {CNT_OFF}")
        a("v_lshlrev_b32 v26, 7, v1")
        a("s_mov_b64 exec, 0xffff")
        a("buffer_atomic_add v25, v26, s[32:35], s57 offen offset:4")
        a("s_mov_b64 exec, -1")
    a.label(f"K1_NZ{ro}")
    CR = 128
    if ro < 2:
        a("v_mul_u32_u24 v26, 80, v3")
        a(f"v_add_u32 v26, {CSUM}, v26")
        for t, im in enumerate(imms):
            seg, j = im // 160, (im % 160) // 8
            a(f"ds_read_b128 v[{CR+4*t}:{CR+4*t+3}], v26 offset:{16*(20*seg + j)}")
    else:
        a("v_lshlrev_b32 v26, 4, v3")
        a(f"s_mul_i32 s57, s55, {64*NT}")
        a(f"s_add_u32 s57, s57, {CSUM}")
        a("v_add_u32 v26, s57, v26")
        for t in range(NT):
            a(f"ds_read_b128 v[{CR+4*t}:{CR+4*t+3}], v26 offset:{64*t}")
    a("v_mov_b32 v28, v20")
    a("v_mov_b32 v32, v21")
    a("v_mov_b32 v30, v22")
    a("v_mov_b32 v34, v23")
    a("s_waitcnt lgkmcnt(0)")
    for t in range(NT):
        for rt in range(2):
            for h in range(2):
                ac = ACC + 8*t + 4*rt + 2*h
                a(f"v_pk_fma_f32 v[{ac}:{ac+1}], v[{CR+4*t+2*h}:{CR+4*t+2*h+1}], v[{28+2*rt}:{29+2*rt}], v[{ac}:{ac+1}] op_sel_hi:[1,0,1] neg_lo:[0,1,0] neg_hi:[0,1,0]")
    for t in range(NT):
        for rt in range(2):
            for h in range(2):
                ac = ACC + 8*t + 4*rt + 2*h
                a(f"v_pk_mul_f32 v[{ac}:{ac+1}], v[{ac}:{ac+1}], v[{32+2*rt}:{33+2*rt}] op_sel_hi:[1,0]")
    stamp(a, 5)
    if ro < 2: k1_epi_qkv(a, ro)
    else: k1_epi_h(a, ro)
def softmax(a, P, E, O, tmp=40):
    t0, t2, t4, t6 = tmp, tmp + 2, tmp + 4, tmp + 6
    a(f"v_max3_f32 v{t0}, v{P}, v{P+1}, v{P+2}")
    a(f"v_min3_f32 v{t2}, v{P}, v{P+1}, v{P+2}")
    for i in range(3, 19, 2):
        a(f"v_max3_f32 v{t0}, v{t0}, v{P+i}, v{P+i+1}")
        a(f"v_min3_f32 v{t2}, v{t2}, v{P+i}, v{P+i+1}")
    a(f"v_max_f32 v{t0}, v{t0}, v{P+19}")
    a(f"v_min_f32 v{t2}, v{t2}, v{P+19}")
    a(f"v_mul_f32 v{t0}, s56, v{t0}")
    a(f"v_mul_f32 v{t2}, s56, v{t2}")
    for i in range(0, 20, 2):
        a(f"v_pk_fma_f32 v[{E+i}:{E+i+1}], v[{P+i}:{P+i+1}], s[56:57], v[{t0}:{t0+1}] op_sel_hi:[1,0,0] neg_lo:[0,0,1] neg_hi:[0,0,1]")
        a(f"v_pk_fma_f32 v[{P+i}:{P+i+1}], v[{P+i}:{P+i+1}], s[56:57], v[{t2}:{t2+1}] op_sel_hi:[1,0,0] neg_lo:[1,0,0] neg_hi:[1,0,0]")
    for i in range(20):
        a(f"v_exp_f32 v{E+i}, v{E+i}")
        a(f"v_exp_f32 v{P+i}, v{P+i}")
    a(f"v_pk_add_f32 v[{t4}:{t4+1}], v[{E}:{E+1}], v[{E+2}:{E+3}]")
    a(f"v_pk_add_f32 v[{t6}:{t6+1}], v[{P}:{P+1}], v[{P+2}:{P+3}]")
    for i in range(4, 20, 2):
        a(f"v_pk_add_f32 v[{t4}:{t4+1}], v[{t4}:{t4+1}], v[{E+i}:{E+i+1}]")
        a(f"v_pk_add_f32 v[{t6}:{t6+1}], v[{t6}:{t6+1}], v[{P+i}:{P+i+1}]")
    a(f"v_add_f32 v{t4}, v{t4}, v{t4+1}")
    a(f"v_add_f32 v{t6}, v{t6}, v{t6+1}")
    a(f"v_rcp_f32 v{t4}, v{t4}")
    a(f"v_rcp_f32 v{t6}, v{t6}")
    for i in range(0, 20, 2):
        a(f"v_pk_mul_f32 v[{E+i}:{E+i+1}], v[{E+i}:{E+i+1}], v[{t4}:{t4+1}] op_sel_hi:[1,0]")
        a(f"v_pk_mul_f32 v[{P+i}:{P+i+1}], v[{P+i}:{P+i+1}], v[{t6}:{t6+1}] op_sel_hi:[1,0]")
    for i in range(10):
        a(f"v_cvt_pk_bf16_f32 v{O+i}, v{E+2*i}, v{E+2*i+1}")
        a(f"v_cvt_pk_bf16_f32 v{O+10+i}, v{P+2*i}, v{P+2*i+1}")

def k1_epi_qkv(a, ch):
    NV = 3 if ch == 0 else 2
    v0j = 0 if ch == 0 else 3
    F0 = 160; VP = 184; WB = 196
    for rt in range(2):
        for t in range(5):
            ac = ACC + 8*t + 4*rt
            a(f"v_cvt_pk_bf16_f32 v{F0+12*rt+2*t}, v{ac}, v{ac+1}")
            a(f"v_cvt_pk_bf16_f32 v{F0+12*rt+2*t+1}, v{ac+2}, v{ac+3}")
        for t in range(NV):
            ac = ACC + 8*(5+t) + 4*rt
            a(f"v_cvt_pk_bf16_f32 v{VP+6*rt+2*t}, v{ac}, v{ac+1}")
            a(f"v_cvt_pk_bf16_f32 v{VP+6*rt+2*t+1}, v{ac+2}, v{ac+3}")
    for z in (F0+10, F0+11, F0+22, F0+23, WB+10, WB+11, WB+22, WB+23): a(f"v_mov_b32 v{z}, 0")
    a("v_lshlrev_b32 v48, 4, v1")
    a("s_mul_i32 s57, s54, 3072")
    a(f"s_add_u32 s57, s57, {KX}")
    a("v_add_u32 v49, s57, v48")
    if ch == 0:
        for m in range(3):
            a(f"ds_write_b128 v49, v[{F0+12+4*m}:{F0+12+4*m+3}] offset:{1024*m}")
    else:
        a("s_lshl_b32 s58, s51, 3")
        a("s_lshl_b32 s59, s54, 1")
        a("s_add_u32 s58, s58, s59")
        a("s_lshl_b32 s58, s58, 3")
        a("s_add_u32 s58, s58, s52")
        a("s_mul_i32 s58, s58, 3072")
        a(f"s_add_u32 s58, s58, {QF_OFF}")
        a(f"s_add_u32 s59, s58, {8*3072}")
        for rt in range(2):
            for m in range(3):
                a(f"buffer_store_dwordx4 v[{F0+12*rt+4*m}:{F0+12*rt+4*m+3}], v48, s[32:35], s{58+rt} offen offset:{1024*m}{STM}")
    a("s_lshl_b32 s57, s54, 5")
    a("v_add_u32 v24, s57, v2")
    a(f"v_mul_u32_u24 v25, {VI_P}, v24")
    a("v_mul_u32_u24 v26, 48, v3")
    a("v_add_u32 v25, v25, v26")
    a(f"v_add_u32 v25, {VI}, v25")
    for rt in range(2):
        for t in range(NV):
            a(f"ds_write_b64 v25, v[{VP+6*rt+2*t}:{VP+6*rt+2*t+1}] offset:{rt*16*VI_P + 8*(v0j+t)}")
    if ch == 1:
        a("v_mov_b32 v32, 0x00003f80")
        a("v_mov_b32 v33, 0")
        for rt in range(2):
            a(f"ds_write_b64 v25, v[32:33] offset:{rt*16*VI_P + 40}")
    wphi_addr(a, WPHI, 34)
    a("s_waitcnt lgkmcnt(0)")
    a("s_barrier")
    if ch == 1:
        for m in range(3):
            a(f"ds_read_b128 v[{F0+4*m}:{F0+4*m+3}], v49 offset:{1024*m}")
        a("s_branch K1_QC")
        return
    a.label("K1_QC")
    ch = 2
    pq_mfma(a, 34, WB, F0, 64)
    a(f"s_mov_b32 s56, {LOG2E}")
    a(f"s_mov_b32 s57, {LOG2E}")
    O = 140
    softmax(a, 64, 104, O)
    a("s_lshl_b32 s57, s55, 4")
    a("v_add_u32 v48, s57, v24")
    a(f"v_mul_u32_u24 v48, {PHK_P}, v48")
    a("v_mul_u32_u24 v49, 80, v3")
    a("v_add_u32 v48, v48, v49")
    for m in range(5):
        a(f"ds_write_b128 v48, v[{O+4*m}:{O+4*m+3}] offset:{PHK + 16*m}")
    a("s_waitcnt vmcnt(0) lgkmcnt(0)")
    a("s_barrier")
    a("s_cmp_eq_u32 s48, 0")
    a("s_cbranch_scc0 K1_NQS")
    a("s_lshl_b32 s57, s51, 7")
    a(f"s_add_u32 s57, s57, {CNT_OFF + 8}")
    a("v_mov_b32 v28, s57")
    a("v_mov_b32 v29, 1")
    a("s_mov_b64 exec, 1")
    a("buffer_atomic_add v29, v28, s[32:35], 0 offen")
    a("s_mov_b64 exec, -1")
    a.label("K1_NQS")
    a("s_lshr_b32 s58, s48, 1")
    a("s_and_b32 s59, s48, 1")
    a("v_lshl_add_u32 v28, v3, 2, v26")
    a(f"v_mul_u32_u24 v29, {PHK_P}, v28")
    a("v_lshl_add_u32 v29, v27, 3, v29")
    a("s_mul_i32 s57, s58, 80")
    a("v_add_u32 v29, s57, v29")
    a(f"v_mul_u32_u24 v30, {VI_P}, v28")
    a("v_lshl_add_u32 v30, v27, 3, v30")
    a("s_mul_i32 s57, s58, 48")
    a("s_lshl_b32 s60, s59, 5")
    a("s_add_u32 s57, s57, s60")
    a(f"s_add_u32 s57, s57, {VI}")
    a("v_add_u32 v30, s57, v30")
    RB = 168
    for kk in range(4):
        B = RB + 16*kk
        for hf in range(2):
            a(f"ds_read_b64_tr_b16 v[{B+2*hf}:{B+2*hf+1}], v30 offset:{(32*kk+16*hf)*VI_P}")
        for ft in range(3):
            for hf in range(2):
                a(f"ds_read_b64_tr_b16 v[{B+4+4*ft+2*hf}:{B+4+4*ft+2*hf+1}], v29 offset:{(32*kk+16*hf)*PHK_P + 32*ft}")
    a("s_lshl_b32 s57, s59, 4")
    a("v_add_u32 v28, s57, v2")
    a("v_lshrrev_b32 v29, 2, v28")
    a("v_mul_u32_u24 v29, 2560, v29")
    a("v_lshl_add_u32 v29, v3, 8, v29")
    a("v_and_b32 v31, 3, v28")
    a("v_lshl_add_u32 v29, v31, 4, v29")
    a("s_lshl_b32 s57, s58, 6")
    a(f"s_add_u32 s57, s57, {KVS}")
    a("v_add_u32 v35, s57, v29")
    a("v_lshlrev_b32 v30, 4, v1")
    a(f"v_add_u32 v30, {KVDUMP}, v30")
    a("v_cmp_gt_u32 vcc, 21, v28")
    a("v_cndmask_b32 v35, v30, v35, vcc")
    a("v_cmp_gt_u32 vcc, 2, v3")
    a("v_cndmask_b32 v36, v30, v35, vcc")
    for kk in range(4):
        B = RB + 16*kk
        a(f"s_waitcnt lgkmcnt({min(15, 8*(3-kk))})")
        for ft in range(3):
            D = 64 + 4*ft
            c = "0" if kk == 0 else f"v[{D}:{D+3}]"
            a(f"v_mfma_f32_16x16x32_bf16 v[{D}:{D+3}], v[{B+4+4*ft}:{B+4+4*ft+3}], v[{B}:{B+3}], {c}")
    a("ds_write_b128 v35, v[64:67]")
    a("ds_write_b128 v35, v[68:71] offset:1024")
    a("ds_write_b128 v36, v[72:75] offset:2048")
    a("s_mov_b32 s60, 0")
    a("s_waitcnt vmcnt(0)")
    a.label(f"K1_POLL{ch}")
    a("v_readfirstlane_b32 s57, v61")
    a("s_cmp_lg_u32 s57, 0")
    a(f"s_cbranch_scc1 K1_POLLDONE{ch}")
    a("s_add_u32 s60, s60, 1")
    a("s_cmp_ge_u32 s60, 100000")
    a(f"s_cbranch_scc1 K1_POLLDONE{ch}")
    a("buffer_load_dword v61, v60, s[44:47], 0 offen sc0 sc1")
    a("s_waitcnt vmcnt(0)")
    a(f"s_branch K1_POLL{ch}")
    a.label(f"K1_POLLDONE{ch}")
    a("s_waitcnt lgkmcnt(0)")
    a("s_barrier")
    a("v_lshlrev_b32 v24, 2, v0")
    a(f"v_add_u32 v25, {KVS}, v24")
    for it in range(8):
        a(f"ds_read_b32 v{28+it}, v25 offset:{2048*it}")
    a("v_lshrrev_b32 v40, 4, v24")
    a("v_and_b32 v40, 3, v40")
    a(f"v_mov_b32 v41, {OOB}")
    a("v_cmp_eq_u32 vcc, 0, v40")
    a("v_cndmask_b32 v42, v41, v24, vcc")
    a("v_cmp_gt_u32 vcc, 512, v24")
    a("v_cndmask_b32 v43, v42, v24, vcc")
    for it in range(8):
        vo = 24 if it < 6 else (43 if it == 6 else 42)
        a(f"s_waitcnt lgkmcnt({7-it})")
        a(f"s_mov_b32 s57, {2048*it}")
        a(f"buffer_atomic_add_f32 v{28+it}, v{vo}, s[40:43], s57 offen")

def wphi_addr(a, base, R):
    a("v_lshrrev_b32 v26, 2, v1")
    a("v_and_b32 v26, 3, v26")
    a("v_and_b32 v27, 3, v1")
    a("v_mul_u32_u24 v28, 800, v3")
    a("v_mul_u32_u24 v29, 40, v26")
    a("v_add_u32 v28, v28, v29")
    a(f"v_add_u32 v28, {base}, v28")
    a(f"v_mov_b32 v29, {base+3200}")
    a("v_cmp_eq_u32 vcc, v27, v3")
    for i in range(5):
        a(f"v_add_u32 v30, {160*i}, v28")
        a(f"v_cndmask_b32 v{R+i}, v29, v30, vcc")

def pq_mfma(a, R, WB, F, D0):
    def wread(j, base):
        for i in range(5):
            a(f"ds_read_b64_tr_b16 v[{base+2*i}:{base+2*i+1}], v{R+i} offset:{8*j}")
    wread(0, WB)
    for j in range(5):
        base = WB + 12*(j & 1)
        if j < 4: wread(j+1, WB + 12*((j+1) & 1))
        a(f"s_waitcnt lgkmcnt({5 if j < 4 else 0})")
        D = D0 + 4*j
        a(f"v_mfma_f32_16x16x32_bf16 v[{D}:{D+3}], v[{base}:{base+3}], v[{F}:{F+3}], 0")
        a(f"v_mfma_f32_16x16x32_bf16 v[{D}:{D+3}], v[{base+4}:{base+7}], v[{F+4}:{F+7}], v[{D}:{D+3}]")
        a(f"v_mfma_f32_16x16x32_bf16 v[{D}:{D+3}], v[{base+8}:{base+11}], v[{F+8}:{F+11}], v[{D}:{D+3}]")

def w2f_prep(a):
    a("s_mul_i32 s69, s51, 5")
    a("s_add_u32 s69, s69, s52")
    a("s_sub_u32 s69, s69, 3")
    a("s_lshl_b32 s57, s48, 2")
    a("v_add_u32 v24, s57, v3")
    a("v_lshrrev_b32 v25, 3, v24")
    a("v_and_b32 v26, 7, v24")
    a("v_lshrrev_b32 v27, 2, v26")
    a("v_lshlrev_b32 v27, 4, v27")
    a("v_lshl_add_u32 v27, v25, 2, v27")
    a("v_and_b32 v28, 3, v26")
    a("v_add_u32 v32, v27, v28")
    a("v_mul_u32_u24 v31, 20, v25")
    a("s_mov_b32 s98, 0")
    for n in range(5):
        a(f"s_add_u32 s64, s69, {80*n}")
        a("s_mul_i32 s65, s64, 205")
        a("s_lshr_b32 s70, s65, 10")
        a("s_mul_i32 s65, s70, 5")
        a("s_sub_u32 s65, s64, s65")
        a("s_lshl_b32 s72, s65, 8")
        a("s_cmp_ge_u32 s64, 370")
        a(f"s_cselect_b32 s72, {OOB}, s72")
        a("s_lshl_b32 s76, s70, 5")
        a("v_add_u32 v27, s76, v32")
        a("s_sub_u32 s76, s70, 54")
        a("s_max_i32 s76, s76, 0")
        a("s_mul_i32 s77, s76, 205")
        a("s_lshr_b32 s77, s77, 10")
        a("s_mul_i32 s65, s77, 5")
        a("s_sub_u32 s65, s76, s65")
        a("s_lshl_b32 s65, s65, 3")
        a("v_add_u32 v28, s65, v26")
        a("v_cmp_lt_u32 vcc, 19, v28")
        a("v_cndmask_b32 v30, 0, 60, vcc")
        a("v_add3_u32 v29, v28, v30, v31")
        a("s_mul_i32 s77, s77, 160")
        a("v_add_u32 v29, s77, v29")
        a("s_cmp_ge_u32 s70, 54")
        a(f"s_cselect_b32 s65, {1 << n}, 0")
        a("s_cselect_b64 vcc, -1, 0")
        a("s_or_b32 s98, s98, s65")
        a("v_cndmask_b32 v27, v27, v29, vcc")
        a("v_mul_u32_u24 v27, 1280, v27")
        a("v_lshl_add_u32 v27, v2, 4, v27")
        a(f"v_add_u32 v{217+n}, s72, v27")
    a("v_lshrrev_b32 v26, 2, v1")
    a("v_and_b32 v26, 3, v26")
    a("v_and_b32 v27, 3, v1")
    a("v_lshl_add_u32 v28, v3, 3, v26")
    a("v_lshlrev_b32 v28, 8, v28")
    a("v_lshl_add_u32 v28, v27, 3, v28")
    a("s_lshl_b32 s57, s48, 5")
    a("v_add_u32 v211, s57, v28")
    a("v_lshlrev_b32 v216, 4, v1")

W2B = [PART, 26624, STAGE + 26624, 2*STAGE + 26624, PART]
def w2f_dma(n):
    return [f"s_bitcmp1_b32 s98, {n}", "s_cselect_b32 s76, s10, s16", "s_cselect_b32 s77, s11, s17", f"s_mov_b32 s78, {1728*640*2}", f"s_cselect_b32 s78, {640*640*2}, s78",
            "s_mov_b32 s79, 0x00020000", "s_lshl_b32 s57, s48, 10", f"s_add_u32 m0, s57, {W2B[n]}", f"T:buffer_load_dwordx4 v{217+n}, s[76:79], 0 offen lds"]

def w2f_out(n):
    return [f"v_add_u32 v210, {W2B[n]}, v211", "ds_read_b64_tr_b16 v[212:213], v210", "ds_read_b64_tr_b16 v[214:215], v210 offset:1024",
            f"s_add_u32 s64, s69, {80*n}", "s_lshl_b32 s65, s64, 3", "s_add_u32 s65, s65, s48", "s_lshl_b32 s65, s65, 10", f"s_add_u32 s65, s65, {WF_OFF}",
            "s_cmp_ge_u32 s64, 370", f"s_cselect_b32 s65, {OOB}, s65", "s_waitcnt lgkmcnt(0)", f"buffer_store_dwordx4 v[212:215], v216, s[32:35], s65 offen{STM}", "s_nop 1"]

def k1_epi_h(a, ro):
    NP = 4 if ro == 2 else 3
    a(f"s_mov_b32 s56, {LOG2E}")
    a(f"s_mov_b32 s57, {LOG2E}")
    a("s_lshl_b32 s60, s51, 3")
    a("s_lshl_b32 s61, s54, 1")
    a("s_add_u32 s60, s60, s61")
    a("s_mul_i32 s60, s60, 54")
    a("s_mul_i32 s61, s52, 3")
    a("s_add_u32 s61, s61, 3")
    a("s_lshl_b32 s62, s52, 2")
    a("s_cmp_lt_u32 s52, 3")
    a("s_cselect_b32 s61, s62, s61")
    a("s_lshl_b32 s61, s61, 1")
    a("s_add_u32 s60, s60, s61")
    a(f"s_mul_i32 s61, s55, {NP}")
    a("s_add_u32 s60, s60, s61")
    a("s_lshl_b32 s60, s60, 10")
    a(f"s_add_u32 s61, s60, {54*1024}")
    a("v_lshlrev_b32 v44, 4, v1")
    for pi in range(NP):
        for rt in range(2):
            prs = [ACC + 8*(2*pi) + 4*rt, ACC + 8*(2*pi) + 4*rt + 2, ACC + 8*(2*pi+1) + 4*rt, ACC + 8*(2*pi+1) + 4*rt + 2]
            T = 128 + 8*((2*pi+rt) & 1)
            for i, v in enumerate(prs): a(f"v_pk_mul_f32 v[{T+2*i}:{T+2*i+1}], v[{v}:{v+1}], s[56:57] op_sel_hi:[1,0]")
            for i in range(8): a(f"v_exp_f32 v{T+i}, -v{T+i}")
            for i in range(4): a(f"v_pk_add_f32 v[{T+2*i}:{T+2*i+1}], v[{T+2*i}:{T+2*i+1}], 1.0 op_sel_hi:[1,0]")
            for i in range(8): a(f"v_rcp_f32 v{T+i}, v{T+i}")
            for i, v in enumerate(prs): a(f"v_pk_mul_f32 v[{v}:{v+1}], v[{v}:{v+1}], v[{T+2*i}:{T+2*i+1}]")
            O = 160 + 4*(2*pi+rt)
            for i, v in enumerate(prs): a(f"v_cvt_pk_bf16_f32 v{O+i}, v{v}, v{v+1}")
            a(f"buffer_store_dwordx4 v[{O}:{O+3}], v44, s[32:35], s{60+rt} offen offset:{1024*pi}{STM}")

K2_LDS = 160 * 1024
def spin(a, name, loads, cond):
    a("s_mov_b32 s68, 0")
    a.label(f"{name}")
    for x in loads: a(x)
    a("s_waitcnt vmcnt(0)")
    for x in cond: a(x)
    a(f"s_cbranch_scc1 {name}_D")
    a("s_add_u32 s68, s68, 1")
    a("s_cmp_ge_u32 s68, 100000")
    a(f"s_cbranch_scc1 {name}_D")
    a("s_sleep %d" % opt("sl", 10))
    a(f"s_branch {name}")
    a.label(f"{name}_D")

def phase2(a):
    stamp(a, 6)
    a("s_waitcnt vmcnt(0) lgkmcnt(0)")
    a("s_barrier")
    a("s_cmp_eq_u32 s48, 0")
    a("s_cbranch_scc0 P2_NSIG")
    a("v_mov_b32 v25, 1")
    a(f"s_mov_b32 s58, {CNT_OFF}")
    a("s_cmp_eq_u32 s53, 0")
    a("s_cbranch_scc1 P2_SQ")
    a("s_lshl_b32 s57, s51, 7")
    a("v_mov_b32 v24, s57")
    a("v_lshlrev_b32 v26, 7, v1")
    a("s_mov_b64 exec, 1")
    a("buffer_atomic_add v25, v24, s[32:35], s58 offen")
    a("s_branch P2_SE")
    a.label("P2_SQ")
    a("s_lshl_b32 s57, s52, 7")
    a("s_add_u32 s57, s57, 2048")
    a("v_mov_b32 v24, s57")
    a("s_mov_b64 exec, 1")
    a("buffer_atomic_add v25, v24, s[32:35], s58 offen")
    a.label("P2_SE")
    a("s_mov_b64 exec, -1")
    a.label("P2_NSIG")
    a("s_and_b32 s49, s2, 7")
    a("s_lshr_b32 s50, s2, 3")
    a("s_and_b32 s51, s49, 1")
    a("s_lshl_b32 s51, s51, 4")
    a("s_bfe_u32 s52, s49, 0x10001")
    a("s_lshl_b32 s52, s52, 3")
    a("s_add_u32 s51, s51, s52")
    a("s_and_b32 s52, s50, 7")
    a("s_add_u32 s51, s51, s52")
    a("s_lshr_b32 s52, s49, 2")
    a("s_lshl_b32 s52, s52, 2")
    a("s_lshr_b32 s53, s50, 3")
    a("s_add_u32 s52, s52, s53")
    srd(a, 28, 18, 19, 2621440)
    a("v_lshlrev_b32 v5, 4, v1")
    a(f"v_mov_b32 v23, {OOB}")
    a("s_mul_i32 s56, s52, 5120")
    a(f"s_add_u32 s56, s56, {WF_OFF}")
    a("v_add_u32 v10, s56, v5")
    a("v_add_u32 v11, 4096, v10")
    a("s_mul_i32 s66, s48, 20480")
    a("v_lshrrev_b32 v24, 1, v2")
    a("v_xor_b32 v24, v24, v3")
    a("v_and_b32 v24, 3, v24")
    a("v_lshl_add_u32 v24, v2, 2, v24")
    a("v_lshlrev_b32 v24, 4, v24")
    a("v_add_u32 v13, s66, v24")
    a("v_lshrrev_b32 v14, 2, v1")
    a("v_and_b32 v15, 3, v1")
    a("v_lshrrev_b32 v24, 1, v14")
    a("v_xor_b32 v24, v24, v15")
    a("v_and_b32 v24, 3, v24")
    a("v_lshl_add_u32 v24, v14, 2, v24")
    a("v_lshlrev_b32 v12, 4, v24")
    a("s_cmp_ge_u32 s48, 4")
    a("s_cbranch_scc1 P2_OW")
    a(f"s_mul_i32 s55, s51, {4*54*1024}")
    for aa in range(4):
        a(f"s_add_u32 s56, s55, {aa*54*1024 + HF_OFF}")
        a(f"v_add_u32 v{6+aa}, s56, v5")
    a("s_mul_i32 s53, s48, 14")
    a("s_cmp_eq_u32 s48, 3")
    a("s_cselect_b32 s57, 1, 0")
    a("s_sub_u32 s53, s53, s57")
    a("s_lshl_b32 s60, s53, 10")
    a("s_mul_i32 s61, s53, 40960")
    a("s_lshr_b32 s62, s48, 1")
    a("s_lshr_b32 s57, s51, 1")
    a("s_lshl_b32 s57, s57, 7")
    a(f"s_add_u32 s57, s57, {CNT_OFF}")
    a("v_mov_b32 v24, s57")
    spin(a, "P2_SF", ["buffer_load_dwordx2 v[26:27], v24, s[32:35], 0 offen sc0 sc1"],
         ["v_readfirstlane_b32 s57, v26", "v_readfirstlane_b32 s58, v27", "s_mul_i32 s57, s57, 10", "s_min_u32 s57, s57, s58", "s_cmp_ge_u32 s57, 80"])
    a("s_branch P2_GEMM")
    a.label("P2_OW")
    a("s_setprio 3")
    WP = 0; KVF = 4096; ZR = 12288
    a("s_mul_i32 s56, s52, 3200")
    for k in range(4):
        a(f"v_add_u32 v24, {1024*k}, v5")
        a("v_add_u32 v25, s56, v24")
        a("v_cmp_gt_u32 vcc, 3200, v24")
        a("v_cndmask_b32 v25, v23, v25, vcc")
        a(f"buffer_load_dwordx4 v[{144+4*k}:{147+4*k}], v25, s[36:39], 0 offen")
    a("v_add_u32 v16, s66, v5")
    for z in range(4): a(f"v_mov_b32 v{160+z}, 0")
    for k in range(8): a(f"ds_write_b128 v16, v[160:163] offset:{ZR + 1024*k}")
    a("s_waitcnt vmcnt(0)")
    for k in range(4): a(f"ds_write_b128 v16, v[{144+4*k}:{147+4*k}] offset:{WP + 1024*k}")
    a("s_lshr_b32 s57, s51, 1")
    a("s_lshl_b32 s57, s57, 7")
    a(f"s_add_u32 s57, s57, {CNT_OFF + 8}")
    a("v_mov_b32 v24, s57")
    spin(a, "P2_SQ2", ["buffer_load_dword v25, v24, s[32:35], 0 offen sc0 sc1"], ["v_readfirstlane_b32 s57, v25", "s_cmp_ge_u32 s57, 8"])
    a("s_lshl_b32 s64, s51, 2")
    a("s_sub_u32 s57, s48, 4")
    a("s_add_u32 s64, s64, s57")
    a("s_lshl_b32 s65, s64, 3")
    a("s_add_u32 s65, s65, s52")
    a("s_mul_i32 s65, s65, 3072")
    a(f"s_add_u32 s65, s65, {QF_OFF}")
    for m in range(3):
        a(f"buffer_load_dwordx4 v[{208+4*m}:{211+4*m}], v5, s[32:35], s65 offen offset:{1024*m} sc0 sc1")
    a("v_lshrrev_b32 v26, 2, v1")
    a("v_and_b32 v26, 3, v26")
    a("v_and_b32 v27, 3, v1")
    a("v_mul_u32_u24 v28, 800, v3")
    a("v_mul_u32_u24 v29, 40, v26")
    a("v_add3_u32 v28, v28, v29, s66")
    a(f"v_add_u32 v29, {WP+3200}, v0" if False else f"v_mov_b32 v29, {WP+3200}")
    a("v_add_u32 v29, s66, v29")
    a("v_cmp_eq_u32 vcc, v27, v3")
    for i in range(5):
        a(f"v_add_u32 v30, {WP+160*i}, v28")
        a(f"v_cndmask_b32 v{31+i}, v29, v30, vcc")
    a("v_lshrrev_b32 v24, 2, v2")
    a("v_lshlrev_b32 v25, 4, v2")
    a(f"v_add_u32 v25, {KVF}, v25")
    a(f"v_mov_b32 v28, {ZR}")
    a("v_cmp_eq_u32 vcc, v24, v3")
    a("v_cndmask_b32 v17, v28, v25, vcc")
    a("v_add_u32 v17, s66, v17")
    WB = 144
    a("s_waitcnt vmcnt(0) lgkmcnt(0)")
    for z in (WB+10, WB+11, WB+22, WB+23): a(f"v_mov_b32 v{z}, 0")
    a(f"s_mov_b32 s56, {LOG2E}")
    a(f"s_mov_b32 s57, {LOG2E}")
    a("s_mul_i32 s65, s64, 20")
    a("s_lshr_b32 s67, s52, 1")
    a("s_mul_i32 s67, s67, 5")
    a("s_add_u32 s65, s65, s67")
    a("s_lshl_b32 s65, s65, 10")
    a(f"s_add_u32 s65, s65, {OF_OFF}")
    pq_mfma(a, 31, WB, 208, 64)
    softmax(a, 64, 84, 104, tmp=40)
    a("s_lshl_b32 s57, s52, 7")
    a(f"s_add_u32 s57, s57, {CNT_OFF + 2048}")
    a("v_mov_b32 v24, s57")
    spin(a, "P2_SK", ["buffer_load_dword v25, v24, s[32:35], 0 offen sc0 sc1"], ["v_readfirstlane_b32 s57, v25", "s_cmp_ge_u32 s57, 16"])
    a("v_lshlrev_b32 v24, 9, v3")
    a("v_lshl_add_u32 v20, v2, 4, v24")
    a(f"s_mul_i32 s62, s52, {KVQ}")
    a(f"s_add_u32 s62, s62, {KV_OFF}")
    a("v_add_u32 v24, 14336, v20")
    a(f"v_cmp_gt_u32 vcc, {KVQ}, v24")
    a("v_cndmask_b32 v21, v23, v20, vcc")
    for gq in range(8):
        vo = 20 if gq < 7 else 21
        a(f"buffer_load_dwordx4 v[{144+8*gq}:{147+8*gq}], v{vo}, s[32:35], s62 offen sc0 sc1")
        a(f"buffer_load_dwordx4 v[{148+8*gq}:{151+8*gq}], v{vo}, s[32:35], s62 offen offset:256 sc0 sc1")
        a("s_add_u32 s62, s62, 2048")
    a("s_waitcnt vmcnt(0)")
    for gq in range(8):
        for d in range(4):
            a(f"v_cvt_pk_bf16_f32 v{144+8*gq+d}, v{144+8*gq+2*d}, v{144+8*gq+2*d+1}")
        a(f"ds_write_b128 v16, v[{144+8*gq}:{147+8*gq}] offset:{KVF + 1024*gq}")
    a("s_waitcnt lgkmcnt(0)")
    AB = [168, 172, 176, 180, 184, 188, 192, 196, 200, 204]
    def kread(j):
        for m in range(5):
            b = AB[5*(j & 1) + m]
            a(f"ds_read_b128 v[{b}:{b+3}], v17 offset:{256*(5*j+m)}")
    kread(0)
    for j in range(6):
        if j < 5: kread(j + 1)
        a(f"s_waitcnt lgkmcnt({5 if j < 5 else 0})")
        D = 64 + 4*j
        for m in range(5):
            b = AB[5*(j & 1) + m]
            c = "0" if m == 0 else f"v[{D}:{D+3}]"
            a(f"v_mfma_f32_16x16x32_bf16 v[{D}:{D+3}], v[{b}:{b+3}], v[{104+4*m}:{107+4*m}], {c}")
    a("v_add_f32 v84, 0x358637bd, v84")
    a("v_rcp_f32 v84, v84")
    for i in range(0, 20, 2):
        a(f"v_pk_mul_f32 v[{64+i}:{65+i}], v[{64+i}:{65+i}], v[84:85] op_sel_hi:[1,0]")
    for i in range(10):
        a(f"v_cvt_pk_bf16_f32 v{124+i}, v{64+2*i}, v{65+2*i}")
    a("s_and_b32 s67, s52, 1")
    a("s_cmp_eq_u32 s67, 0")
    a("s_cbranch_scc0 P2_OODD")
    a("buffer_store_dwordx4 v[124:127], v5, s[32:35], s65 offen sc0 sc1")
    a("buffer_store_dwordx4 v[128:131], v5, s[32:35], s65 offen offset:1024 sc0 sc1")
    a("buffer_store_dwordx2 v[132:133], v5, s[32:35], s65 offen offset:2048 sc0 sc1")
    a("s_branch P2_OST")
    a.label("P2_OODD")
    a("buffer_store_dwordx2 v[124:125], v5, s[32:35], s65 offen offset:2056 sc0 sc1")
    a("buffer_store_dwordx4 v[126:129], v5, s[32:35], s65 offen offset:3072 sc0 sc1")
    a("s_add_u32 s67, s65, 4096")
    a("buffer_store_dwordx4 v[130:133], v5, s[32:35], s67 offen sc0 sc1")
    a.label("P2_OST")
    a("s_waitcnt vmcnt(0)")
    a("s_lshl_b32 s57, s51, 7")
    a(f"s_add_u32 s57, s57, {CNT_OFF + 3072}")
    a("v_mov_b32 v24, s57")
    a("v_mov_b32 v25, 1")
    a("s_mov_b64 exec, 1")
    a("buffer_atomic_add v25, v24, s[32:35], 0 offen")
    a("s_mov_b64 exec, -1")
    a(f"s_mul_i32 s55, s51, {4*20*1024}")
    for aa in range(4):
        a(f"s_add_u32 s56, s55, {aa*20*1024 + OF_OFF}")
        a(f"v_add_u32 v{6+aa}, s56, v5")
    a("s_sub_u32 s53, s48, 4")
    a("s_mul_i32 s53, s53, 5")
    a("s_lshl_b32 s60, s53, 10")
    a("s_add_u32 s53, s53, 54")
    a("s_mul_i32 s61, s53, 40960")
    a("s_mov_b32 s62, 0")
    a("s_lshr_b32 s57, s51, 1")
    a("s_lshl_b32 s57, s57, 7")
    a(f"s_add_u32 s57, s57, {CNT_OFF + 4}")
    a("v_mov_b32 v26, s57")
    spin(a, "P2_SW", ["buffer_load_dword v27, v26, s[32:35], 0 offen sc0 sc1"], ["v_readfirstlane_b32 s58, v27", "s_cmp_ge_u32 s58, 80"])
    for m in range(5):
        for tt_ in range(4): a(f"buffer_load_dwordx4 v[{144+20*m+4*tt_}:{147+20*m+4*tt_}], v10, s[32:35], s61 offen offset:{1024*tt_}{LDM}")
        a(f"buffer_load_dwordx4 v[{160+20*m}:{163+20*m}], v11, s[32:35], s61 offen{LDM}")
        a("s_add_u32 s61, s61, 40960")
    spin(a, "P2_SO", ["buffer_load_dword v25, v24, s[32:35], 0 offen sc0 sc1"], ["v_readfirstlane_b32 s57, v25", "s_cmp_ge_u32 s57, 32"])
    a.label("P2_GEMM")
    stamp(a, 7)
    AC = 64
    FB = [144, 180, 216, 28]
    vm = []
    def issue_list(g):
        P = FB[g % 4]
        L = []
        pre = []
        if g > 0: pre = ["s_add_u32 s60, s60, 1024", "s_add_u32 s61, s61, 40960"]
        if g == 13: pre += ["s_cmp_eq_u32 s62, 1", f"s_cselect_b32 s60, {OOB}, s60", f"s_cselect_b32 s61, {OOB}, s61"]
        for t in range(4): L.append(f"buffer_load_dwordx4 v[{P+16+4*t}:{P+19+4*t}], v10, s[32:35], s61 offen offset:{1024*t}{LDM}")
        L.append(f"buffer_load_dwordx4 v[{P+32}:{P+35}], v11, s[32:35], s61 offen{LDM}")
        for aa in range(4): L.append(f"buffer_load_dwordx4 v[{P+4*aa}:{P+4*aa+3}], v{6+aa}, s[32:35], s60 offen{LDM}")
        return [(pre + [L[0]], g)] + [([x], g) for x in L[1:]]
    def play(gr):
        for t in gr[0]: a(t)
        vm.append(gr[1])
    def gemm(NST, tagp):
        del vm[:]
        PD = opt("pd", 3)
        for g in range(PD):
            for gr in issue_list(g): play(gr)
        for g in range(NST):
            last = max(i for i, x in enumerate(vm) if x == g)
            a(f"s_waitcnt vmcnt({len(vm) - 1 - last})")
            P = FB[g % 4]
            lg = issue_list(g + PD) if g + PD < NST else []
            k2 = 0; nm = 0
            for t in range(5):
                for aa in range(4):
                    ac = AC + 16*t + 4*aa
                    cc = "0" if g == 0 else f"v[{ac}:{ac+3}]"
                    a(f"v_mfma_f32_16x16x32_bf16 v[{ac}:{ac+3}], v[{P+16+4*t}:{P+19+4*t}], v[{P+4*aa}:{P+4*aa+3}], {cc}")
                    nm += 1
                    want = (len(lg) * nm + 19) // 20
                    while k2 < min(want, len(lg)):
                        play(lg[k2]); k2 += 1
    a("s_cmp_ge_u32 s48, 4")
    a("s_cbranch_scc1 P2_G5")
    gemm(14, "f")
    a("s_branch P2_GE")
    a.label("P2_G5")
    OB = [28, 44, 244]
    def oreg(m, aa):
        if m < 2: return OB[m] + 4*aa
        if m == 2: return (244, 248, 252, 60)[aa]
        return OB[m - 3] + 4*aa
    def oload(m):
        for aa in range(4):
            r = oreg(m, aa)
            a(f"buffer_load_dwordx4 v[{r}:{r+3}], v{6+aa}, s[32:35], s60 offen offset:{1024*m if m < 4 else 0} sc1" if m < 4 else f"buffer_load_dwordx4 v[{r}:{r+3}], v{6+aa}, s[32:35], s63 offen{LDM}")
    a("s_add_u32 s63, s60, 4096")
    for m in range(3): oload(m)
    for m in range(5):
        a(f"s_waitcnt vmcnt({(8, 8, 8, 4, 0)[m]})")
        for tt_ in range(5):
            for aa in range(4):
                ac = AC + 16*tt_ + 4*aa
                cc = "0" if m == 0 else f"v[{ac}:{ac+3}]"
                r = oreg(m, aa)
                a(f"v_mfma_f32_16x16x32_bf16 v[{ac}:{ac+3}], v[{144+20*m+4*tt_}:{147+20*m+4*tt_}], v[{r}:{r+3}], {cc}")
        if m < 2: oload(m + 3)
    a.label("P2_GE")
    a("s_lshl_b32 s55, s51, 6")
    a("s_and_b32 s56, s48, 3")
    a("s_lshl_b32 s56, s56, 4")
    a("s_add_u32 s55, s55, s56")
    a("v_add_u32 v24, s55, v14")
    a("v_mul_u32_u24 v24, 1280, v24")
    a("v_lshl_add_u32 v24, v15, 3, v24")
    a("s_mul_i32 s56, s52, 160")
    a("v_add_u32 v22, s56, v24")
    XP = 28
    for t in range(5): a(f"buffer_load_dwordx2 v[{XP+2*t}:{XP+1+2*t}], v22, s[24:27], 0 offen offset:{32*t}")
    for aa in range(4):
        for t in range(5):
            a(f"ds_write_b128 v13, v[{AC+16*t+4*aa}:{AC+16*t+4*aa+3}] offset:{5120*aa + 1024*t}")
    a("s_waitcnt lgkmcnt(0)")
    a("s_barrier")
    a("s_cmp_ge_u32 s48, 4")
    a("s_cbranch_scc1 P2_DONE")
    a("s_mul_i32 s55, s48, 5120")
    a("v_add_u32 v4, s55, v12")
    a("v_add_u32 v21, 61440, v4")
    a("v_add_u32 v20, 122880, v4")
    for k in range(8):
        B = 64 + 20*k
        va = (4, 21, 20)[k // 3]
        for t in range(5):
            a(f"ds_read_b128 v[{B+4*t}:{B+4*t+3}], v{va} offset:{20480*(k % 3) + 1024*t}")
    for k in (1, 2, 3, 5, 6, 7):
        a(f"s_waitcnt lgkmcnt({min(15, 5*(7-k))})")
        D_ = 64 if k < 4 else 144
        for i in range(0, 20, 2):
            a(f"v_pk_add_f32 v[{D_+i}:{D_+i+1}], v[{D_+i}:{D_+i+1}], v[{64+20*k+i}:{65+20*k+i}]")
    a(f"s_mov_b32 s56, {LOG2E}")
    a(f"s_mov_b32 s57, {LOG2E}")
    FIN = 64; S_ = 144; T = 84
    for i in range(0, 20, 2): a(f"v_pk_mul_f32 v[{T+i}:{T+i+1}], v[{FIN+i}:{FIN+i+1}], s[56:57] op_sel_hi:[1,0]")
    for i in range(20): a(f"v_exp_f32 v{T+i}, -v{T+i}")
    for i in range(0, 20, 2): a(f"v_pk_add_f32 v[{T+i}:{T+i+1}], v[{T+i}:{T+i+1}], 1.0 op_sel_hi:[1,0]")
    for i in range(20): a(f"v_rcp_f32 v{T+i}, v{T+i}")
    for i in range(0, 20, 2): a(f"v_pk_mul_f32 v[{FIN+i}:{FIN+i+1}], v[{FIN+i}:{FIN+i+1}], v[{T+i}:{T+i+1}]")
    a("s_waitcnt vmcnt(0)")
    for t in range(5):
        for d in range(2):
            xr = XP + 2*t + d
            a(f"v_lshlrev_b32 v{T+20}, 16, v{xr}")
            a(f"v_and_b32 v{T+21}, 0xffff0000, v{xr}")
            i = 4*t + 2*d
            a(f"v_pk_fma_f32 v[{T+20}:{T+21}], v[{S_+i}:{S_+i+1}], v[{FIN+i}:{FIN+i+1}], v[{T+20}:{T+21}]")
            a(f"v_cvt_pk_bf16_f32 v{T+22+2*t+d}, v{T+20}, v{T+21}")
        a(f"buffer_store_dwordx2 v[{T+22+2*t}:{T+23+2*t}], v22, s[28:31], 0 offen offset:{32*t}")
    a.label("P2_DONE")
    if DIAG:
        a("s_waitcnt vmcnt(0)")
        stamp(a, 1)
    dump_stamps(a, 8, 0, 22, 23)

def desc(name, vgpr, sgpr=100):
    acc = min((vgpr + 3) // 4 * 4, 256)
    return f"""
.p2align 6
.amdhsa_kernel {name}
  .amdhsa_next_free_vgpr {vgpr}
  .amdhsa_next_free_sgpr {sgpr}
  .amdhsa_accum_offset {acc}
  .amdhsa_group_segment_fixed_size 0
  .amdhsa_kernarg_size 80
  .amdhsa_user_sgpr_count 2
  .amdhsa_user_sgpr_kernarg_segment_ptr 1
  .amdhsa_system_sgpr_workgroup_id_x 1
.end_amdhsa_kernel
"""

if __name__ == "__main__":
    k1 = gen_k1()
    hdr = f"""; generated by dev/gen8.py
; @launch kernel=k1_kernel grid=(256,1,1) block=(512,1,1) lds={K1_LDS}
.amdgcn_target "amdgcn-amd-amdhsa--gfx950"
.text
"""
    out = hdr + k1.text() + '.section .rodata,"a"\n' + desc("k1_kernel", 256)
    path = sys.argv[1] if len(sys.argv) > 1 and not sys.argv[1].startswith("--") else f"cdna_kernels/{NAME}.s"
    open(path, "w").write(out)
    print("written", path, len(out), "nops", k1.nops)
```

```python
import sys
from asmlib import Asm

NAME = "recurrent_scan__linear_kernel_hedgehog__dense_activation_silu__prompt"
HF_OFF = 0
QF_OFF = 128 * 54 * 1024
OF_OFF = QF_OFF + 128 * 8 * 3 * 1024
WF_OFF = OF_OFF + 128 * 20 * 1024
KV_OFF = WF_OFF + 74 * 40 * 1024
KVQ = 15360
ST_OFF = KV_OFF + 8 * KVQ
CP_OFF = ST_OFF + 16384
CNT_OFF = CP_OFF + 262144
WS_USED = CNT_OFF + 8192
OOB = 0x40000000
LOG2E = 0x3fb8aa3b
XF = [x[2:] for x in sys.argv if x.startswith("--")]
STM = " sc1"
LDM = "" if "plain" in XF else " sc1"
DIAG = "diag" in XF
DIAG_OFF = 16 << 20
def opt(name, dflt):
    v = [x[len(name):] for x in XF if x.startswith(name) and x[len(name):].isdigit()]
    return int(v[0]) if v else dflt

NS = 3
AOFF = 34816
STAGE = 51200
MISC = NS * STAGE
CSUM = MISC
SDUMP = MISC + 1024
PART = MISC + 2048
K1_LDS = 163840
PHK = 0; PHK_P = 352
VI = 128 * PHK_P; VI_P = 224
WPHI = VI + 128 * VI_P
KVS = WPHI + 4096
KVDUMP = KVS + 15360
KX = KVDUMP + 4096
W2S = 0

def stamp(a, i):
    if not DIAG: return
    a(f"s_memtime s[{80+2*i}:{81+2*i}]")
    a("s_waitcnt lgkmcnt(0)")
def dump_stamps(a, n, kidx, ws_lo, ws_hi):
    if not DIAG: return
    a("s_memrealtime s[96:97]")
    a("s_waitcnt lgkmcnt(0)")
    a(f"s_mov_b32 s76, s{ws_lo}")
    a(f"s_mov_b32 s77, s{ws_hi}")
    a(f"s_mov_b32 s78, {DIAG_OFF + (1 << 20)}")
    a("s_mov_b32 s79, 0x00020000")
    a("s_lshl_b32 s57, s2, 3")
    a("s_add_u32 s57, s57, s48")
    a("s_lshl_b32 s57, s57, 6")
    a(f"s_add_u32 s57, s57, {DIAG_OFF + kidx * 0x40000}")
    a("v_mov_b32 v250, s57")
    for i in range(n):
        a(f"v_mov_b32 v251, s{80+2*i}")
        a(f"buffer_store_dword v251, v250, s[76:79], 0 offen offset:{4*i}")
    a("v_mov_b32 v251, s96")
    a(f"buffer_store_dword v251, v250, s[76:79], 0 offen offset:60")

def srd(a, d, lo, hi, size):
    a(f"s_mov_b32 s{d}, s{lo}")
    a(f"s_mov_b32 s{d+1}, s{hi}")
    a(f"s_mov_b32 s{d+2}, {size}")
    a(f"s_mov_b32 s{d+3}, 0x00020000")
def bf16_round(a, v):
    a(f"v_cvt_pk_bf16_f32 v{v}, v{v}, v{v}")
    a(f"v_lshlrev_b32 v{v}, 16, v{v}")
def emit(a, x):
    if x.startswith("LABEL "): a.label(x[6:])
    else: a(x)

ACC = 64
XA, XB, YA, YB = 128, 136, 168, 176
DC = 208; DS = 216; ONES = 224
ASET = [(228, 229, 230, 231), (232, 233, 234, 235), (236, 237, 238, 239)]
VB = 4
ROLES = {
    0: ([160 + 8*j for j in range(5)] + [320 + 8*j for j in range(3)], 480, 30, 4),
    1: ([8*j for j in range(5)] + [320 + 8*j for j in (3, 4)], 480, 30, 4),
    2: ([32*t for t in range(8)], 544, 34, 5),
    3: ([32*t for t in range(6)], 416, 26, 4),
}
TD = opt("td", 0)
NPRO = opt("np", 2)

def gen_k1():
    a = Asm()
    a.raw(f".globl k1_kernel\n.p2align 8\n.type k1_kernel,@function\nk1_kernel:")
    a("s_cmp_ge_u32 s2, 256")
    a("s_cbranch_scc1 K1_END")
    stamp(a, 0)
    a("s_load_dwordx16 s[4:19], s[0:1], 0")
    a("s_load_dwordx4 s[20:23], s[0:1], 64")
    a("v_and_b32 v1, 63, v0")
    a("v_and_b32 v2, 15, v0")
    a("v_lshrrev_b32 v3, 4, v1")
    a("v_lshrrev_b32 v24, 6, v0")
    a("v_readfirstlane_b32 s48, v24")
    a("s_and_b32 s49, s2, 7")
    a("s_lshr_b32 s50, s2, 3")
    a("s_and_b32 s51, s49, 1")
    a("s_lshl_b32 s51, s51, 3")
    a("s_and_b32 s66, s50, 7")
    a("s_add_u32 s51, s51, s66")
    a("s_lshr_b32 s52, s49, 1")
    a("s_lshr_b32 s67, s50, 3")
    a("s_lshl_b32 s52, s52, 1")
    a("s_and_b32 s54, s67, 1")
    a("s_add_u32 s52, s52, s54")
    a("s_lshr_b32 s53, s67, 1")
    a("s_and_b32 s54, s48, 3")
    a("s_lshr_b32 s55, s48, 2")
    a("s_mul_i32 s58, s52, 3")
    a("s_add_u32 s58, s58, 3")
    a("s_lshl_b32 s57, s52, 2")
    a("s_cmp_lt_u32 s52, 3")
    a("s_cselect_b32 s58, s57, s58")
    a("s_cselect_b32 s68, 2, 3")
    a("s_cmp_eq_u32 s53, 0")
    a("s_cselect_b32 s68, s55, s68")
    a("s_mov_b32 s59, 30\ns_mov_b32 s64, 30\ns_movk_i32 s65, 480\ns_movk_i32 s69, 2185\ns_mov_b32 s70, 4")
    a("s_cmp_eq_u32 s68, 2")
    a("s_cselect_b32 s59, 32, s59\ns_cselect_b32 s64, 34, s64\ns_cselect_b32 s65, 544, s65\ns_cselect_b32 s69, 1928, s69\ns_cselect_b32 s70, 5, s70")
    a("s_cmp_eq_u32 s68, 3")
    a("s_cselect_b32 s59, 24, s59\ns_cselect_b32 s64, 26, s64\ns_cselect_b32 s65, 416, s65\ns_cselect_b32 s69, 2521, s69")
    a("s_mul_i32 s62, s52, 160")
    a("s_lshl_b32 s57, s58, 7")
    a("s_movk_i32 s63, 3840")
    a("s_cmp_eq_u32 s53, 0")
    a("s_cselect_b32 s62, s62, s57")
    a("s_cselect_b32 s63, s63, 3456")
    a(f"v_mov_b32 v13, {OOB}")
    a("s_mul_i32 s72, s48, s70")
    for jj in range(5):
        a(f"s_add_u32 s57, s72, {jj}")
        a("s_lshl_b32 s57, s57, 6")
        a("v_add_u32 v24, s57, v1")
        a("v_mul_u32_u24 v25, s69, v24")
        a("v_lshrrev_b32 v25, 16, v25")
        a("v_mul_u32_u24 v26, s64, v25")
        a("v_sub_u32 v26, v24, v26")
        a("v_lshrrev_b32 v27, 1, v25")
        a("v_and_b32 v27, 4, v27")
        a("v_xor_b32 v25, v25, v27")
        a("v_mul_u32_u24 v25, s63, v25")
        a("v_lshl_add_u32 v25, v26, 4, v25")
        a("v_add_u32 v25, s62, v25")
        a("v_mul_u32_u24 v27, 26, v26")
        a("v_lshrrev_b32 v27, 8, v27")
        a("v_mul_u32_u24 v27, 1120, v27")
        a("s_cmp_eq_u32 s53, 0")
        a("s_cselect_b64 vcc, -1, 0")
        a("v_cndmask_b32 v27, 0, v27, vcc")
        a("v_add_u32 v25, v25, v27")
        a("v_cmp_gt_u32 vcc, s59, v26")
        a(f"v_cndmask_b32 v{VB+jj}, v13, v25, vcc")
    a("v_lshrrev_b32 v24, 3, v1")
    a("v_xor_b32 v25, v24, v1")
    a("v_and_b32 v25, 7, v25")
    a("v_mul_u32_u24 v24, 1280, v24")
    a("v_lshl_add_u32 v24, v25, 4, v24")
    a("s_lshl_b32 s57, s51, 3")
    a("s_add_u32 s57, s57, s48")
    a("s_mul_i32 s57, s57, 20480")
    a("v_add_u32 v9, s57, v24")
    a("v_add_u32 v10, 10240, v9")
    a("v_and_b32 v24, 1, v1")
    a("v_mul_u32_u24 v24, 156, v24")
    a("v_lshrrev_b32 v25, 1, v1")
    a("v_mul_u32_u24 v25, 1280, v25")
    a("v_add_u32 v24, v24, v25")
    a("v_lshlrev_b32 v25, 7, v1")
    a("s_cmp_eq_u32 s53, 0")
    a("s_cselect_b64 vcc, -1, 0")
    a("v_cndmask_b32 v24, v25, v24, vcc")
    a("s_lshl_b32 s57, s66, 3")
    a("s_add_u32 s57, s57, s48")
    a("s_mul_i32 s57, s57, s63")
    a("s_add_u32 s57, s57, s62")
    a("v_add_u32 v11, s57, v24")
    a("s_lshl_b32 s57, s67, 3")
    a("s_add_u32 s57, s57, s48")
    a("s_lshl_b32 s57, s57, 2")
    a("s_lshl_b32 s61, s51, 7")
    a("s_add_u32 s57, s57, s61")
    a("v_add_u32 v24, s57, v1")
    a("v_mul_u32_u24 v12, 1280, v24")
    a("s_lshl_b32 s57, s53, 3")
    a("s_add_u32 s71, s57, s52")
    a("s_lshl_b32 s57, s71, 3")
    a("s_add_u32 s57, s57, s48")
    a("s_lshl_b32 s61, s51, 7")
    a("s_add_u32 s49, s57, s61")
    a("s_mul_i32 s57, s49, 1280")
    a("v_lshlrev_b32 v24, 5, v1")
    a("v_add_u32 v24, s57, v24")
    a("v_cmp_gt_u32 vcc, 40, v1")
    a("v_cndmask_b32 v14, v13, v24, vcc")
    a("v_mul_u32_u24 v24, 13, v1")
    a("v_lshrrev_b32 v24, 8, v24")
    a("v_mul_u32_u24 v24, 1120, v24")
    a("s_cmp_eq_u32 s53, 0")
    a("s_cselect_b64 vcc, -1, 0")
    a("v_cndmask_b32 v24, 0, v24, vcc")
    a("v_lshl_add_u32 v24, v1, 3, v24")
    a("s_mul_i32 s57, s51, 40")
    a("s_mul_i32 s61, s48, 5")
    a("s_add_u32 s57, s57, s61")
    a("s_mul_i32 s57, s57, s63")
    a("s_add_u32 s57, s57, s62")
    a("v_add_u32 v24, s57, v24")
    a("s_lshl_b32 s57, s59, 1")
    a("v_cmp_gt_u32 vcc, s57, v1")
    a("v_cndmask_b32 v15, v13, v24, vcc")
    A0, A1, B0, B1 = ASET[0]
    a("s_lshl_b32 s57, s54, 12")
    a(f"s_add_u32 s57, s57, {AOFF}")
    a("v_xor_b32 v24, v3, v2")
    a("v_and_b32 v24, 7, v24")
    a("v_lshl_add_u32 v24, v2, 3, v24")
    a("v_lshlrev_b32 v24, 4, v24")
    a(f"v_add_u32 v{A0}, s57, v24")
    a(f"v_xor_b32 v{A1}, 64, v{A0}")
    a("v_and_b32 v26, 3, v1")
    a("v_mul_u32_u24 v27, 40, v26")
    a("v_lshlrev_b32 v26, 3, v26")
    a("s_lshl_b32 s57, s59, 3")
    a("s_mul_i32 s57, s57, s55")
    a("v_add_u32 v26, s57, v26")
    a("s_cmp_eq_u32 s53, 0")
    a("s_cselect_b64 vcc, -1, 0")
    a("v_cndmask_b32 v26, v26, v27, vcc")
    a("v_lshrrev_b32 v24, 2, v1")
    a("v_and_b32 v24, 3, v24")
    a("v_lshl_add_u32 v24, v3, 3, v24")
    a("v_and_b32 v25, 1, v3")
    a("v_lshlrev_b32 v25, 2, v25")
    a("v_add_u32 v27, v24, v25")
    a("v_xor_b32 v25, 4, v25")
    a("v_add_u32 v28, v24, v25")
    a("v_mul_u32_u24 v27, s65, v27")
    a("v_mul_u32_u24 v28, s65, v28")
    a(f"v_add_u32 v{B0}, v27, v26")
    a(f"v_add_u32 v{B1}, v28, v26")
    for st in (1, 2):
        for k in range(4): a(f"v_add_u32 v{ASET[st][k]}, {st*STAGE}, v{ASET[0][k]}")
    for k in range(4): a(f"v_mov_b32 v{ONES+k}, 0x3f803f80")
    a("v_lshlrev_b32 v24, 4, v0")
    a("s_mul_i32 s57, s52, 3200")
    a("v_add_u32 v25, s57, v24")
    a("v_cmp_gt_u32 vcc, 3200, v24")
    a("v_cndmask_b32 v16, v13, v25, vcc")
    a("s_mov_b32 s61, 0")
    a("s_mov_b32 s60, 0")
    a("s_lshl_b32 s56, s63, 6")
    a("s_lshl_b32 s73, s72, 10")
    a("s_lshl_b32 s74, s48, 11")
    a(f"s_add_u32 s74, s74, {AOFF}")
    a("s_sub_u32 s75, s64, s72")
    a("s_waitcnt lgkmcnt(0)")
    stamp(a, 1)
    srd(a, 24, 4, 5, 2621440)
    a("s_cmp_eq_u32 s53, 0")
    a("s_cselect_b32 s28, s6, s14")
    a("s_cselect_b32 s29, s7, s15")
    a(f"s_mov_b32 s30, {640*1728*2}")
    a(f"s_cselect_b32 s30, {640*1920*2}, s30")
    a("s_mov_b32 s31, 0x00020000")
    a(f"s_mul_i32 s57, s52, {KVQ}")
    a(f"s_add_u32 s57, s57, {KV_OFF}")
    a("s_add_u32 s40, s22, s57")
    a("s_addc_u32 s41, s23, 0")
    a(f"s_mov_b32 s42, {KVQ}")
    a("s_mov_b32 s43, 0x00020000")
    srd(a, 32, 22, 23, WS_USED)
    srd(a, 44, 20, 21, 256)
    srd(a, 36, 8, 9, 25600)
    a("s_or_b32 s57, s51, s53")
    a("s_cmp_eq_u32 s57, 0")
    a("s_cbranch_scc0 K1_NOZERO")
    a("v_lshlrev_b32 v24, 4, v0")
    a("v_mov_b32 v28, 0\nv_mov_b32 v29, 0\nv_mov_b32 v30, 0\nv_mov_b32 v31, 0")
    for z in range(2):
        a(f"s_mov_b32 s57, {8192*z}")
        a("buffer_store_dwordx4 v[28:31], v24, s[40:43], s57 offen sc0 sc1")
    a("s_cmp_eq_u32 s52, 0")
    a("s_cbranch_scc0 K1_NOZERO")
    a(f"s_mov_b32 s57, {CNT_OFF}")
    a("buffer_store_dwordx4 v[28:31], v24, s[32:35], s57 offen sc0 sc1")
    a.label("K1_NOZERO")
    if "lin" in XF:
        a("s_lshl_b32 s57, s2, 3")
        a("s_add_u32 s57, s57, s48")
        a("s_mul_i32 s57, s57, 1280")
        a("v_lshlrev_b32 v24, 7, v1")
        a("s_mov_b64 exec, 0x3ff")
        srd(a, 76, 6, 7, 640*1920*2)
        a("buffer_load_dword v17, v24, s[76:79], s57 offen")
        a("buffer_load_dword v18, v24, s[24:27], s57 offen")
        srd(a, 92, 14, 15, 640*1728*2)
        a("buffer_load_dword v19, v24, s[92:95], s57 offen")
        if "lin2" in XF:
            srd(a, 76, 16, 17, 640*1728*2)
            a("buffer_load_dword v17, v24, s[76:79], s57 offen")
            srd(a, 92, 10, 11, 640*640*2)
            a("buffer_load_dword v19, v24, s[92:95], s57 offen")
        a("s_mov_b64 exec, -1")
    a("s_cmp_eq_u32 s68, 1")
    a("s_cbranch_scc1 K1_T1")
    a("s_cmp_eq_u32 s68, 2")
    a("s_cbranch_scc1 K1_T2")
    a("s_cmp_eq_u32 s68, 3")
    a("s_cbranch_scc1 K1_T3")
    for ro in range(4):
        a.label(f"K1_T{ro}")
        k1_body(a, ro)
        if ro != 1: a("s_branch K1_P2")
    a.label("K1_P2")
    phase2(a)
    a.label("K1_END")
    a("s_endpgm")
    return a

def dma_stage(ro, st):
    imms, pitch, U, nsl = ROLES[ro]
    G = []
    for jj in range(nsl):
        g = []
        maybe = jj >= U - 7*nsl
        if maybe:
            g += [f"s_cmp_gt_i32 s75, {jj}", "s_cselect_b64 exec, -1, 1", f"s_cselect_b32 s57, s73, {SDUMP - st*STAGE - 1024*jj}", f"s_add_u32 m0, s57, {st*STAGE + 1024*jj}"]
        else:
            g += [f"s_add_u32 m0, s73, {st*STAGE + 1024*jj}"]
        g.append(f"buffer_load_dwordx4 v{VB+jj}, s[28:31], s61 offen lds")
        if maybe: g.append("s_mov_b64 exec, -1")
        G.append(g)
    G[-1].append("s_add_u32 s61, s61, s56")
    for jj in range(2):
        G.append([f"s_add_u32 m0, s74, {st*STAGE + 1024*jj}", f"buffer_load_dwordx4 v{9+jj}, s[24:27], s60 offen lds"])
    G[-1].append("s_add_u32 s60, s60, 128")
    return G

def touch(ro, s):
    P = {0: 6, 1: 6, 2: 4, 3: 3}[ro]
    return [f"s_mov_b64 exec, {(1 << P) - 1}", f"s_mul_i32 s57, s56, {s}", "T:buffer_load_dword v62, v11, s[28:31], s57 offen",
            "s_mov_b64 exec, 15", f"T:buffer_load_dword v63, v12, s[24:27], 0 offen offset:{128*s}", "s_mov_b64 exec, -1"]

def frag_reads(ro, A, B, st, ks2):
    imms, pitch, U, nsl = ROLES[ro]
    A0, A1, B0, B1 = ASET[st]
    va = A1 if ks2 else A0
    off = 32 * pitch * ks2
    L = [f"ds_read_b128 v[{A}:{A+3}], v{va}", f"ds_read_b128 v[{A+4}:{A+7}], v{va} offset:2048"]
    for t, im in enumerate(imms):
        L.append(f"ds_read_b64_tr_b16 v[{B+4*t}:{B+4*t+1}], v{B0} offset:{off+im}")
        L.append(f"ds_read_b64_tr_b16 v[{B+4*t+2}:{B+4*t+3}], v{B1} offset:{off+im}")
    return L

def k1_body(a, ro):
    imms, pitch, U, nsl = ROLES[ro]
    NT = len(imms)
    vm = []
    def em(x, tag):
        if x.startswith("T:"):
            a(x[2:]); vm.append("t")
        elif x.startswith("buffer_load"):
            a(x); vm.append(tag[1].pop(0) if isinstance(tag, tuple) else tag)
        else: emit(a, x)
    def waitv(tag, lg=False):
        last = max(i for i, x in enumerate(vm) if x == tag)
        n = min(63, len(vm) - 1 - last)
        a(f"s_waitcnt vmcnt({n})" + (" lgkmcnt(0)" if lg else ""))
    em("buffer_load_dwordx4 v[128:131], v14, s[24:27], 0 offen", "sl")
    em("buffer_load_dwordx4 v[132:135], v14, s[24:27], 0 offen offset:16", "sl")
    a("s_mov_b32 s57, 0")
    for i in range(5):
        em(f"buffer_load_dwordx2 v[{136+2*i}:{137+2*i}], v15, s[28:31], s57 offen", "sl")
        if i < 4: a("s_add_u32 s57, s57, s63")
    for st in range(NPRO):
        for g in dma_stage(ro, st):
            for x in g: em(x, st)
        if st < NPRO - 1 and "nobar" not in XF: a("s_barrier")
        if st == NPRO - 1:
            waitv("sl")
            for i in range(5):
                for d in range(2):
                    a(f"v_lshlrev_b32 v{148+4*i+2*d}, 16, v{136+2*i+d}")
                    a(f"v_and_b32 v{149+4*i+2*d}, 0xffff0000, v{136+2*i+d}")
            for i in range(1, 5):
                a(f"v_pk_add_f32 v[148:149], v[148:149], v[{148+4*i}:{149+4*i}]")
                a(f"v_pk_add_f32 v[150:151], v[150:151], v[{150+4*i}:{151+4*i}]")
            a("v_lshlrev_b32 v24, 4, v0")
            a(f"v_add_u32 v24, {PART}, v24")
            a("ds_write_b128 v24, v[148:151]")
            for d in range(8):
                a(f"v_lshlrev_b32 v{168+2*d}, 16, v{128+d}")
                a(f"v_and_b32 v{169+2*d}, 0xffff0000, v{128+d}")
            a("v_pk_add_f32 v[184:185], v[168:169], v[170:171]")
            for d in range(2, 8): a(f"v_pk_add_f32 v[184:185], v[184:185], v[{168+2*d}:{169+2*d}]")
            a("v_add_f32 v184, v184, v185")
            def xreduce(v):
                for sh in (1, 2, 4, 8): a(f"v_add_f32_dpp v{v}, v{v}, v{v} row_shr:{sh} row_mask:0xf bank_mask:0xf bound_ctrl:0")
                a(f"v_add_f32_dpp v{v}, v{v}, v{v} row_bcast:15 row_mask:0xa bank_mask:0xf")
                a(f"v_add_f32_dpp v{v}, v{v}, v{v} row_bcast:31 row_mask:0xc bank_mask:0xf")
            xreduce(184)
            a("v_readlane_b32 s57, v184, 63")
            a("v_mov_b32 v186, 0x3acccccd")
            a("v_mul_f32 v186, s57, v186")
            a("v_mov_b32 v184, 0")
            a("v_mov_b32 v185, 0")
            a("s_mov_b32 exec_hi, 0xff")
            for d in range(8):
                a(f"v_pk_add_f32 v[{168+2*d}:{169+2*d}], v[{168+2*d}:{169+2*d}], v[186:187] op_sel_hi:[1,0] neg_lo:[0,1] neg_hi:[0,1]")
            for d in range(8):
                a(f"v_pk_fma_f32 v[184:185], v[{168+2*d}:{169+2*d}], v[{168+2*d}:{169+2*d}], v[184:185]")
            a("s_mov_b64 exec, -1")
            a("v_add_f32 v184, v184, v185")
            xreduce(184)
            a("v_readlane_b32 s57, v184, 63")
            a("v_mov_b32 v187, 0x3acccccd")
            a("v_mul_f32 v187, s57, v187")
            bf16_round(a, 186)
            bf16_round(a, 187)
            a("v_add_f32 v187, 0x3727c5ac, v187")
            bf16_round(a, 187)
            a("v_sqrt_f32 v187, v187")
            bf16_round(a, 187)
            a("v_rcp_f32 v187, v187")
            a("s_lshl_b32 s57, s49, 3")
            a(f"s_add_u32 s57, s57, {ST_OFF}")
            a("v_mov_b32 v24, 0")
            a("s_mov_b64 exec, 1")
            a("buffer_store_dwordx2 v[186:187], v24, s[32:35], s57 offen sc0 sc1")
            vm.append("ss")
            a("s_mov_b64 exec, -1")
    if ro < 2:
        em("buffer_load_dwordx4 v[252:255], v16, s[36:39], 0 offen", "aux")
    for sl in range(NS, min(10, TD)):
        for x in touch(ro, sl): em(x, "t")
    if ro == 3: w2f_prep(a)
    stamp(a, 2)
    waitv(0, True)
    a("s_barrier")
    stamp(a, 3)
    a("s_cmp_eq_u32 s48, 7")
    a(f"s_cbranch_scc0 K1_NCP{ro}")
    a("v_lshlrev_b32 v24, 4, v1")
    a(f"v_add_u32 v25, {PART}, v24")
    for k in range(8): a(f"ds_read_b128 v[{168+4*k}:{171+4*k}], v25 offset:{1024*k}")
    a("s_waitcnt lgkmcnt(0)")
    for k in range(1, 8):
        a(f"v_pk_add_f32 v[168:169], v[168:169], v[{168+4*k}:{169+4*k}]")
        a(f"v_pk_add_f32 v[170:171], v[170:171], v[{170+4*k}:{171+4*k}]")
    a("s_lshl_b32 s57, s71, 4")
    a("s_add_u32 s57, s57, s51")
    a("s_lshl_b32 s57, s57, 10")
    a(f"s_add_u32 s57, s57, {CP_OFF}")
    a("buffer_store_dwordx4 v[168:171], v24, s[32:35], s57 offen sc0 sc1")
    a("s_nop 1")
    a.label(f"K1_NCP{ro}")
    if ro == 0:
        a("s_or_b32 s57, s51, s48")
        a("s_cmp_eq_u32 s57, 0")
        a("s_cbranch_scc0 K1_NOFLAG")
        a("s_lshl_b32 s57, s52, 2")
        a("v_mov_b32 v24, s57")
        a("v_mov_b32 v25, 1")
        a("s_mov_b64 exec, 1")
        a("buffer_atomic_add v25, v24, s[44:47], 0 offen")
        a("s_mov_b64 exec, -1")
        a.label("K1_NOFLAG")
    def hooks(s):
        L = []
        if ro == 3 and s in (5, 6, 8, 9): L += w2f_out({5: 0, 6: 1, 8: 2, 9: 3}[s])
        if ro == 3 and s == 11: L += w2f_out(4)
        if s == 15: L += ["v_mov_b32 v17, 0", "buffer_load_dword v17, v17, s[44:47], 0 offen sc0 sc1"]
        if s == 5:
            L += ["s_cmp_eq_u32 s48, 0", f"s_cbranch_scc0 K1_NSG{ro}", "s_lshl_b32 s57, s51, 2", "s_add_u32 s57, s57, 64", "v_mov_b32 v24, s57",
                  "s_lshl_b32 s57, s71, 2", "s_add_u32 s57, s57, 128", "v_mov_b32 v26, s57", "v_mov_b32 v25, 1", "s_mov_b64 exec, 1",
                  "buffer_atomic_add v25, v24, s[44:47], 0 offen", "buffer_atomic_add v25, v26, s[44:47], 0 offen", "s_mov_b64 exec, -1", f"LABEL K1_NSG{ro}"]
        if s == 15:
            L += ["s_lshl_b32 s57, s51, 2", "s_add_u32 s57, s57, 64", "v_mov_b32 v56, s57", "s_lshl_b32 s57, s71, 2", "s_add_u32 s57, s57, 128", "v_mov_b32 v57, s57",
                  "buffer_load_dword v58, v56, s[44:47], 0 offen sc0 sc1", "buffer_load_dword v59, v57, s[44:47], 0 offen sc0 sc1"]
        if s == 17:
            L += ["s_mov_b32 s60, 0", "s_waitcnt vmcnt(0)", f"LABEL K1_PS{ro}", "v_readfirstlane_b32 s57, v58", "v_readfirstlane_b32 s61, v59", "s_and_b32 s57, s57, 0xff", "s_min_u32 s57, s57, s61",
                  "s_cmp_ge_u32 s57, 16", f"s_cbranch_scc1 K1_PSD{ro}", "s_add_u32 s60, s60, 1", "s_cmp_ge_u32 s60, 100000", f"s_cbranch_scc1 K1_PSD{ro}", "s_sleep 8",
                  "buffer_load_dword v58, v56, s[44:47], 0 offen sc0 sc1", "buffer_load_dword v59, v57, s[44:47], 0 offen sc0 sc1", "s_waitcnt vmcnt(0)", f"s_branch K1_PS{ro}", f"LABEL K1_PSD{ro}"]
            L += ["s_lshl_b32 s57, s51, 2", "s_add_u32 s57, s57, s54", "s_lshl_b32 s57, s57, 8", f"s_add_u32 s57, s57, {ST_OFF}", "v_lshlrev_b32 v24, 3, v2",
                  "buffer_load_dwordx2 v[20:21], v24, s[32:35], s57 offen sc0 sc1", "buffer_load_dwordx2 v[22:23], v24, s[32:35], s57 offen offset:128 sc0 sc1"]
            L += ["s_cmp_lt_u32 s48, 4", f"s_cbranch_scc0 K1_NCL{ro}", "s_lshl_b32 s57, s71, 14", f"s_add_u32 s57, s57, {CP_OFF}", "s_lshl_b32 s61, s48, 2", "s_add_u32 s57, s57, s61",
                  "v_lshlrev_b32 v24, 4, v1"]
            for p in range(16):
                L += [f"buffer_load_dword v{40+p}, v24, s[32:35], s57 offen offset:{1024*(p & 3)} sc0 sc1"]
                if p & 3 == 3: L += ["s_add_u32 s57, s57, 4096"]
            L += [f"LABEL K1_NCL{ro}"]
        return L
    for s in frag_reads(ro, XA, XB, 0, 0): a(s)
    for s in range(20):
        i = s >> 1; odd = s & 1
        CA, CB, NA, NB = (XA, XB, YA, YB) if not odd else (YA, YB, XA, XB)
        dma = []
        if not odd:
            a("s_waitcnt lgkmcnt(0)")
            rd = frag_reads(ro, NA, NB, i % NS, 1)
            if TD and NS <= i + TD < 10: dma = [touch(ro, i + TD)]
            tag = "t"
            if s == 0 and NPRO < 3:
                dma = sum((dma_stage(ro, st2) for st2 in range(NPRO, 3)), [])
                tagl = [st2 for st2 in range(NPRO, 3) for _ in range(nsl + 2)]
                tag = ("L", tagl)
        else:
            if i < 9:
                if "nodma" in XF and i + 1 >= NS: a("s_waitcnt lgkmcnt(0)")
                else: waitv(i + 1, True)
                a("s_barrier")
                rd = frag_reads(ro, NA, NB, (i + 1) % NS, 0)
            else:
                a("s_waitcnt lgkmcnt(0)")
                a("s_barrier")
                rd = []
            if i + NS < 10 and "nodma" not in XF: dma = dma_stage(ro, i % NS)
            if ro == 3 and s == 1: dma = [w2f_dma(n_) for n_ in range(4)] + dma
            if ro == 3 and s == 7: dma = [w2f_dma(4)] + dma
            tag = i + NS
        if "nord" in XF: rd = []
        rd = [[x] for x in rd]
        side = []
        k = 0
        step = max(1, len(rd) // (len(dma) + 1)) if dma else len(rd)
        for d in dma:
            side += rd[k:k+step]; k += step; side.append(d)
        side += rd[k:]
        mf = []
        for t in range(NT):
            for rt in range(2):
                ac = ACC + 8*t + 4*rt
                c = "0" if s == 0 else f"v[{ac}:{ac+3}]"
                mf.append(f"v_mfma_f32_16x16x32_bf16 v[{ac}:{ac+3}], v[{CB+4*t}:{CB+4*t+3}], v[{CA+4*rt}:{CA+4*rt+3}], {c}")
        st_blk = []
        def stat_m(kind):
            L = []
            for rt in range(2):
                ac = DS + 4*rt
                c = "0" if s == 0 else f"v[{ac}:{ac+3}]"
                A_ = ONES if kind == 0 else CA + 4*rt
                L.append(f"v_mfma_f32_16x16x32_bf16 v[{ac}:{ac+3}], v[{A_}:{A_+3}], v[{CA+4*rt}:{CA+4*rt+3}], {c}")
            return L
        if False:
            st_blk = ["s_cmp_eq_u32 s55, 0", f"s_cbranch_scc0 K1_SG{ro}_{s}"] + stat_m(0) + [f"s_branch K1_SE{ro}_{s}", f"LABEL K1_SG{ro}_{s}"] + stat_m(1) + [f"LABEL K1_SE{ro}_{s}"]
        cs = []
        for q in range(4):
            tl = [t for t in range(NT) if t % 4 == q]
            if q < 3: cs += [f"s_cmp_eq_u32 s54, {q}", f"s_cbranch_scc0 K1_CS{ro}_{s}_{q+1}"]
            for k2, t in enumerate(tl):
                ac = DC + 4*k2
                c = "0" if s == 0 else f"v[{ac}:{ac+3}]"
                cs.append(f"v_mfma_f32_16x16x32_bf16 v[{ac}:{ac+3}], v[{CB+4*t}:{CB+4*t+3}], v[{ONES}:{ONES+3}], {c}")
            if q < 3: cs += [f"s_branch K1_CSE{ro}_{s}", f"LABEL K1_CS{ro}_{s}_{q+1}"]
        cs.append(f"LABEL K1_CSE{ro}_{s}")
        nfirst = len(mf) - 3
        per = max(1, -(-len(side) // max(1, nfirst - 1)))
        si = 0
        for k, m in enumerate(mf):
            a(m)
            if k < nfirst:
                for _ in range(per):
                    if si < len(side):
                        for x in side[si]: em(x, tag)
                        si += 1
            if k == nfirst - 1:
                while si < len(side):
                    for x in side[si]: em(x, tag)
                    si += 1
                for x in hooks(s): emit(a, x)
    stamp(a, 4)
    if ro < 2:
        a("s_lshl_b32 s57, s52, 2")
        a("v_mov_b32 v60, s57")
        a("buffer_load_dword v61, v60, s[44:47], 0 offen sc0 sc1")
    a("s_waitcnt vmcnt(%d)" % (0 if ro >= 2 else 1))
    a("s_cmp_lt_u32 s48, 4")
    a(f"s_cbranch_scc0 K1_NCS{ro}")
    for p in range(0, 16, 2):
        if p: a(f"v_pk_add_f32 v[40:41], v[40:41], v[{40+p}:{41+p}]")
    a("v_add_f32 v40, v40, v41")
    a("s_lshl_b32 s57, s48, 2")
    a(f"s_add_u32 s57, s57, {CSUM}")
    a("v_lshlrev_b32 v24, 4, v1")
    a("v_add_u32 v24, s57, v24")
    a("ds_write_b32 v24, v40")
    if ro < 2:
        a("v_lshlrev_b32 v29, 4, v0" if False else "v_lshlrev_b32 v25, 4, v0")
        a(f"v_add_u32 v25, {WPHI}, v25")
        a("ds_write_b128 v25, v[252:255]")
    a.label(f"K1_NCS{ro}")
    a("s_waitcnt lgkmcnt(0)")
    a("s_barrier")
    a("s_cmp_eq_u32 s48, 0")
    a(f"s_cbranch_scc0 K1_NZ{ro}")
    a("v_readfirstlane_b32 s57, v17")
    a("s_cmp_lg_u32 s57, 0")
    a(f"s_cbranch_scc1 K1_ZOK{ro}")
    a("v_mov_b32 v24, 0")
    spin(a, f"K1_SZ{ro}", ["buffer_load_dword v25, v24, s[44:47], 0 offen sc0 sc1"], ["v_readfirstlane_b32 s57, v25", "s_cmp_lg_u32 s57, 0"])
    a.label(f"K1_ZOK{ro}")
    if ro == 3:
        a("v_mov_b32 v25, 1")
        a(f"s_mov_b32 s57, {CNT_OFF}")
        a("v_lshlrev_b32 v26, 7, v1")
        a("s_mov_b64 exec, 0xffff")
        a("buffer_atomic_add v25, v26, s[32:35], s57 offen offset:4")
        a("s_mov_b64 exec, -1")
    a.label(f"K1_NZ{ro}")
    CR = 128
    if ro < 2:
        a("v_mul_u32_u24 v26, 80, v3")
        a(f"v_add_u32 v26, {CSUM}, v26")
        for t, im in enumerate(imms):
            seg, j = im // 160, (im % 160) // 8
            a(f"ds_read_b128 v[{CR+4*t}:{CR+4*t+3}], v26 offset:{16*(20*seg + j)}")
    else:
        a("v_lshlrev_b32 v26, 4, v3")
        a(f"s_mul_i32 s57, s55, {64*NT}")
        a(f"s_add_u32 s57, s57, {CSUM}")
        a("v_add_u32 v26, s57, v26")
        for t in range(NT):
            a(f"ds_read_b128 v[{CR+4*t}:{CR+4*t+3}], v26 offset:{64*t}")
    a("v_mov_b32 v28, v20")
    a("v_mov_b32 v32, v21")
    a("v_mov_b32 v30, v22")
    a("v_mov_b32 v34, v23")
    a("s_waitcnt lgkmcnt(0)")
    for t in range(NT):
        for rt in range(2):
            for h in range(2):
                ac = ACC + 8*t + 4*rt + 2*h
                a(f"v_pk_fma_f32 v[{ac}:{ac+1}], v[{CR+4*t+2*h}:{CR+4*t+2*h+1}], v[{28+2*rt}:{29+2*rt}], v[{ac}:{ac+1}] op_sel_hi:[1,0,1] neg_lo:[0,1,0] neg_hi:[0,1,0]")
    for t in range(NT):
        for rt in range(2):
            for h in range(2):
                ac = ACC + 8*t + 4*rt + 2*h
                a(f"v_pk_mul_f32 v[{ac}:{ac+1}], v[{ac}:{ac+1}], v[{32+2*rt}:{33+2*rt}] op_sel_hi:[1,0]")
    stamp(a, 5)
    if ro < 2: k1_epi_qkv(a, ro)
    else: k1_epi_h(a, ro)
def softmax(a, P, E, O, tmp=40):
    t0, t2, t4, t6 = tmp, tmp + 2, tmp + 4, tmp + 6
    a(f"v_max3_f32 v{t0}, v{P}, v{P+1}, v{P+2}")
    a(f"v_min3_f32 v{t2}, v{P}, v{P+1}, v{P+2}")
    for i in range(3, 19, 2):
        a(f"v_max3_f32 v{t0}, v{t0}, v{P+i}, v{P+i+1}")
        a(f"v_min3_f32 v{t2}, v{t2}, v{P+i}, v{P+i+1}")
    a(f"v_max_f32 v{t0}, v{t0}, v{P+19}")
    a(f"v_min_f32 v{t2}, v{t2}, v{P+19}")
    a(f"v_mul_f32 v{t0}, s56, v{t0}")
    a(f"v_mul_f32 v{t2}, s56, v{t2}")
    for i in range(0, 20, 2):
        a(f"v_pk_fma_f32 v[{E+i}:{E+i+1}], v[{P+i}:{P+i+1}], s[56:57], v[{t0}:{t0+1}] op_sel_hi:[1,0,0] neg_lo:[0,0,1] neg_hi:[0,0,1]")
        a(f"v_pk_fma_f32 v[{P+i}:{P+i+1}], v[{P+i}:{P+i+1}], s[56:57], v[{t2}:{t2+1}] op_sel_hi:[1,0,0] neg_lo:[1,0,0] neg_hi:[1,0,0]")
    for i in range(20):
        a(f"v_exp_f32 v{E+i}, v{E+i}")
        a(f"v_exp_f32 v{P+i}, v{P+i}")
    a(f"v_pk_add_f32 v[{t4}:{t4+1}], v[{E}:{E+1}], v[{E+2}:{E+3}]")
    a(f"v_pk_add_f32 v[{t6}:{t6+1}], v[{P}:{P+1}], v[{P+2}:{P+3}]")
    for i in range(4, 20, 2):
        a(f"v_pk_add_f32 v[{t4}:{t4+1}], v[{t4}:{t4+1}], v[{E+i}:{E+i+1}]")
        a(f"v_pk_add_f32 v[{t6}:{t6+1}], v[{t6}:{t6+1}], v[{P+i}:{P+i+1}]")
    a(f"v_add_f32 v{t4}, v{t4}, v{t4+1}")
    a(f"v_add_f32 v{t6}, v{t6}, v{t6+1}")
    a(f"v_rcp_f32 v{t4}, v{t4}")
    a(f"v_rcp_f32 v{t6}, v{t6}")
    for i in range(0, 20, 2):
        a(f"v_pk_mul_f32 v[{E+i}:{E+i+1}], v[{E+i}:{E+i+1}], v[{t4}:{t4+1}] op_sel_hi:[1,0]")
        a(f"v_pk_mul_f32 v[{P+i}:{P+i+1}], v[{P+i}:{P+i+1}], v[{t6}:{t6+1}] op_sel_hi:[1,0]")
    for i in range(10):
        a(f"v_cvt_pk_bf16_f32 v{O+i}, v{E+2*i}, v{E+2*i+1}")
        a(f"v_cvt_pk_bf16_f32 v{O+10+i}, v{P+2*i}, v{P+2*i+1}")

def k1_epi_qkv(a, ch):
    NV = 3 if ch == 0 else 2
    v0j = 0 if ch == 0 else 3
    F0 = 160; VP = 184; WB = 196
    for rt in range(2):
        for t in range(5):
            ac = ACC + 8*t + 4*rt
            a(f"v_cvt_pk_bf16_f32 v{F0+12*rt+2*t}, v{ac}, v{ac+1}")
            a(f"v_cvt_pk_bf16_f32 v{F0+12*rt+2*t+1}, v{ac+2}, v{ac+3}")
        for t in range(NV):
            ac = ACC + 8*(5+t) + 4*rt
            a(f"v_cvt_pk_bf16_f32 v{VP+6*rt+2*t}, v{ac}, v{ac+1}")
            a(f"v_cvt_pk_bf16_f32 v{VP+6*rt+2*t+1}, v{ac+2}, v{ac+3}")
    for z in (F0+10, F0+11, F0+22, F0+23, WB+10, WB+11, WB+22, WB+23): a(f"v_mov_b32 v{z}, 0")
    a("v_lshlrev_b32 v48, 4, v1")
    a("s_mul_i32 s57, s54, 3072")
    a(f"s_add_u32 s57, s57, {KX}")
    a("v_add_u32 v49, s57, v48")
    if ch == 0:
        for m in range(3):
            a(f"ds_write_b128 v49, v[{F0+12+4*m}:{F0+12+4*m+3}] offset:{1024*m}")
    else:
        a("s_lshl_b32 s58, s51, 3")
        a("s_lshl_b32 s59, s54, 1")
        a("s_add_u32 s58, s58, s59")
        a("s_lshl_b32 s58, s58, 3")
        a("s_add_u32 s58, s58, s52")
        a("s_mul_i32 s58, s58, 3072")
        a(f"s_add_u32 s58, s58, {QF_OFF}")
        a(f"s_add_u32 s59, s58, {8*3072}")
        for rt in range(2):
            for m in range(3):
                a(f"buffer_store_dwordx4 v[{F0+12*rt+4*m}:{F0+12*rt+4*m+3}], v48, s[32:35], s{58+rt} offen offset:{1024*m}{STM}")
    a("s_lshl_b32 s57, s54, 5")
    a("v_add_u32 v24, s57, v2")
    a(f"v_mul_u32_u24 v25, {VI_P}, v24")
    a("v_mul_u32_u24 v26, 48, v3")
    a("v_add_u32 v25, v25, v26")
    a(f"v_add_u32 v25, {VI}, v25")
    for rt in range(2):
        for t in range(NV):
            a(f"ds_write_b64 v25, v[{VP+6*rt+2*t}:{VP+6*rt+2*t+1}] offset:{rt*16*VI_P + 8*(v0j+t)}")
    if ch == 1:
        a("v_mov_b32 v32, 0x00003f80")
        a("v_mov_b32 v33, 0")
        for rt in range(2):
            a(f"ds_write_b64 v25, v[32:33] offset:{rt*16*VI_P + 40}")
    wphi_addr(a, WPHI, 34)
    a("s_waitcnt lgkmcnt(0)")
    a("s_barrier")
    if ch == 1:
        for m in range(3):
            a(f"ds_read_b128 v[{F0+4*m}:{F0+4*m+3}], v49 offset:{1024*m}")
        a("s_branch K1_QC")
        return
    a.label("K1_QC")
    ch = 2
    pq_mfma(a, 34, WB, F0, 64)
    a(f"s_mov_b32 s56, {LOG2E}")
    a(f"s_mov_b32 s57, {LOG2E}")
    O = 140
    softmax(a, 64, 104, O)
    a("s_lshl_b32 s57, s55, 4")
    a("v_add_u32 v48, s57, v24")
    a(f"v_mul_u32_u24 v48, {PHK_P}, v48")
    a("v_mul_u32_u24 v49, 80, v3")
    a("v_add_u32 v48, v48, v49")
    for m in range(5):
        a(f"ds_write_b128 v48, v[{O+4*m}:{O+4*m+3}] offset:{PHK + 16*m}")
    a("s_waitcnt vmcnt(0) lgkmcnt(0)")
    a("s_barrier")
    a("s_cmp_eq_u32 s48, 0")
    a("s_cbranch_scc0 K1_NQS")
    a("s_lshl_b32 s57, s51, 7")
    a(f"s_add_u32 s57, s57, {CNT_OFF + 8}")
    a("v_mov_b32 v28, s57")
    a("v_mov_b32 v29, 1")
    a("s_mov_b64 exec, 1")
    a("buffer_atomic_add v29, v28, s[32:35], 0 offen")
    a("s_mov_b64 exec, -1")
    a.label("K1_NQS")
    a("s_lshr_b32 s58, s48, 1")
    a("s_and_b32 s59, s48, 1")
    a("v_lshl_add_u32 v28, v3, 2, v26")
    a(f"v_mul_u32_u24 v29, {PHK_P}, v28")
    a("v_lshl_add_u32 v29, v27, 3, v29")
    a("s_mul_i32 s57, s58, 80")
    a("v_add_u32 v29, s57, v29")
    a(f"v_mul_u32_u24 v30, {VI_P}, v28")
    a("v_lshl_add_u32 v30, v27, 3, v30")
    a("s_mul_i32 s57, s58, 48")
    a("s_lshl_b32 s60, s59, 5")
    a("s_add_u32 s57, s57, s60")
    a(f"s_add_u32 s57, s57, {VI}")
    a("v_add_u32 v30, s57, v30")
    RB = 168
    for kk in range(4):
        B = RB + 16*kk
        for hf in range(2):
            a(f"ds_read_b64_tr_b16 v[{B+2*hf}:{B+2*hf+1}], v30 offset:{(32*kk+16*hf)*VI_P}")
        for ft in range(3):
            for hf in range(2):
                a(f"ds_read_b64_tr_b16 v[{B+4+4*ft+2*hf}:{B+4+4*ft+2*hf+1}], v29 offset:{(32*kk+16*hf)*PHK_P + 32*ft}")
    a("s_lshl_b32 s57, s59, 4")
    a("v_add_u32 v28, s57, v2")
    a("v_lshrrev_b32 v29, 2, v28")
    a("v_mul_u32_u24 v29, 2560, v29")
    a("v_lshl_add_u32 v29, v3, 8, v29")
    a("v_and_b32 v31, 3, v28")
    a("v_lshl_add_u32 v29, v31, 4, v29")
    a("s_lshl_b32 s57, s58, 6")
    a(f"s_add_u32 s57, s57, {KVS}")
    a("v_add_u32 v35, s57, v29")
    a("v_lshlrev_b32 v30, 4, v1")
    a(f"v_add_u32 v30, {KVDUMP}, v30")
    a("v_cmp_gt_u32 vcc, 21, v28")
    a("v_cndmask_b32 v35, v30, v35, vcc")
    a("v_cmp_gt_u32 vcc, 2, v3")
    a("v_cndmask_b32 v36, v30, v35, vcc")
    for kk in range(4):
        B = RB + 16*kk
        a(f"s_waitcnt lgkmcnt({min(15, 8*(3-kk))})")
        for ft in range(3):
            D = 64 + 4*ft
            c = "0" if kk == 0 else f"v[{D}:{D+3}]"
            a(f"v_mfma_f32_16x16x32_bf16 v[{D}:{D+3}], v[{B+4+4*ft}:{B+4+4*ft+3}], v[{B}:{B+3}], {c}")
    a("ds_write_b128 v35, v[64:67]")
    a("ds_write_b128 v35, v[68:71] offset:1024")
    a("ds_write_b128 v36, v[72:75] offset:2048")
    a("s_mov_b32 s60, 0")
    a("s_waitcnt vmcnt(0)")
    a.label(f"K1_POLL{ch}")
    a("v_readfirstlane_b32 s57, v61")
    a("s_cmp_lg_u32 s57, 0")
    a(f"s_cbranch_scc1 K1_POLLDONE{ch}")
    a("s_add_u32 s60, s60, 1")
    a("s_cmp_ge_u32 s60, 100000")
    a(f"s_cbranch_scc1 K1_POLLDONE{ch}")
    a("buffer_load_dword v61, v60, s[44:47], 0 offen sc0 sc1")
    a("s_waitcnt vmcnt(0)")
    a(f"s_branch K1_POLL{ch}")
    a.label(f"K1_POLLDONE{ch}")
    a("s_waitcnt lgkmcnt(0)")
    a("s_barrier")
    a("v_lshlrev_b32 v24, 2, v0")
    a(f"v_add_u32 v25, {KVS}, v24")
    for it in range(8):
        a(f"ds_read_b32 v{28+it}, v25 offset:{2048*it}")
    a("v_lshrrev_b32 v40, 4, v24")
    a("v_and_b32 v40, 3, v40")
    a(f"v_mov_b32 v41, {OOB}")
    a("v_cmp_eq_u32 vcc, 0, v40")
    a("v_cndmask_b32 v42, v41, v24, vcc")
    a("v_cmp_gt_u32 vcc, 512, v24")
    a("v_cndmask_b32 v43, v42, v24, vcc")
    for it in range(8):
        vo = 24 if it < 6 else (43 if it == 6 else 42)
        a(f"s_waitcnt lgkmcnt({7-it})")
        a(f"s_mov_b32 s57, {2048*it}")
        a(f"buffer_atomic_add_f32 v{28+it}, v{vo}, s[40:43], s57 offen")

def wphi_addr(a, base, R):
    a("v_lshrrev_b32 v26, 2, v1")
    a("v_and_b32 v26, 3, v26")
    a("v_and_b32 v27, 3, v1")
    a("v_mul_u32_u24 v28, 800, v3")
    a("v_mul_u32_u24 v29, 40, v26")
    a("v_add_u32 v28, v28, v29")
    a(f"v_add_u32 v28, {base}, v28")
    a(f"v_mov_b32 v29, {base+3200}")
    a("v_cmp_eq_u32 vcc, v27, v3")
    for i in range(5):
        a(f"v_add_u32 v30, {160*i}, v28")
        a(f"v_cndmask_b32 v{R+i}, v29, v30, vcc")

def pq_mfma(a, R, WB, F, D0):
    def wread(j, base):
        for i in range(5):
            a(f"ds_read_b64_tr_b16 v[{base+2*i}:{base+2*i+1}], v{R+i} offset:{8*j}")
    wread(0, WB)
    for j in range(5):
        base = WB + 12*(j & 1)
        if j < 4: wread(j+1, WB + 12*((j+1) & 1))
        a(f"s_waitcnt lgkmcnt({5 if j < 4 else 0})")
        D = D0 + 4*j
        a(f"v_mfma_f32_16x16x32_bf16 v[{D}:{D+3}], v[{base}:{base+3}], v[{F}:{F+3}], 0")
        a(f"v_mfma_f32_16x16x32_bf16 v[{D}:{D+3}], v[{base+4}:{base+7}], v[{F+4}:{F+7}], v[{D}:{D+3}]")
        a(f"v_mfma_f32_16x16x32_bf16 v[{D}:{D+3}], v[{base+8}:{base+11}], v[{F+8}:{F+11}], v[{D}:{D+3}]")

def w2f_prep(a):
    a("s_mul_i32 s69, s51, 5")
    a("s_add_u32 s69, s69, s52")
    a("s_sub_u32 s69, s69, 3")
    a("s_lshl_b32 s57, s48, 2")
    a("v_add_u32 v24, s57, v3")
    a("v_lshrrev_b32 v25, 3, v24")
    a("v_and_b32 v26, 7, v24")
    a("v_lshrrev_b32 v27, 2, v26")
    a("v_lshlrev_b32 v27, 4, v27")
    a("v_lshl_add_u32 v27, v25, 2, v27")
    a("v_and_b32 v28, 3, v26")
    a("v_add_u32 v32, v27, v28")
    a("v_mul_u32_u24 v31, 20, v25")
    a("s_mov_b32 s98, 0")
    for n in range(5):
        a(f"s_add_u32 s64, s69, {80*n}")
        a("s_mul_i32 s65, s64, 205")
        a("s_lshr_b32 s70, s65, 10")
        a("s_mul_i32 s65, s70, 5")
        a("s_sub_u32 s65, s64, s65")
        a("s_lshl_b32 s72, s65, 8")
        a("s_cmp_ge_u32 s64, 370")
        a(f"s_cselect_b32 s72, {OOB}, s72")
        a("s_lshl_b32 s76, s70, 5")
        a("v_add_u32 v27, s76, v32")
        a("s_sub_u32 s76, s70, 54")
        a("s_max_i32 s76, s76, 0")
        a("s_mul_i32 s77, s76, 205")
        a("s_lshr_b32 s77, s77, 10")
        a("s_mul_i32 s65, s77, 5")
        a("s_sub_u32 s65, s76, s65")
        a("s_lshl_b32 s65, s65, 3")
        a("v_add_u32 v28, s65, v26")
        a("v_cmp_lt_u32 vcc, 19, v28")
        a("v_cndmask_b32 v30, 0, 60, vcc")
        a("v_add3_u32 v29, v28, v30, v31")
        a("s_mul_i32 s77, s77, 160")
        a("v_add_u32 v29, s77, v29")
        a("s_cmp_ge_u32 s70, 54")
        a(f"s_cselect_b32 s65, {1 << n}, 0")
        a("s_cselect_b64 vcc, -1, 0")
        a("s_or_b32 s98, s98, s65")
        a("v_cndmask_b32 v27, v27, v29, vcc")
        a("v_mul_u32_u24 v27, 1280, v27")
        a("v_lshl_add_u32 v27, v2, 4, v27")
        a(f"v_add_u32 v{217+n}, s72, v27")
    a("v_lshrrev_b32 v26, 2, v1")
    a("v_and_b32 v26, 3, v26")
    a("v_and_b32 v27, 3, v1")
    a("v_lshl_add_u32 v28, v3, 3, v26")
    a("v_lshlrev_b32 v28, 8, v28")
    a("v_lshl_add_u32 v28, v27, 3, v28")
    a("s_lshl_b32 s57, s48, 5")
    a("v_add_u32 v211, s57, v28")
    a("v_lshlrev_b32 v216, 4, v1")

W2B = [PART, 26624, STAGE + 26624, 2*STAGE + 26624, PART]
def w2f_dma(n):
    return [f"s_bitcmp1_b32 s98, {n}", "s_cselect_b32 s76, s10, s16", "s_cselect_b32 s77, s11, s17", f"s_mov_b32 s78, {1728*640*2}", f"s_cselect_b32 s78, {640*640*2}, s78",
            "s_mov_b32 s79, 0x00020000", "s_lshl_b32 s57, s48, 10", f"s_add_u32 m0, s57, {W2B[n]}", f"T:buffer_load_dwordx4 v{217+n}, s[76:79], 0 offen lds"]

def w2f_out(n):
    return [f"v_add_u32 v210, {W2B[n]}, v211", "ds_read_b64_tr_b16 v[212:213], v210", "ds_read_b64_tr_b16 v[214:215], v210 offset:1024",
            f"s_add_u32 s64, s69, {80*n}", "s_lshl_b32 s65, s64, 3", "s_add_u32 s65, s65, s48", "s_lshl_b32 s65, s65, 10", f"s_add_u32 s65, s65, {WF_OFF}",
            "s_cmp_ge_u32 s64, 370", f"s_cselect_b32 s65, {OOB}, s65", "s_waitcnt lgkmcnt(0)", f"buffer_store_dwordx4 v[212:215], v216, s[32:35], s65 offen{STM}", "s_nop 1"]

def k1_epi_h(a, ro):
    NP = 4 if ro == 2 else 3
    a(f"s_mov_b32 s56, {LOG2E}")
    a(f"s_mov_b32 s57, {LOG2E}")
    a("s_lshl_b32 s60, s51, 3")
    a("s_lshl_b32 s61, s54, 1")
    a("s_add_u32 s60, s60, s61")
    a("s_mul_i32 s60, s60, 54")
    a("s_mul_i32 s61, s52, 3")
    a("s_add_u32 s61, s61, 3")
    a("s_lshl_b32 s62, s52, 2")
    a("s_cmp_lt_u32 s52, 3")
    a("s_cselect_b32 s61, s62, s61")
    a("s_lshl_b32 s61, s61, 1")
    a("s_add_u32 s60, s60, s61")
    a(f"s_mul_i32 s61, s55, {NP}")
    a("s_add_u32 s60, s60, s61")
    a("s_lshl_b32 s60, s60, 10")
    a(f"s_add_u32 s61, s60, {54*1024}")
    a("v_lshlrev_b32 v44, 4, v1")
    for pi in range(NP):
        for rt in range(2):
            prs = [ACC + 8*(2*pi) + 4*rt, ACC + 8*(2*pi) + 4*rt + 2, ACC + 8*(2*pi+1) + 4*rt, ACC + 8*(2*pi+1) + 4*rt + 2]
            T = 128 + 8*((2*pi+rt) & 1)
            for i, v in enumerate(prs): a(f"v_pk_mul_f32 v[{T+2*i}:{T+2*i+1}], v[{v}:{v+1}], s[56:57] op_sel_hi:[1,0]")
            for i in range(8): a(f"v_exp_f32 v{T+i}, -v{T+i}")
            for i in range(4): a(f"v_pk_add_f32 v[{T+2*i}:{T+2*i+1}], v[{T+2*i}:{T+2*i+1}], 1.0 op_sel_hi:[1,0]")
            for i in range(8): a(f"v_rcp_f32 v{T+i}, v{T+i}")
            for i, v in enumerate(prs): a(f"v_pk_mul_f32 v[{v}:{v+1}], v[{v}:{v+1}], v[{T+2*i}:{T+2*i+1}]")
            O = 160 + 4*(2*pi+rt)
            for i, v in enumerate(prs): a(f"v_cvt_pk_bf16_f32 v{O+i}, v{v}, v{v+1}")
            a(f"buffer_store_dwordx4 v[{O}:{O+3}], v44, s[32:35], s{60+rt} offen offset:{1024*pi}{STM}")

K2_LDS = 160 * 1024
def spin(a, name, loads, cond):
    a("s_mov_b32 s68, 0")
    a.label(f"{name}")
    for x in loads: a(x)
    a("s_waitcnt vmcnt(0)")
    for x in cond: a(x)
    a(f"s_cbranch_scc1 {name}_D")
    a("s_add_u32 s68, s68, 1")
    a("s_cmp_ge_u32 s68, 100000")
    a(f"s_cbranch_scc1 {name}_D")
    a("s_sleep %d" % opt("sl", 10))
    a(f"s_branch {name}")
    a.label(f"{name}_D")

def phase2(a):
    stamp(a, 6)
    a("s_waitcnt vmcnt(0) lgkmcnt(0)")
    a("s_barrier")
    a("s_cmp_eq_u32 s48, 0")
    a("s_cbranch_scc0 P2_NSIG")
    a("v_mov_b32 v25, 1")
    a(f"s_mov_b32 s58, {CNT_OFF}")
    a("s_cmp_eq_u32 s53, 0")
    a("s_cbranch_scc1 P2_SQ")
    a("s_lshl_b32 s57, s51, 7")
    a("v_mov_b32 v24, s57")
    a("v_lshlrev_b32 v26, 7, v1")
    a("s_mov_b64 exec, 1")
    a("buffer_atomic_add v25, v24, s[32:35], s58 offen")
    a("s_branch P2_SE")
    a.label("P2_SQ")
    a("s_lshl_b32 s57, s52, 7")
    a("s_add_u32 s57, s57, 2048")
    a("v_mov_b32 v24, s57")
    a("s_mov_b64 exec, 1")
    a("buffer_atomic_add v25, v24, s[32:35], s58 offen")
    a.label("P2_SE")
    a("s_mov_b64 exec, -1")
    a.label("P2_NSIG")
    a("s_and_b32 s49, s2, 7")
    a("s_lshr_b32 s50, s2, 3")
    a("s_and_b32 s51, s49, 1")
    a("s_lshl_b32 s51, s51, 4")
    a("s_bfe_u32 s52, s49, 0x10001")
    a("s_lshl_b32 s52, s52, 3")
    a("s_add_u32 s51, s51, s52")
    a("s_and_b32 s52, s50, 7")
    a("s_add_u32 s51, s51, s52")
    a("s_lshr_b32 s52, s49, 2")
    a("s_lshl_b32 s52, s52, 2")
    a("s_lshr_b32 s53, s50, 3")
    a("s_add_u32 s52, s52, s53")
    srd(a, 28, 18, 19, 2621440)
    a("v_lshlrev_b32 v5, 4, v1")
    a(f"v_mov_b32 v23, {OOB}")
    a("s_mul_i32 s56, s52, 5120")
    a(f"s_add_u32 s56, s56, {WF_OFF}")
    a("v_add_u32 v10, s56, v5")
    a("v_add_u32 v11, 4096, v10")
    a("s_mul_i32 s66, s48, 20480")
    a("v_lshrrev_b32 v24, 1, v2")
    a("v_xor_b32 v24, v24, v3")
    a("v_and_b32 v24, 3, v24")
    a("v_lshl_add_u32 v24, v2, 2, v24")
    a("v_lshlrev_b32 v24, 4, v24")
    a("v_add_u32 v13, s66, v24")
    a("v_lshrrev_b32 v14, 2, v1")
    a("v_and_b32 v15, 3, v1")
    a("v_lshrrev_b32 v24, 1, v14")
    a("v_xor_b32 v24, v24, v15")
    a("v_and_b32 v24, 3, v24")
    a("v_lshl_add_u32 v24, v14, 2, v24")
    a("v_lshlrev_b32 v12, 4, v24")
    a("s_cmp_ge_u32 s48, 4")
    a("s_cbranch_scc1 P2_OW")
    a(f"s_mul_i32 s55, s51, {4*54*1024}")
    for aa in range(4):
        a(f"s_add_u32 s56, s55, {aa*54*1024 + HF_OFF}")
        a(f"v_add_u32 v{6+aa}, s56, v5")
    a("s_mul_i32 s53, s48, 14")
    a("s_cmp_eq_u32 s48, 3")
    a("s_cselect_b32 s57, 1, 0")
    a("s_sub_u32 s53, s53, s57")
    a("s_lshl_b32 s60, s53, 10")
    a("s_mul_i32 s61, s53, 40960")
    a("s_lshr_b32 s62, s48, 1")
    a("s_lshr_b32 s57, s51, 1")
    a("s_lshl_b32 s57, s57, 7")
    a(f"s_add_u32 s57, s57, {CNT_OFF}")
    a("v_mov_b32 v24, s57")
    spin(a, "P2_SF", ["buffer_load_dwordx2 v[26:27], v24, s[32:35], 0 offen sc0 sc1"],
         ["v_readfirstlane_b32 s57, v26", "v_readfirstlane_b32 s58, v27", "s_mul_i32 s57, s57, 10", "s_min_u32 s57, s57, s58", "s_cmp_ge_u32 s57, 80"])
    a("s_branch P2_GEMM")
    a.label("P2_OW")
    a("s_setprio 3")
    WP = 0; KVF = 4096; ZR = 12288
    a("s_lshl_b32 s57, s51, 7")
    a(f"s_add_u32 s57, s57, {CNT_OFF + 3072}")
    a("v_mov_b32 v18, s57")
    a("s_bitcmp1_b32 s52, 1")
    a("s_cbranch_scc0 P2_OSKIP")
    a("s_cmp_ge_u32 s48, 6")
    a("s_cselect_b32 s57, 2, 0")
    a("s_sub_u32 s70, s52, s57")
    a("s_mul_i32 s56, s70, 3200")
    for k in range(4):
        a(f"v_add_u32 v24, {1024*k}, v5")
        a("v_add_u32 v25, s56, v24")
        a("v_cmp_gt_u32 vcc, 3200, v24")
        a("v_cndmask_b32 v25, v23, v25, vcc")
        a(f"buffer_load_dwordx4 v[{144+4*k}:{147+4*k}], v25, s[36:39], 0 offen")
    a("v_add_u32 v16, s66, v5")
    for z in range(4): a(f"v_mov_b32 v{160+z}, 0")
    for k in range(8): a(f"ds_write_b128 v16, v[160:163] offset:{ZR + 1024*k}")
    a("s_waitcnt vmcnt(0)")
    for k in range(4): a(f"ds_write_b128 v16, v[{144+4*k}:{147+4*k}] offset:{WP + 1024*k}")
    a("s_lshr_b32 s57, s51, 1")
    a("s_lshl_b32 s57, s57, 7")
    a(f"s_add_u32 s57, s57, {CNT_OFF + 8}")
    a("v_mov_b32 v24, s57")
    spin(a, "P2_SQ2", ["buffer_load_dword v25, v24, s[32:35], 0 offen sc0 sc1"], ["v_readfirstlane_b32 s57, v25", "s_cmp_ge_u32 s57, 8"])
    a("s_lshl_b32 s64, s51, 2")
    a("s_and_b32 s57, s48, 1")
    a("s_lshl_b32 s57, s57, 1")
    a("s_add_u32 s64, s64, s57")
    a("s_lshl_b32 s65, s64, 3")
    a("s_add_u32 s65, s65, s70")
    a("s_mul_i32 s65, s65, 3072")
    a(f"s_add_u32 s65, s65, {QF_OFF}")
    a(f"s_add_u32 s67, s65, {8*3072}")
    for u in range(2):
        for m in range(3):
            a(f"buffer_load_dwordx4 v[{208+12*u+4*m}:{211+12*u+4*m}], v5, s[32:35], s{65+2*u} offen offset:{1024*m} sc0 sc1")
    a("v_lshrrev_b32 v26, 2, v1")
    a("v_and_b32 v26, 3, v26")
    a("v_and_b32 v27, 3, v1")
    a("v_mul_u32_u24 v28, 800, v3")
    a("v_mul_u32_u24 v29, 40, v26")
    a("v_add3_u32 v28, v28, v29, s66")
    a(f"v_mov_b32 v29, {WP+3200}")
    a("v_add_u32 v29, s66, v29")
    a("v_cmp_eq_u32 vcc, v27, v3")
    for i in range(5):
        a(f"v_add_u32 v30, {WP+160*i}, v28")
        a(f"v_cndmask_b32 v{31+i}, v29, v30, vcc")
    a("v_lshrrev_b32 v24, 2, v2")
    a("v_lshlrev_b32 v25, 4, v2")
    a(f"v_add_u32 v25, {KVF}, v25")
    a(f"v_mov_b32 v28, {ZR}")
    a("v_cmp_eq_u32 vcc, v24, v3")
    a("v_cndmask_b32 v17, v28, v25, vcc")
    a("v_add_u32 v17, s66, v17")
    WB = 144
    a("s_waitcnt vmcnt(0) lgkmcnt(0)")
    for z in (WB+10, WB+11, WB+22, WB+23): a(f"v_mov_b32 v{z}, 0")
    a(f"s_mov_b32 s56, {LOG2E}")
    a(f"s_mov_b32 s57, {LOG2E}")
    a("s_mul_i32 s65, s64, 20")
    a("s_lshr_b32 s67, s70, 1")
    a("s_mul_i32 s67, s67, 5")
    a("s_add_u32 s65, s65, s67")
    a("s_lshl_b32 s65, s65, 10")
    a(f"s_add_u32 s65, s65, {OF_OFF}")
    a("s_mov_b32 s63, 0")
    a.label("P2_PL")
    pq_mfma(a, 31, WB, 208, 64)
    softmax(a, 64, 84, 104, tmp=40)
    a("s_cmp_eq_u32 s63, 0")
    a("s_cbranch_scc0 P2_PLE")
    for i in range(12): a(f"v_mov_b32 v{208+i}, v{220+i}")
    for i in range(20): a(f"v_mov_b32 v{232+i}, v{104+i}")
    a("s_mov_b32 s63, 1")
    a("s_branch P2_PL")
    a.label("P2_PLE")
    a("s_lshl_b32 s57, s70, 7")
    a(f"s_add_u32 s57, s57, {CNT_OFF + 2048}")
    a("v_mov_b32 v24, s57")
    a("v_lshlrev_b32 v25, 9, v3")
    a("v_lshl_add_u32 v20, v2, 4, v25")
    a(f"s_mul_i32 s62, s70, {KVQ}")
    a(f"s_add_u32 s62, s62, {KV_OFF}")
    a("v_add_u32 v25, 14336, v20")
    a(f"v_cmp_gt_u32 vcc, {KVQ}, v25")
    a("v_cndmask_b32 v21, v23, v20, vcc")
    spin(a, "P2_SK", ["buffer_load_dword v25, v24, s[32:35], 0 offen sc0 sc1"], ["v_readfirstlane_b32 s57, v25", "s_cmp_ge_u32 s57, 16"])
    for gq in range(8):
        vo = 20 if gq < 7 else 21
        a(f"buffer_load_dwordx4 v[{144+8*gq}:{147+8*gq}], v{vo}, s[32:35], s62 offen sc0 sc1")
        a(f"buffer_load_dwordx4 v[{148+8*gq}:{151+8*gq}], v{vo}, s[32:35], s62 offen offset:256 sc0 sc1")
        a("s_add_u32 s62, s62, 2048")
    a("s_waitcnt vmcnt(0)")
    for gq in range(8):
        for d in range(4):
            a(f"v_cvt_pk_bf16_f32 v{144+8*gq+d}, v{144+8*gq+2*d}, v{144+8*gq+2*d+1}")
        a(f"ds_write_b128 v16, v[{144+8*gq}:{147+8*gq}] offset:{KVF + 1024*gq}")
    a("s_waitcnt lgkmcnt(0)")
    AB = [168, 172, 176, 180, 184, 188, 192, 196, 200, 204]
    DD = (64, 128); PH = (232, 104); PK = (152, 208)
    def kread(j):
        for m in range(5):
            b = AB[5*(j & 1) + m]
            a(f"ds_read_b128 v[{b}:{b+3}], v17 offset:{256*(5*j+m)}")
    kread(0)
    for j in range(6):
        if j < 5: kread(j + 1)
        a(f"s_waitcnt lgkmcnt({5 if j < 5 else 0})")
        for m in range(5):
            b = AB[5*(j & 1) + m]
            for u in range(2):
                D = DD[u] + 4*j
                c = "0" if m == 0 else f"v[{D}:{D+3}]"
                a(f"v_mfma_f32_16x16x32_bf16 v[{D}:{D+3}], v[{b}:{b+3}], v[{PH[u]+4*m}:{PH[u]+4*m+3}], {c}")
    for u in range(2):
        D = DD[u]
        a(f"v_add_f32 v{D+20}, 0x358637bd, v{D+20}")
        a(f"v_rcp_f32 v{D+20}, v{D+20}")
        for i in range(0, 20, 2):
            a(f"v_pk_mul_f32 v[{D+i}:{D+i+1}], v[{D+i}:{D+i+1}], v[{D+20}:{D+21}] op_sel_hi:[1,0]")
        for i in range(10):
            a(f"v_cvt_pk_bf16_f32 v{PK[u]+i}, v{D+2*i}, v{D+2*i+1}")
    a("s_and_b32 s67, s70, 1")
    a("s_cmp_eq_u32 s67, 0")
    a("s_cbranch_scc0 P2_OODD")
    for u in range(2):
        K_ = PK[u]
        a(f"buffer_store_dwordx4 v[{K_}:{K_+3}], v5, s[32:35], s65 offen sc0 sc1")
        a(f"buffer_store_dwordx4 v[{K_+4}:{K_+7}], v5, s[32:35], s65 offen offset:1024 sc0 sc1")
        a(f"buffer_store_dwordx2 v[{K_+8}:{K_+9}], v5, s[32:35], s65 offen offset:2048 sc0 sc1")
        a(f"s_add_u32 s65, s65, {20*1024}")
    a("s_branch P2_OST")
    a.label("P2_OODD")
    for u in range(2):
        K_ = PK[u]
        a(f"buffer_store_dwordx2 v[{K_}:{K_+1}], v5, s[32:35], s65 offen offset:2056 sc0 sc1")
        a(f"buffer_store_dwordx4 v[{K_+2}:{K_+5}], v5, s[32:35], s65 offen offset:3072 sc0 sc1")
        a("s_add_u32 s67, s65, 4096")
        a(f"buffer_store_dwordx4 v[{K_+6}:{K_+9}], v5, s[32:35], s67 offen sc0 sc1")
        a(f"s_add_u32 s65, s65, {20*1024}")
    a.label("P2_OST")
    a("s_waitcnt vmcnt(0)")
    a("v_mov_b32 v25, 1")
    a("s_mov_b64 exec, 1")
    a("buffer_atomic_add v25, v18, s[32:35], 0 offen")
    a("s_mov_b64 exec, -1")
    a.label("P2_OSKIP")
    a("v_mov_b32 v24, v18")
    a(f"s_mul_i32 s55, s51, {4*20*1024}")
    for aa in range(4):
        a(f"s_add_u32 s56, s55, {aa*20*1024 + OF_OFF}")
        a(f"v_add_u32 v{6+aa}, s56, v5")
    a("s_sub_u32 s53, s48, 4")
    a("s_mul_i32 s53, s53, 5")
    a("s_lshl_b32 s60, s53, 10")
    a("s_add_u32 s53, s53, 54")
    a("s_mul_i32 s61, s53, 40960")
    a("s_mov_b32 s62, 0")
    a("s_lshr_b32 s57, s51, 1")
    a("s_lshl_b32 s57, s57, 7")
    a(f"s_add_u32 s57, s57, {CNT_OFF + 4}")
    a("v_mov_b32 v26, s57")
    spin(a, "P2_SW", ["buffer_load_dword v27, v26, s[32:35], 0 offen sc0 sc1"], ["v_readfirstlane_b32 s58, v27", "s_cmp_ge_u32 s58, 80"])
    for m in range(5):
        for tt_ in range(4): a(f"buffer_load_dwordx4 v[{144+20*m+4*tt_}:{147+20*m+4*tt_}], v10, s[32:35], s61 offen offset:{1024*tt_}{LDM}")
        a(f"buffer_load_dwordx4 v[{160+20*m}:{163+20*m}], v11, s[32:35], s61 offen{LDM}")
        a("s_add_u32 s61, s61, 40960")
    spin(a, "P2_SO", ["buffer_load_dword v25, v24, s[32:35], 0 offen sc0 sc1"], ["v_readfirstlane_b32 s57, v25", "s_cmp_ge_u32 s57, 16"])
    a.label("P2_GEMM")
    stamp(a, 7)
    AC = 64
    FB = [144, 180, 216, 28]
    vm = []
    def issue_list(g):
        P = FB[g % 4]
        L = []
        pre = []
        if g > 0: pre = ["s_add_u32 s60, s60, 1024", "s_add_u32 s61, s61, 40960"]
        if g == 13: pre += ["s_cmp_eq_u32 s62, 1", f"s_cselect_b32 s60, {OOB}, s60", f"s_cselect_b32 s61, {OOB}, s61"]
        for t in range(4): L.append(f"buffer_load_dwordx4 v[{P+16+4*t}:{P+19+4*t}], v10, s[32:35], s61 offen offset:{1024*t}{LDM}")
        L.append(f"buffer_load_dwordx4 v[{P+32}:{P+35}], v11, s[32:35], s61 offen{LDM}")
        for aa in range(4): L.append(f"buffer_load_dwordx4 v[{P+4*aa}:{P+4*aa+3}], v{6+aa}, s[32:35], s60 offen{LDM}")
        return [(pre + [L[0]], g)] + [([x], g) for x in L[1:]]
    def play(gr):
        for t in gr[0]: a(t)
        vm.append(gr[1])
    def gemm(NST, tagp):
        del vm[:]
        PD = opt("pd", 3)
        for g in range(PD):
            for gr in issue_list(g): play(gr)
        for g in range(NST):
            last = max(i for i, x in enumerate(vm) if x == g)
            a(f"s_waitcnt vmcnt({len(vm) - 1 - last})")
            P = FB[g % 4]
            lg = issue_list(g + PD) if g + PD < NST else []
            k2 = 0; nm = 0
            for t in range(5):
                for aa in range(4):
                    ac = AC + 16*t + 4*aa
                    cc = "0" if g == 0 else f"v[{ac}:{ac+3}]"
                    a(f"v_mfma_f32_16x16x32_bf16 v[{ac}:{ac+3}], v[{P+16+4*t}:{P+19+4*t}], v[{P+4*aa}:{P+4*aa+3}], {cc}")
                    nm += 1
                    want = (len(lg) * nm + 19) // 20
                    while k2 < min(want, len(lg)):
                        play(lg[k2]); k2 += 1
    a("s_cmp_ge_u32 s48, 4")
    a("s_cbranch_scc1 P2_G5")
    gemm(14, "f")
    a("s_branch P2_GE")
    a.label("P2_G5")
    OB = [28, 44, 244]
    def oreg(m, aa):
        if m < 2: return OB[m] + 4*aa
        if m == 2: return (244, 248, 252, 60)[aa]
        return OB[m - 3] + 4*aa
    def oload(m):
        for aa in range(4):
            r = oreg(m, aa)
            a(f"buffer_load_dwordx4 v[{r}:{r+3}], v{6+aa}, s[32:35], s60 offen offset:{1024*m if m < 4 else 0} sc1" if m < 4 else f"buffer_load_dwordx4 v[{r}:{r+3}], v{6+aa}, s[32:35], s63 offen{LDM}")
    a("s_add_u32 s63, s60, 4096")
    for m in range(3): oload(m)
    for m in range(5):
        a(f"s_waitcnt vmcnt({(8, 8, 8, 4, 0)[m]})")
        for tt_ in range(5):
            for aa in range(4):
                ac = AC + 16*tt_ + 4*aa
                cc = "0" if m == 0 else f"v[{ac}:{ac+3}]"
                r = oreg(m, aa)
                a(f"v_mfma_f32_16x16x32_bf16 v[{ac}:{ac+3}], v[{144+20*m+4*tt_}:{147+20*m+4*tt_}], v[{r}:{r+3}], {cc}")
        if m < 2: oload(m + 3)
    a.label("P2_GE")
    a("s_lshl_b32 s55, s51, 6")
    a("s_and_b32 s56, s48, 3")
    a("s_lshl_b32 s56, s56, 4")
    a("s_add_u32 s55, s55, s56")
    a("v_add_u32 v24, s55, v14")
    a("v_mul_u32_u24 v24, 1280, v24")
    a("v_lshl_add_u32 v24, v15, 3, v24")
    a("s_mul_i32 s56, s52, 160")
    a("v_add_u32 v22, s56, v24")
    XP = 28
    for t in range(5): a(f"buffer_load_dwordx2 v[{XP+2*t}:{XP+1+2*t}], v22, s[24:27], 0 offen offset:{32*t}")
    for aa in range(4):
        for t in range(5):
            a(f"ds_write_b128 v13, v[{AC+16*t+4*aa}:{AC+16*t+4*aa+3}] offset:{5120*aa + 1024*t}")
    a("s_waitcnt lgkmcnt(0)")
    a("s_barrier")
    a("s_cmp_ge_u32 s48, 4")
    a("s_cbranch_scc1 P2_DONE")
    a("s_mul_i32 s55, s48, 5120")
    a("v_add_u32 v4, s55, v12")
    a("v_add_u32 v21, 61440, v4")
    a("v_add_u32 v20, 122880, v4")
    for k in range(8):
        B = 64 + 20*k
        va = (4, 21, 20)[k // 3]
        for t in range(5):
            a(f"ds_read_b128 v[{B+4*t}:{B+4*t+3}], v{va} offset:{20480*(k % 3) + 1024*t}")
    for k in (1, 2, 3, 5, 6, 7):
        a(f"s_waitcnt lgkmcnt({min(15, 5*(7-k))})")
        D_ = 64 if k < 4 else 144
        for i in range(0, 20, 2):
            a(f"v_pk_add_f32 v[{D_+i}:{D_+i+1}], v[{D_+i}:{D_+i+1}], v[{64+20*k+i}:{65+20*k+i}]")
    a(f"s_mov_b32 s56, {LOG2E}")
    a(f"s_mov_b32 s57, {LOG2E}")
    FIN = 64; S_ = 144; T = 84
    for i in range(0, 20, 2): a(f"v_pk_mul_f32 v[{T+i}:{T+i+1}], v[{FIN+i}:{FIN+i+1}], s[56:57] op_sel_hi:[1,0]")
    for i in range(20): a(f"v_exp_f32 v{T+i}, -v{T+i}")
    for i in range(0, 20, 2): a(f"v_pk_add_f32 v[{T+i}:{T+i+1}], v[{T+i}:{T+i+1}], 1.0 op_sel_hi:[1,0]")
    for i in range(20): a(f"v_rcp_f32 v{T+i}, v{T+i}")
    for i in range(0, 20, 2): a(f"v_pk_mul_f32 v[{FIN+i}:{FIN+i+1}], v[{FIN+i}:{FIN+i+1}], v[{T+i}:{T+i+1}]")
    a("s_waitcnt vmcnt(0)")
    for t in range(5):
        for d in range(2):
            xr = XP + 2*t + d
            a(f"v_lshlrev_b32 v{T+20}, 16, v{xr}")
            a(f"v_and_b32 v{T+21}, 0xffff0000, v{xr}")
            i = 4*t + 2*d
            a(f"v_pk_fma_f32 v[{T+20}:{T+21}], v[{S_+i}:{S_+i+1}], v[{FIN+i}:{FIN+i+1}], v[{T+20}:{T+21}]")
            a(f"v_cvt_pk_bf16_f32 v{T+22+2*t+d}, v{T+20}, v{T+21}")
        a(f"buffer_store_dwordx2 v[{T+22+2*t}:{T+23+2*t}], v22, s[28:31], 0 offen offset:{32*t}")
    a.label("P2_DONE")
    if DIAG:
        a("s_waitcnt vmcnt(0)")
        stamp(a, 1)
    dump_stamps(a, 8, 0, 22, 23)

def desc(name, vgpr, sgpr=100):
    acc = min((vgpr + 3) // 4 * 4, 256)
    return f"""
.p2align 6
.amdhsa_kernel {name}
  .amdhsa_next_free_vgpr {vgpr}
  .amdhsa_next_free_sgpr {sgpr}
  .amdhsa_accum_offset {acc}
  .amdhsa_group_segment_fixed_size 0
  .amdhsa_kernarg_size 80
  .amdhsa_user_sgpr_count 2
  .amdhsa_user_sgpr_kernarg_segment_ptr 1
  .amdhsa_system_sgpr_workgroup_id_x 1
.end_amdhsa_kernel
"""

if __name__ == "__main__":
    k1 = gen_k1()
    hdr = f"""; generated by dev/gen14.py
; @launch kernel=k1_kernel grid=(256,1,1) block=(512,1,1) lds={K1_LDS}
.amdgcn_target "amdgcn-amd-amdhsa--gfx950"
.text
"""
    out = hdr + k1.text() + '.section .rodata,"a"\n' + desc("k1_kernel", 256)
    path = sys.argv[1] if len(sys.argv) > 1 and not sys.argv[1].startswith("--") else f"cdna_kernels/{NAME}.s"
    open(path, "w").write(out)
    print("written", path, len(out), "nops", k1.nops)
```

```python
import sys
from asmlib import Asm

NAME = "recurrent_scan__linear_kernel_hedgehog__dense_activation_silu__prompt"
HF_OFF = 0
QF_OFF = 128 * 54 * 1024
OF_OFF = QF_OFF + 128 * 8 * 3 * 1024
WF_OFF = OF_OFF + 128 * 20 * 1024
KV_OFF = WF_OFF + 74 * 40 * 1024
KVQ = 15360
ST_OFF = KV_OFF + 8 * KVQ
CP_OFF = ST_OFF + 16384
CNT_OFF = CP_OFF + 262144
WS_USED = CNT_OFF + 8192
OOB = 0x40000000
LOG2E = 0x3fb8aa3b
XF = [x[2:] for x in sys.argv if x.startswith("--")]
STM = " sc1"
LDM = "" if "plain" in XF else " sc1"
DIAG = "diag" in XF
DIAG_OFF = 16 << 20
def opt(name, dflt):
    v = [x[len(name):] for x in XF if x.startswith(name) and x[len(name):].isdigit()]
    return int(v[0]) if v else dflt

NS = 3
AOFF = 34816
STAGE = 51200
MISC = NS * STAGE
CSUM = MISC
SDUMP = MISC + 1024
PART = MISC + 2048
K1_LDS = 163840
PHK = 0; PHK_P = 352
VI = 128 * PHK_P; VI_P = 224
WPHI = VI + 128 * VI_P
KVS = WPHI + 4096
KVDUMP = KVS + 15360
KX = KVDUMP + 4096
W2S = 0

def stamp(a, i):
    if not DIAG: return
    a(f"s_memtime s[{80+2*i}:{81+2*i}]")
    a("s_waitcnt lgkmcnt(0)")
def dump_stamps(a, n, kidx, ws_lo, ws_hi):
    if not DIAG: return
    a("s_memrealtime s[96:97]")
    a("s_waitcnt lgkmcnt(0)")
    a(f"s_mov_b32 s76, s{ws_lo}")
    a(f"s_mov_b32 s77, s{ws_hi}")
    a(f"s_mov_b32 s78, {DIAG_OFF + (1 << 20)}")
    a("s_mov_b32 s79, 0x00020000")
    a("s_lshl_b32 s57, s2, 3")
    a("s_add_u32 s57, s57, s48")
    a("s_lshl_b32 s57, s57, 6")
    a(f"s_add_u32 s57, s57, {DIAG_OFF + kidx * 0x40000}")
    a("v_mov_b32 v250, s57")
    for i in range(n):
        a(f"v_mov_b32 v251, s{80+2*i}")
        a(f"buffer_store_dword v251, v250, s[76:79], 0 offen offset:{4*i}")
    a("v_mov_b32 v251, s96")
    a(f"buffer_store_dword v251, v250, s[76:79], 0 offen offset:60")

def srd(a, d, lo, hi, size):
    a(f"s_mov_b32 s{d}, s{lo}")
    a(f"s_mov_b32 s{d+1}, s{hi}")
    a(f"s_mov_b32 s{d+2}, {size}")
    a(f"s_mov_b32 s{d+3}, 0x00020000")
def bf16_round(a, v):
    a(f"v_cvt_pk_bf16_f32 v{v}, v{v}, v{v}")
    a(f"v_lshlrev_b32 v{v}, 16, v{v}")
def emit(a, x):
    if x.startswith("LABEL "): a.label(x[6:])
    else: a(x)

ACC = 64
XA, XB, YA, YB = 128, 136, 168, 176
DC = 208; DS = 216; ONES = 224
ASET = [(228, 229, 230, 231), (232, 233, 234, 235), (236, 237, 238, 239)]
VB = 4
ROLES = {
    0: ([160 + 8*j for j in range(5)] + [320 + 8*j for j in range(3)], 480, 30, 4),
    1: ([8*j for j in range(5)] + [320 + 8*j for j in (3, 4)], 480, 30, 4),
    2: ([32*t for t in range(8)], 544, 34, 5),
    3: ([32*t for t in range(6)], 416, 26, 4),
}
TD = opt("td", 0)
NPRO = opt("np", 2)

def gen_k1():
    a = Asm()
    a.raw(f".globl k1_kernel\n.p2align 8\n.type k1_kernel,@function\nk1_kernel:")
    a("s_cmp_ge_u32 s2, 256")
    a("s_cbranch_scc1 K1_END")
    stamp(a, 0)
    a("s_load_dwordx16 s[4:19], s[0:1], 0")
    a("s_load_dwordx4 s[20:23], s[0:1], 64")
    a("v_and_b32 v1, 63, v0")
    a("v_and_b32 v2, 15, v0")
    a("v_lshrrev_b32 v3, 4, v1")
    a("v_lshrrev_b32 v24, 6, v0")
    a("v_readfirstlane_b32 s48, v24")
    a("s_and_b32 s49, s2, 7")
    a("s_lshr_b32 s50, s2, 3")
    a("s_and_b32 s51, s49, 1")
    a("s_lshl_b32 s51, s51, 3")
    a("s_and_b32 s66, s50, 7")
    a("s_add_u32 s51, s51, s66")
    a("s_lshr_b32 s52, s49, 1")
    a("s_lshr_b32 s67, s50, 3")
    a("s_lshl_b32 s52, s52, 1")
    a("s_and_b32 s54, s67, 1")
    a("s_add_u32 s52, s52, s54")
    a("s_lshr_b32 s53, s67, 1")
    a("s_and_b32 s54, s48, 3")
    a("s_lshr_b32 s55, s48, 2")
    a("s_mul_i32 s58, s52, 3")
    a("s_add_u32 s58, s58, 3")
    a("s_lshl_b32 s57, s52, 2")
    a("s_cmp_lt_u32 s52, 3")
    a("s_cselect_b32 s58, s57, s58")
    a("s_cselect_b32 s68, 2, 3")
    a("s_cmp_eq_u32 s53, 0")
    a("s_cselect_b32 s68, s55, s68")
    a("s_mov_b32 s59, 30\ns_mov_b32 s64, 30\ns_movk_i32 s65, 480\ns_movk_i32 s69, 2185\ns_mov_b32 s70, 4")
    a("s_cmp_eq_u32 s68, 2")
    a("s_cselect_b32 s59, 32, s59\ns_cselect_b32 s64, 34, s64\ns_cselect_b32 s65, 544, s65\ns_cselect_b32 s69, 1928, s69\ns_cselect_b32 s70, 5, s70")
    a("s_cmp_eq_u32 s68, 3")
    a("s_cselect_b32 s59, 24, s59\ns_cselect_b32 s64, 26, s64\ns_cselect_b32 s65, 416, s65\ns_cselect_b32 s69, 2521, s69")
    a("s_mul_i32 s62, s52, 160")
    a("s_lshl_b32 s57, s58, 7")
    a("s_movk_i32 s63, 3840")
    a("s_cmp_eq_u32 s53, 0")
    a("s_cselect_b32 s62, s62, s57")
    a("s_cselect_b32 s63, s63, 3456")
    a(f"v_mov_b32 v13, {OOB}")
    a("s_mul_i32 s72, s48, s70")
    for jj in range(5):
        a(f"s_add_u32 s57, s72, {jj}")
        a("s_lshl_b32 s57, s57, 6")
        a("v_add_u32 v24, s57, v1")
        a("v_mul_u32_u24 v25, s69, v24")
        a("v_lshrrev_b32 v25, 16, v25")
        a("v_mul_u32_u24 v26, s64, v25")
        a("v_sub_u32 v26, v24, v26")
        a("v_lshrrev_b32 v27, 1, v25")
        a("v_and_b32 v27, 4, v27")
        a("v_xor_b32 v25, v25, v27")
        a("v_mul_u32_u24 v25, s63, v25")
        a("v_lshl_add_u32 v25, v26, 4, v25")
        a("v_add_u32 v25, s62, v25")
        a("v_mul_u32_u24 v27, 26, v26")
        a("v_lshrrev_b32 v27, 8, v27")
        a("v_mul_u32_u24 v27, 1120, v27")
        a("s_cmp_eq_u32 s53, 0")
        a("s_cselect_b64 vcc, -1, 0")
        a("v_cndmask_b32 v27, 0, v27, vcc")
        a("v_add_u32 v25, v25, v27")
        a("v_cmp_gt_u32 vcc, s59, v26")
        a(f"v_cndmask_b32 v{VB+jj}, v13, v25, vcc")
    a("v_lshrrev_b32 v24, 3, v1")
    a("v_xor_b32 v25, v24, v1")
    a("v_and_b32 v25, 7, v25")
    a("v_mul_u32_u24 v24, 1280, v24")
    a("v_lshl_add_u32 v24, v25, 4, v24")
    a("s_lshl_b32 s57, s51, 3")
    a("s_add_u32 s57, s57, s48")
    a("s_mul_i32 s57, s57, 20480")
    a("v_add_u32 v9, s57, v24")
    a("v_add_u32 v10, 10240, v9")
    a("v_and_b32 v24, 1, v1")
    a("v_mul_u32_u24 v24, 156, v24")
    a("v_lshrrev_b32 v25, 1, v1")
    a("v_mul_u32_u24 v25, 1280, v25")
    a("v_add_u32 v24, v24, v25")
    a("v_lshlrev_b32 v25, 7, v1")
    a("s_cmp_eq_u32 s53, 0")
    a("s_cselect_b64 vcc, -1, 0")
    a("v_cndmask_b32 v24, v25, v24, vcc")
    a("s_lshl_b32 s57, s66, 3")
    a("s_add_u32 s57, s57, s48")
    a("s_mul_i32 s57, s57, s63")
    a("s_add_u32 s57, s57, s62")
    a("v_add_u32 v11, s57, v24")
    a("s_lshl_b32 s57, s67, 3")
    a("s_add_u32 s57, s57, s48")
    a("s_lshl_b32 s57, s57, 2")
    a("s_lshl_b32 s61, s51, 7")
    a("s_add_u32 s57, s57, s61")
    a("v_add_u32 v24, s57, v1")
    a("v_mul_u32_u24 v12, 1280, v24")
    a("s_lshl_b32 s57, s53, 3")
    a("s_add_u32 s71, s57, s52")
    a("s_lshl_b32 s57, s71, 3")
    a("s_add_u32 s57, s57, s48")
    a("s_lshl_b32 s61, s51, 7")
    a("s_add_u32 s49, s57, s61")
    a("s_mul_i32 s57, s49, 1280")
    a("v_lshlrev_b32 v24, 5, v1")
    a("v_add_u32 v24, s57, v24")
    a("v_cmp_gt_u32 vcc, 40, v1")
    a("v_cndmask_b32 v14, v13, v24, vcc")
    a("v_mul_u32_u24 v24, 13, v1")
    a("v_lshrrev_b32 v24, 8, v24")
    a("v_mul_u32_u24 v24, 1120, v24")
    a("s_cmp_eq_u32 s53, 0")
    a("s_cselect_b64 vcc, -1, 0")
    a("v_cndmask_b32 v24, 0, v24, vcc")
    a("v_lshl_add_u32 v24, v1, 3, v24")
    a("s_mul_i32 s57, s51, 40")
    a("s_mul_i32 s61, s48, 5")
    a("s_add_u32 s57, s57, s61")
    a("s_mul_i32 s57, s57, s63")
    a("s_add_u32 s57, s57, s62")
    a("v_add_u32 v24, s57, v24")
    a("s_lshl_b32 s57, s59, 1")
    a("v_cmp_gt_u32 vcc, s57, v1")
    a("v_cndmask_b32 v15, v13, v24, vcc")
    A0, A1, B0, B1 = ASET[0]
    a("s_lshl_b32 s57, s54, 12")
    a(f"s_add_u32 s57, s57, {AOFF}")
    a("v_xor_b32 v24, v3, v2")
    a("v_and_b32 v24, 7, v24")
    a("v_lshl_add_u32 v24, v2, 3, v24")
    a("v_lshlrev_b32 v24, 4, v24")
    a(f"v_add_u32 v{A0}, s57, v24")
    a(f"v_xor_b32 v{A1}, 64, v{A0}")
    a("v_and_b32 v26, 3, v1")
    a("v_mul_u32_u24 v27, 40, v26")
    a("v_lshlrev_b32 v26, 3, v26")
    a("s_lshl_b32 s57, s59, 3")
    a("s_mul_i32 s57, s57, s55")
    a("v_add_u32 v26, s57, v26")
    a("s_cmp_eq_u32 s53, 0")
    a("s_cselect_b64 vcc, -1, 0")
    a("v_cndmask_b32 v26, v26, v27, vcc")
    a("v_lshrrev_b32 v24, 2, v1")
    a("v_and_b32 v24, 3, v24")
    a("v_lshl_add_u32 v24, v3, 3, v24")
    a("v_and_b32 v25, 1, v3")
    a("v_lshlrev_b32 v25, 2, v25")
    a("v_add_u32 v27, v24, v25")
    a("v_xor_b32 v25, 4, v25")
    a("v_add_u32 v28, v24, v25")
    a("v_mul_u32_u24 v27, s65, v27")
    a("v_mul_u32_u24 v28, s65, v28")
    a(f"v_add_u32 v{B0}, v27, v26")
    a(f"v_add_u32 v{B1}, v28, v26")
    for st in (1, 2):
        for k in range(4): a(f"v_add_u32 v{ASET[st][k]}, {st*STAGE}, v{ASET[0][k]}")
    for k in range(4): a(f"v_mov_b32 v{ONES+k}, 0x3f803f80")
    a("v_lshlrev_b32 v24, 4, v0")
    a("s_mul_i32 s57, s52, 3200")
    a("v_add_u32 v25, s57, v24")
    a("v_cmp_gt_u32 vcc, 3200, v24")
    a("v_cndmask_b32 v16, v13, v25, vcc")
    a("s_mov_b32 s61, 0")
    a("s_mov_b32 s60, 0")
    a("s_lshl_b32 s56, s63, 6")
    a("s_lshl_b32 s73, s72, 10")
    a("s_lshl_b32 s74, s48, 11")
    a(f"s_add_u32 s74, s74, {AOFF}")
    a("s_sub_u32 s75, s64, s72")
    a("s_waitcnt lgkmcnt(0)")
    stamp(a, 1)
    srd(a, 24, 4, 5, 2621440)
    a("s_cmp_eq_u32 s53, 0")
    a("s_cselect_b32 s28, s6, s14")
    a("s_cselect_b32 s29, s7, s15")
    a(f"s_mov_b32 s30, {640*1728*2}")
    a(f"s_cselect_b32 s30, {640*1920*2}, s30")
    a("s_mov_b32 s31, 0x00020000")
    a(f"s_mul_i32 s57, s52, {KVQ}")
    a(f"s_add_u32 s57, s57, {KV_OFF}")
    a("s_add_u32 s40, s22, s57")
    a("s_addc_u32 s41, s23, 0")
    a(f"s_mov_b32 s42, {KVQ}")
    a("s_mov_b32 s43, 0x00020000")
    srd(a, 32, 22, 23, WS_USED)
    srd(a, 44, 20, 21, 256)
    srd(a, 36, 8, 9, 25600)
    a("s_or_b32 s57, s51, s53")
    a("s_cmp_eq_u32 s57, 0")
    a("s_cbranch_scc0 K1_NOZERO")
    a("v_lshlrev_b32 v24, 4, v0")
    a("v_mov_b32 v28, 0\nv_mov_b32 v29, 0\nv_mov_b32 v30, 0\nv_mov_b32 v31, 0")
    for z in range(2):
        a(f"s_mov_b32 s57, {8192*z}")
        a("buffer_store_dwordx4 v[28:31], v24, s[40:43], s57 offen sc0 sc1")
    a("s_cmp_eq_u32 s52, 0")
    a("s_cbranch_scc0 K1_NOZERO")
    a(f"s_mov_b32 s57, {CNT_OFF}")
    a("buffer_store_dwordx4 v[28:31], v24, s[32:35], s57 offen sc0 sc1")
    a.label("K1_NOZERO")
    if "lin" in XF:
        a("s_lshl_b32 s57, s2, 3")
        a("s_add_u32 s57, s57, s48")
        a("s_mul_i32 s57, s57, 1280")
        a("v_lshlrev_b32 v24, 7, v1")
        a("s_mov_b64 exec, 0x3ff")
        srd(a, 76, 6, 7, 640*1920*2)
        a("buffer_load_dword v17, v24, s[76:79], s57 offen")
        a("buffer_load_dword v18, v24, s[24:27], s57 offen")
        srd(a, 92, 14, 15, 640*1728*2)
        a("buffer_load_dword v19, v24, s[92:95], s57 offen")
        if "lin2" in XF:
            srd(a, 76, 16, 17, 640*1728*2)
            a("buffer_load_dword v17, v24, s[76:79], s57 offen")
            srd(a, 92, 10, 11, 640*640*2)
            a("buffer_load_dword v19, v24, s[92:95], s57 offen")
        a("s_mov_b64 exec, -1")
    a("s_cmp_eq_u32 s68, 1")
    a("s_cbranch_scc1 K1_T1")
    a("s_cmp_eq_u32 s68, 2")
    a("s_cbranch_scc1 K1_T2")
    a("s_cmp_eq_u32 s68, 3")
    a("s_cbranch_scc1 K1_T3")
    for ro in range(4):
        a.label(f"K1_T{ro}")
        k1_body(a, ro)
        if ro != 1: a("s_branch K1_P2")
    a.label("K1_P2")
    phase2(a)
    a.label("K1_END")
    a("s_endpgm")
    return a

def dma_stage(ro, st):
    imms, pitch, U, nsl = ROLES[ro]
    G = []
    for jj in range(nsl):
        g = []
        maybe = jj >= U - 7*nsl
        if maybe:
            g += [f"s_cmp_gt_i32 s75, {jj}", "s_cselect_b64 exec, -1, 1", f"s_cselect_b32 s57, s73, {SDUMP - st*STAGE - 1024*jj}", f"s_add_u32 m0, s57, {st*STAGE + 1024*jj}"]
        else:
            g += [f"s_add_u32 m0, s73, {st*STAGE + 1024*jj}"]
        g.append(f"buffer_load_dwordx4 v{VB+jj}, s[28:31], s61 offen lds")
        if maybe: g.append("s_mov_b64 exec, -1")
        G.append(g)
    G[-1].append("s_add_u32 s61, s61, s56")
    for jj in range(2):
        G.append([f"s_add_u32 m0, s74, {st*STAGE + 1024*jj}", f"buffer_load_dwordx4 v{9+jj}, s[24:27], s60 offen lds"])
    G[-1].append("s_add_u32 s60, s60, 128")
    return G

def touch(ro, s):
    P = {0: 6, 1: 6, 2: 4, 3: 3}[ro]
    return [f"s_mov_b64 exec, {(1 << P) - 1}", f"s_mul_i32 s57, s56, {s}", "T:buffer_load_dword v62, v11, s[28:31], s57 offen",
            "s_mov_b64 exec, 15", f"T:buffer_load_dword v63, v12, s[24:27], 0 offen offset:{128*s}", "s_mov_b64 exec, -1"]

def frag_reads(ro, A, B, st, ks2):
    imms, pitch, U, nsl = ROLES[ro]
    A0, A1, B0, B1 = ASET[st]
    va = A1 if ks2 else A0
    off = 32 * pitch * ks2
    L = [f"ds_read_b128 v[{A}:{A+3}], v{va}", f"ds_read_b128 v[{A+4}:{A+7}], v{va} offset:2048"]
    for t, im in enumerate(imms):
        L.append(f"ds_read_b64_tr_b16 v[{B+4*t}:{B+4*t+1}], v{B0} offset:{off+im}")
        L.append(f"ds_read_b64_tr_b16 v[{B+4*t+2}:{B+4*t+3}], v{B1} offset:{off+im}")
    return L

def k1_body(a, ro):
    imms, pitch, U, nsl = ROLES[ro]
    NT = len(imms)
    vm = []
    def em(x, tag):
        if x.startswith("T:"):
            a(x[2:]); vm.append("t")
        elif x.startswith("buffer_load"):
            a(x); vm.append(tag[1].pop(0) if isinstance(tag, tuple) else tag)
        else: emit(a, x)
    def waitv(tag, lg=False):
        last = max(i for i, x in enumerate(vm) if x == tag)
        n = min(63, len(vm) - 1 - last)
        a(f"s_waitcnt vmcnt({n})" + (" lgkmcnt(0)" if lg else ""))
    em("buffer_load_dwordx4 v[128:131], v14, s[24:27], 0 offen", "sl")
    em("buffer_load_dwordx4 v[132:135], v14, s[24:27], 0 offen offset:16", "sl")
    a("s_mov_b32 s57, 0")
    for i in range(5):
        em(f"buffer_load_dwordx2 v[{136+2*i}:{137+2*i}], v15, s[28:31], s57 offen", "sl")
        if i < 4: a("s_add_u32 s57, s57, s63")
    for st in range(NPRO):
        for g in dma_stage(ro, st):
            for x in g: em(x, st)
        if st < NPRO - 1 and "nobar" not in XF: a("s_barrier")
        if st == NPRO - 1:
            waitv("sl")
            for i in range(5):
                for d in range(2):
                    a(f"v_lshlrev_b32 v{148+4*i+2*d}, 16, v{136+2*i+d}")
                    a(f"v_and_b32 v{149+4*i+2*d}, 0xffff0000, v{136+2*i+d}")
            for i in range(1, 5):
                a(f"v_pk_add_f32 v[148:149], v[148:149], v[{148+4*i}:{149+4*i}]")
                a(f"v_pk_add_f32 v[150:151], v[150:151], v[{150+4*i}:{151+4*i}]")
            a("v_lshlrev_b32 v24, 4, v0")
            a(f"v_add_u32 v24, {PART}, v24")
            a("ds_write_b128 v24, v[148:151]")
            for d in range(8):
                a(f"v_lshlrev_b32 v{168+2*d}, 16, v{128+d}")
                a(f"v_and_b32 v{169+2*d}, 0xffff0000, v{128+d}")
            a("v_pk_add_f32 v[184:185], v[168:169], v[170:171]")
            for d in range(2, 8): a(f"v_pk_add_f32 v[184:185], v[184:185], v[{168+2*d}:{169+2*d}]")
            a("v_add_f32 v184, v184, v185")
            def xreduce(v):
                for sh in (1, 2, 4, 8): a(f"v_add_f32_dpp v{v}, v{v}, v{v} row_shr:{sh} row_mask:0xf bank_mask:0xf bound_ctrl:0")
                a(f"v_add_f32_dpp v{v}, v{v}, v{v} row_bcast:15 row_mask:0xa bank_mask:0xf")
                a(f"v_add_f32_dpp v{v}, v{v}, v{v} row_bcast:31 row_mask:0xc bank_mask:0xf")
            xreduce(184)
            a("v_readlane_b32 s57, v184, 63")
            a("v_mov_b32 v186, 0x3acccccd")
            a("v_mul_f32 v186, s57, v186")
            a("v_mov_b32 v184, 0")
            a("v_mov_b32 v185, 0")
            a("s_mov_b32 exec_hi, 0xff")
            for d in range(8):
                a(f"v_pk_add_f32 v[{168+2*d}:{169+2*d}], v[{168+2*d}:{169+2*d}], v[186:187] op_sel_hi:[1,0] neg_lo:[0,1] neg_hi:[0,1]")
            for d in range(8):
                a(f"v_pk_fma_f32 v[184:185], v[{168+2*d}:{169+2*d}], v[{168+2*d}:{169+2*d}], v[184:185]")
            a("s_mov_b64 exec, -1")
            a("v_add_f32 v184, v184, v185")
            xreduce(184)
            a("v_readlane_b32 s57, v184, 63")
            a("v_mov_b32 v187, 0x3acccccd")
            a("v_mul_f32 v187, s57, v187")
            bf16_round(a, 186)
            bf16_round(a, 187)
            a("v_add_f32 v187, 0x3727c5ac, v187")
            bf16_round(a, 187)
            a("v_sqrt_f32 v187, v187")
            bf16_round(a, 187)
            a("v_rcp_f32 v187, v187")
            a("s_lshl_b32 s57, s49, 3")
            a(f"s_add_u32 s57, s57, {ST_OFF}")
            a("v_mov_b32 v24, 0")
            a("s_mov_b64 exec, 1")
            a("buffer_store_dwordx2 v[186:187], v24, s[32:35], s57 offen sc0 sc1")
            vm.append("ss")
            a("s_mov_b64 exec, -1")
    if ro < 2:
        em("buffer_load_dwordx4 v[252:255], v16, s[36:39], 0 offen", "aux")
    for sl in range(NS, min(10, TD)):
        for x in touch(ro, sl): em(x, "t")
    if ro == 3: w2f_prep(a)
    stamp(a, 2)
    waitv(0, True)
    a("s_barrier")
    stamp(a, 3)
    a("s_cmp_eq_u32 s48, 7")
    a(f"s_cbranch_scc0 K1_NCP{ro}")
    a("v_lshlrev_b32 v24, 4, v1")
    a(f"v_add_u32 v25, {PART}, v24")
    for k in range(8): a(f"ds_read_b128 v[{168+4*k}:{171+4*k}], v25 offset:{1024*k}")
    a("s_waitcnt lgkmcnt(0)")
    for k in range(1, 8):
        a(f"v_pk_add_f32 v[168:169], v[168:169], v[{168+4*k}:{169+4*k}]")
        a(f"v_pk_add_f32 v[170:171], v[170:171], v[{170+4*k}:{171+4*k}]")
    a("s_lshl_b32 s57, s71, 4")
    a("s_add_u32 s57, s57, s51")
    a("s_lshl_b32 s57, s57, 10")
    a(f"s_add_u32 s57, s57, {CP_OFF}")
    a("buffer_store_dwordx4 v[168:171], v24, s[32:35], s57 offen sc0 sc1")
    a("s_nop 1")
    a.label(f"K1_NCP{ro}")
    if ro == 0:
        a("s_or_b32 s57, s51, s48")
        a("s_cmp_eq_u32 s57, 0")
        a("s_cbranch_scc0 K1_NOFLAG")
        a("s_lshl_b32 s57, s52, 2")
        a("v_mov_b32 v24, s57")
        a("v_mov_b32 v25, 1")
        a("s_mov_b64 exec, 1")
        a("buffer_atomic_add v25, v24, s[44:47], 0 offen")
        a("s_mov_b64 exec, -1")
        a.label("K1_NOFLAG")
    def hooks(s):
        L = []
        if ro == 3 and s in (5, 6, 8, 9): L += w2f_out({5: 0, 6: 1, 8: 2, 9: 3}[s])
        if ro == 3 and s == 11: L += w2f_out(4)
        if s == 15: L += ["v_mov_b32 v17, 0", "buffer_load_dword v17, v17, s[44:47], 0 offen sc0 sc1"]
        if s == 5:
            L += ["s_cmp_eq_u32 s48, 0", f"s_cbranch_scc0 K1_NSG{ro}", "s_lshl_b32 s57, s51, 2", "s_add_u32 s57, s57, 64", "v_mov_b32 v24, s57",
                  "s_lshl_b32 s57, s71, 2", "s_add_u32 s57, s57, 128", "v_mov_b32 v26, s57", "v_mov_b32 v25, 1", "s_mov_b64 exec, 1",
                  "buffer_atomic_add v25, v24, s[44:47], 0 offen", "buffer_atomic_add v25, v26, s[44:47], 0 offen", "s_mov_b64 exec, -1", f"LABEL K1_NSG{ro}"]
        if s == 15:
            L += ["s_lshl_b32 s57, s51, 2", "s_add_u32 s57, s57, 64", "v_mov_b32 v56, s57", "s_lshl_b32 s57, s71, 2", "s_add_u32 s57, s57, 128", "v_mov_b32 v57, s57",
                  "buffer_load_dword v58, v56, s[44:47], 0 offen sc0 sc1", "buffer_load_dword v59, v57, s[44:47], 0 offen sc0 sc1"]
        if s == 17:
            L += ["s_mov_b32 s60, 0", "s_waitcnt vmcnt(0)", f"LABEL K1_PS{ro}", "v_readfirstlane_b32 s57, v58", "v_readfirstlane_b32 s61, v59", "s_and_b32 s57, s57, 0xff", "s_min_u32 s57, s57, s61",
                  "s_cmp_ge_u32 s57, 16", f"s_cbranch_scc1 K1_PSD{ro}", "s_add_u32 s60, s60, 1", "s_cmp_ge_u32 s60, 100000", f"s_cbranch_scc1 K1_PSD{ro}", "s_sleep 8",
                  "buffer_load_dword v58, v56, s[44:47], 0 offen sc0 sc1", "buffer_load_dword v59, v57, s[44:47], 0 offen sc0 sc1", "s_waitcnt vmcnt(0)", f"s_branch K1_PS{ro}", f"LABEL K1_PSD{ro}"]
            L += ["s_lshl_b32 s57, s51, 2", "s_add_u32 s57, s57, s54", "s_lshl_b32 s57, s57, 8", f"s_add_u32 s57, s57, {ST_OFF}", "v_lshlrev_b32 v24, 3, v2",
                  "buffer_load_dwordx2 v[20:21], v24, s[32:35], s57 offen sc0 sc1", "buffer_load_dwordx2 v[22:23], v24, s[32:35], s57 offen offset:128 sc0 sc1"]
            L += ["s_cmp_lt_u32 s48, 4", f"s_cbranch_scc0 K1_NCL{ro}", "s_lshl_b32 s57, s71, 14", f"s_add_u32 s57, s57, {CP_OFF}", "s_lshl_b32 s61, s48, 2", "s_add_u32 s57, s57, s61",
                  "v_lshlrev_b32 v24, 4, v1"]
            for p in range(16):
                L += [f"buffer_load_dword v{40+p}, v24, s[32:35], s57 offen offset:{1024*(p & 3)} sc0 sc1"]
                if p & 3 == 3: L += ["s_add_u32 s57, s57, 4096"]
            L += [f"LABEL K1_NCL{ro}"]
        return L
    for s in frag_reads(ro, XA, XB, 0, 0): a(s)
    for s in range(20):
        i = s >> 1; odd = s & 1
        CA, CB, NA, NB = (XA, XB, YA, YB) if not odd else (YA, YB, XA, XB)
        dma = []
        if not odd:
            a("s_waitcnt lgkmcnt(0)")
            rd = frag_reads(ro, NA, NB, i % NS, 1)
            if TD and NS <= i + TD < 10: dma = [touch(ro, i + TD)]
            tag = "t"
            if s == 0 and NPRO < 3:
                dma = sum((dma_stage(ro, st2) for st2 in range(NPRO, 3)), [])
                tagl = [st2 for st2 in range(NPRO, 3) for _ in range(nsl + 2)]
                tag = ("L", tagl)
        else:
            if i < 9:
                if "nodma" in XF and i + 1 >= NS: a("s_waitcnt lgkmcnt(0)")
                else: waitv(i + 1, True)
                a("s_barrier")
                rd = frag_reads(ro, NA, NB, (i + 1) % NS, 0)
            else:
                a("s_waitcnt lgkmcnt(0)")
                a("s_barrier")
                rd = []
            if i + NS < 10 and "nodma" not in XF: dma = dma_stage(ro, i % NS)
            if ro == 3 and s == 1: dma = [w2f_dma(n_) for n_ in range(4)] + dma
            if ro == 3 and s == 7: dma = [w2f_dma(4)] + dma
            tag = i + NS
        if "nord" in XF: rd = []
        rd = [[x] for x in rd]
        side = []
        k = 0
        step = max(1, len(rd) // (len(dma) + 1)) if dma else len(rd)
        for d in dma:
            side += rd[k:k+step]; k += step; side.append(d)
        side += rd[k:]
        mf = []
        for t in range(NT):
            for rt in range(2):
                ac = ACC + 8*t + 4*rt
                c = "0" if s == 0 else f"v[{ac}:{ac+3}]"
                mf.append(f"v_mfma_f32_16x16x32_bf16 v[{ac}:{ac+3}], v[{CB+4*t}:{CB+4*t+3}], v[{CA+4*rt}:{CA+4*rt+3}], {c}")
        st_blk = []
        def stat_m(kind):
            L = []
            for rt in range(2):
                ac = DS + 4*rt
                c = "0" if s == 0 else f"v[{ac}:{ac+3}]"
                A_ = ONES if kind == 0 else CA + 4*rt
                L.append(f"v_mfma_f32_16x16x32_bf16 v[{ac}:{ac+3}], v[{A_}:{A_+3}], v[{CA+4*rt}:{CA+4*rt+3}], {c}")
            return L
        if False:
            st_blk = ["s_cmp_eq_u32 s55, 0", f"s_cbranch_scc0 K1_SG{ro}_{s}"] + stat_m(0) + [f"s_branch K1_SE{ro}_{s}", f"LABEL K1_SG{ro}_{s}"] + stat_m(1) + [f"LABEL K1_SE{ro}_{s}"]
        cs = []
        for q in range(4):
            tl = [t for t in range(NT) if t % 4 == q]
            if q < 3: cs += [f"s_cmp_eq_u32 s54, {q}", f"s_cbranch_scc0 K1_CS{ro}_{s}_{q+1}"]
            for k2, t in enumerate(tl):
                ac = DC + 4*k2
                c = "0" if s == 0 else f"v[{ac}:{ac+3}]"
                cs.append(f"v_mfma_f32_16x16x32_bf16 v[{ac}:{ac+3}], v[{CB+4*t}:{CB+4*t+3}], v[{ONES}:{ONES+3}], {c}")
            if q < 3: cs += [f"s_branch K1_CSE{ro}_{s}", f"LABEL K1_CS{ro}_{s}_{q+1}"]
        cs.append(f"LABEL K1_CSE{ro}_{s}")
        nfirst = len(mf) - 3
        per = max(1, -(-len(side) // max(1, nfirst - 1)))
        si = 0
        for k, m in enumerate(mf):
            a(m)
            if k < nfirst:
                for _ in range(per):
                    if si < len(side):
                        for x in side[si]: em(x, tag)
                        si += 1
            if k == nfirst - 1:
                while si < len(side):
                    for x in side[si]: em(x, tag)
                    si += 1
                for x in hooks(s): emit(a, x)
    stamp(a, 4)
    if ro < 2:
        a("s_lshl_b32 s57, s52, 2")
        a("v_mov_b32 v60, s57")
        a("buffer_load_dword v61, v60, s[44:47], 0 offen sc0 sc1")
    a("s_waitcnt vmcnt(%d)" % (0 if ro >= 2 else 1))
    a("s_cmp_lt_u32 s48, 4")
    a(f"s_cbranch_scc0 K1_NCS{ro}")
    for p in range(0, 16, 2):
        if p: a(f"v_pk_add_f32 v[40:41], v[40:41], v[{40+p}:{41+p}]")
    a("v_add_f32 v40, v40, v41")
    a("s_lshl_b32 s57, s48, 2")
    a(f"s_add_u32 s57, s57, {CSUM}")
    a("v_lshlrev_b32 v24, 4, v1")
    a("v_add_u32 v24, s57, v24")
    a("ds_write_b32 v24, v40")
    if ro < 2:
        a("v_lshlrev_b32 v29, 4, v0" if False else "v_lshlrev_b32 v25, 4, v0")
        a(f"v_add_u32 v25, {WPHI}, v25")
        a("ds_write_b128 v25, v[252:255]")
    a.label(f"K1_NCS{ro}")
    a("s_waitcnt lgkmcnt(0)")
    a("s_barrier")
    a("s_cmp_eq_u32 s48, 0")
    a(f"s_cbranch_scc0 K1_NZ{ro}")
    a("v_readfirstlane_b32 s57, v17")
    a("s_cmp_lg_u32 s57, 0")
    a(f"s_cbranch_scc1 K1_ZOK{ro}")
    a("v_mov_b32 v24, 0")
    spin(a, f"K1_SZ{ro}", ["buffer_load_dword v25, v24, s[44:47], 0 offen sc0 sc1"], ["v_readfirstlane_b32 s57, v25", "s_cmp_lg_u32 s57, 0"])
    a.label(f"K1_ZOK{ro}")
    if ro == 3:
        a("v_mov_b32 v25, 1")
        a(f"s_mov_b32 s57, {CNT_OFF}")
        a("v_lshlrev_b32 v26, 7, v1")
        a("s_mov_b64 exec, 0xffff")
        a("buffer_atomic_add v25, v26, s[32:35], s57 offen offset:4")
        a("s_mov_b64 exec, -1")
    a.label(f"K1_NZ{ro}")
    CR = 128
    if ro < 2:
        a("v_mul_u32_u24 v26, 80, v3")
        a(f"v_add_u32 v26, {CSUM}, v26")
        for t, im in enumerate(imms):
            seg, j = im // 160, (im % 160) // 8
            a(f"ds_read_b128 v[{CR+4*t}:{CR+4*t+3}], v26 offset:{16*(20*seg + j)}")
    else:
        a("v_lshlrev_b32 v26, 4, v3")
        a(f"s_mul_i32 s57, s55, {64*NT}")
        a(f"s_add_u32 s57, s57, {CSUM}")
        a("v_add_u32 v26, s57, v26")
        for t in range(NT):
            a(f"ds_read_b128 v[{CR+4*t}:{CR+4*t+3}], v26 offset:{64*t}")
    a("v_mov_b32 v28, v20")
    a("v_mov_b32 v32, v21")
    a("v_mov_b32 v30, v22")
    a("v_mov_b32 v34, v23")
    a("s_waitcnt lgkmcnt(0)")
    for t in range(NT):
        for rt in range(2):
            for h in range(2):
                ac = ACC + 8*t + 4*rt + 2*h
                a(f"v_pk_fma_f32 v[{ac}:{ac+1}], v[{CR+4*t+2*h}:{CR+4*t+2*h+1}], v[{28+2*rt}:{29+2*rt}], v[{ac}:{ac+1}] op_sel_hi:[1,0,1] neg_lo:[0,1,0] neg_hi:[0,1,0]")
    for t in range(NT):
        for rt in range(2):
            for h in range(2):
                ac = ACC + 8*t + 4*rt + 2*h
                a(f"v_pk_mul_f32 v[{ac}:{ac+1}], v[{ac}:{ac+1}], v[{32+2*rt}:{33+2*rt}] op_sel_hi:[1,0]")
    stamp(a, 5)
    if ro < 2: k1_epi_qkv(a, ro)
    else: k1_epi_h(a, ro)
def softmax(a, P, E, O, tmp=40):
    t0, t2, t4, t6 = tmp, tmp + 2, tmp + 4, tmp + 6
    a(f"v_max3_f32 v{t0}, v{P}, v{P+1}, v{P+2}")
    a(f"v_min3_f32 v{t2}, v{P}, v{P+1}, v{P+2}")
    for i in range(3, 19, 2):
        a(f"v_max3_f32 v{t0}, v{t0}, v{P+i}, v{P+i+1}")
        a(f"v_min3_f32 v{t2}, v{t2}, v{P+i}, v{P+i+1}")
    a(f"v_max_f32 v{t0}, v{t0}, v{P+19}")
    a(f"v_min_f32 v{t2}, v{t2}, v{P+19}")
    a(f"v_mul_f32 v{t0}, s56, v{t0}")
    a(f"v_mul_f32 v{t2}, s56, v{t2}")
    for i in range(0, 20, 2):
        a(f"v_pk_fma_f32 v[{E+i}:{E+i+1}], v[{P+i}:{P+i+1}], s[56:57], v[{t0}:{t0+1}] op_sel_hi:[1,0,0] neg_lo:[0,0,1] neg_hi:[0,0,1]")
        a(f"v_pk_fma_f32 v[{P+i}:{P+i+1}], v[{P+i}:{P+i+1}], s[56:57], v[{t2}:{t2+1}] op_sel_hi:[1,0,0] neg_lo:[1,0,0] neg_hi:[1,0,0]")
    for i in range(20):
        a(f"v_exp_f32 v{E+i}, v{E+i}")
        a(f"v_exp_f32 v{P+i}, v{P+i}")
    a(f"v_pk_add_f32 v[{t4}:{t4+1}], v[{E}:{E+1}], v[{E+2}:{E+3}]")
    a(f"v_pk_add_f32 v[{t6}:{t6+1}], v[{P}:{P+1}], v[{P+2}:{P+3}]")
    for i in range(4, 20, 2):
        a(f"v_pk_add_f32 v[{t4}:{t4+1}], v[{t4}:{t4+1}], v[{E+i}:{E+i+1}]")
        a(f"v_pk_add_f32 v[{t6}:{t6+1}], v[{t6}:{t6+1}], v[{P+i}:{P+i+1}]")
    a(f"v_add_f32 v{t4}, v{t4}, v{t4+1}")
    a(f"v_add_f32 v{t6}, v{t6}, v{t6+1}")
    a(f"v_rcp_f32 v{t4}, v{t4}")
    a(f"v_rcp_f32 v{t6}, v{t6}")
    for i in range(0, 20, 2):
        a(f"v_pk_mul_f32 v[{E+i}:{E+i+1}], v[{E+i}:{E+i+1}], v[{t4}:{t4+1}] op_sel_hi:[1,0]")
        a(f"v_pk_mul_f32 v[{P+i}:{P+i+1}], v[{P+i}:{P+i+1}], v[{t6}:{t6+1}] op_sel_hi:[1,0]")
    for i in range(10):
        a(f"v_cvt_pk_bf16_f32 v{O+i}, v{E+2*i}, v{E+2*i+1}")
        a(f"v_cvt_pk_bf16_f32 v{O+10+i}, v{P+2*i}, v{P+2*i+1}")

def k1_epi_qkv(a, ch):
    NV = 3 if ch == 0 else 2
    v0j = 0 if ch == 0 else 3
    F0 = 160; VP = 184; WB = 196
    for rt in range(2):
        for t in range(5):
            ac = ACC + 8*t + 4*rt
            a(f"v_cvt_pk_bf16_f32 v{F0+12*rt+2*t}, v{ac}, v{ac+1}")
            a(f"v_cvt_pk_bf16_f32 v{F0+12*rt+2*t+1}, v{ac+2}, v{ac+3}")
        for t in range(NV):
            ac = ACC + 8*(5+t) + 4*rt
            a(f"v_cvt_pk_bf16_f32 v{VP+6*rt+2*t}, v{ac}, v{ac+1}")
            a(f"v_cvt_pk_bf16_f32 v{VP+6*rt+2*t+1}, v{ac+2}, v{ac+3}")
    for z in (F0+10, F0+11, F0+22, F0+23, WB+10, WB+11, WB+22, WB+23): a(f"v_mov_b32 v{z}, 0")
    a("v_lshlrev_b32 v48, 4, v1")
    a("s_mul_i32 s57, s54, 3072")
    a(f"s_add_u32 s57, s57, {KX}")
    a("v_add_u32 v49, s57, v48")
    if ch == 0:
        for m in range(3):
            a(f"ds_write_b128 v49, v[{F0+12+4*m}:{F0+12+4*m+3}] offset:{1024*m}")
    else:
        a("s_lshl_b32 s58, s51, 3")
        a("s_lshl_b32 s59, s54, 1")
        a("s_add_u32 s58, s58, s59")
        a("s_lshl_b32 s58, s58, 3")
        a("s_add_u32 s58, s58, s52")
        a("s_mul_i32 s58, s58, 3072")
        a(f"s_add_u32 s58, s58, {QF_OFF}")
        a(f"s_add_u32 s59, s58, {8*3072}")
        for rt in range(2):
            for m in range(3):
                a(f"buffer_store_dwordx4 v[{F0+12*rt+4*m}:{F0+12*rt+4*m+3}], v48, s[32:35], s{58+rt} offen offset:{1024*m}{STM}")
    a("s_lshl_b32 s57, s54, 5")
    a("v_add_u32 v24, s57, v2")
    a(f"v_mul_u32_u24 v25, {VI_P}, v24")
    a("v_mul_u32_u24 v26, 48, v3")
    a("v_add_u32 v25, v25, v26")
    a(f"v_add_u32 v25, {VI}, v25")
    for rt in range(2):
        for t in range(NV):
            a(f"ds_write_b64 v25, v[{VP+6*rt+2*t}:{VP+6*rt+2*t+1}] offset:{rt*16*VI_P + 8*(v0j+t)}")
    if ch == 1:
        a("v_mov_b32 v32, 0x00003f80")
        a("v_mov_b32 v33, 0")
        for rt in range(2):
            a(f"ds_write_b64 v25, v[32:33] offset:{rt*16*VI_P + 40}")
    wphi_addr(a, WPHI, 34)
    a("s_waitcnt lgkmcnt(0)")
    a("s_barrier")
    if ch == 1:
        for m in range(3):
            a(f"ds_read_b128 v[{F0+4*m}:{F0+4*m+3}], v49 offset:{1024*m}")
        a("s_branch K1_QC")
        return
    a.label("K1_QC")
    ch = 2
    pq_mfma(a, 34, WB, F0, 64)
    a(f"s_mov_b32 s56, {LOG2E}")
    a(f"s_mov_b32 s57, {LOG2E}")
    O = 140
    softmax(a, 64, 104, O)
    a("s_lshl_b32 s57, s55, 4")
    a("v_add_u32 v48, s57, v24")
    a(f"v_mul_u32_u24 v48, {PHK_P}, v48")
    a("v_mul_u32_u24 v49, 80, v3")
    a("v_add_u32 v48, v48, v49")
    for m in range(5):
        a(f"ds_write_b128 v48, v[{O+4*m}:{O+4*m+3}] offset:{PHK + 16*m}")
    a("s_waitcnt vmcnt(0) lgkmcnt(0)")
    a("s_barrier")
    a("s_cmp_eq_u32 s48, 0")
    a("s_cbranch_scc0 K1_NQS")
    a("s_lshl_b32 s57, s51, 7")
    a(f"s_add_u32 s57, s57, {CNT_OFF + 8}")
    a("v_mov_b32 v28, s57")
    a("v_mov_b32 v29, 1")
    a("s_mov_b64 exec, 1")
    a("buffer_atomic_add v29, v28, s[32:35], 0 offen")
    a("s_mov_b64 exec, -1")
    a.label("K1_NQS")
    a("s_lshr_b32 s58, s48, 1")
    a("s_and_b32 s59, s48, 1")
    a("v_lshl_add_u32 v28, v3, 2, v26")
    a(f"v_mul_u32_u24 v29, {PHK_P}, v28")
    a("v_lshl_add_u32 v29, v27, 3, v29")
    a("s_mul_i32 s57, s58, 80")
    a("v_add_u32 v29, s57, v29")
    a(f"v_mul_u32_u24 v30, {VI_P}, v28")
    a("v_lshl_add_u32 v30, v27, 3, v30")
    a("s_mul_i32 s57, s58, 48")
    a("s_lshl_b32 s60, s59, 5")
    a("s_add_u32 s57, s57, s60")
    a(f"s_add_u32 s57, s57, {VI}")
    a("v_add_u32 v30, s57, v30")
    RB = 168
    for kk in range(4):
        B = RB + 16*kk
        for hf in range(2):
            a(f"ds_read_b64_tr_b16 v[{B+2*hf}:{B+2*hf+1}], v30 offset:{(32*kk+16*hf)*VI_P}")
        for ft in range(3):
            for hf in range(2):
                a(f"ds_read_b64_tr_b16 v[{B+4+4*ft+2*hf}:{B+4+4*ft+2*hf+1}], v29 offset:{(32*kk+16*hf)*PHK_P + 32*ft}")
    a("s_lshl_b32 s57, s59, 4")
    a("v_add_u32 v28, s57, v2")
    a("v_lshrrev_b32 v29, 2, v28")
    a("v_mul_u32_u24 v29, 2560, v29")
    a("v_lshl_add_u32 v29, v3, 8, v29")
    a("v_and_b32 v31, 3, v28")
    a("v_lshl_add_u32 v29, v31, 4, v29")
    a("s_lshl_b32 s57, s58, 6")
    a(f"s_add_u32 s57, s57, {KVS}")
    a("v_add_u32 v35, s57, v29")
    a("v_lshlrev_b32 v30, 4, v1")
    a(f"v_add_u32 v30, {KVDUMP}, v30")
    a("v_cmp_gt_u32 vcc, 21, v28")
    a("v_cndmask_b32 v35, v30, v35, vcc")
    a("v_cmp_gt_u32 vcc, 2, v3")
    a("v_cndmask_b32 v36, v30, v35, vcc")
    for kk in range(4):
        B = RB + 16*kk
        a(f"s_waitcnt lgkmcnt({min(15, 8*(3-kk))})")
        for ft in range(3):
            D = 64 + 4*ft
            c = "0" if kk == 0 else f"v[{D}:{D+3}]"
            a(f"v_mfma_f32_16x16x32_bf16 v[{D}:{D+3}], v[{B+4+4*ft}:{B+4+4*ft+3}], v[{B}:{B+3}], {c}")
    a("ds_write_b128 v35, v[64:67]")
    a("ds_write_b128 v35, v[68:71] offset:1024")
    a("ds_write_b128 v36, v[72:75] offset:2048")
    a("s_mov_b32 s60, 0")
    a("s_waitcnt vmcnt(0)")
    a.label(f"K1_POLL{ch}")
    a("v_readfirstlane_b32 s57, v61")
    a("s_cmp_lg_u32 s57, 0")
    a(f"s_cbranch_scc1 K1_POLLDONE{ch}")
    a("s_add_u32 s60, s60, 1")
    a("s_cmp_ge_u32 s60, 100000")
    a(f"s_cbranch_scc1 K1_POLLDONE{ch}")
    a("buffer_load_dword v61, v60, s[44:47], 0 offen sc0 sc1")
    a("s_waitcnt vmcnt(0)")
    a(f"s_branch K1_POLL{ch}")
    a.label(f"K1_POLLDONE{ch}")
    a("s_waitcnt lgkmcnt(0)")
    a("s_barrier")
    a("v_lshlrev_b32 v24, 2, v0")
    a(f"v_add_u32 v25, {KVS}, v24")
    for it in range(8):
        a(f"ds_read_b32 v{28+it}, v25 offset:{2048*it}")
    a("v_lshrrev_b32 v40, 4, v24")
    a("v_and_b32 v40, 3, v40")
    a(f"v_mov_b32 v41, {OOB}")
    a("v_cmp_eq_u32 vcc, 0, v40")
    a("v_cndmask_b32 v42, v41, v24, vcc")
    a("v_cmp_gt_u32 vcc, 512, v24")
    a("v_cndmask_b32 v43, v42, v24, vcc")
    for it in range(8):
        vo = 24 if it < 6 else (43 if it == 6 else 42)
        a(f"s_waitcnt lgkmcnt({7-it})")
        a(f"s_mov_b32 s57, {2048*it}")
        a(f"buffer_atomic_add_f32 v{28+it}, v{vo}, s[40:43], s57 offen")

def wphi_addr(a, base, R):
    a("v_lshrrev_b32 v26, 2, v1")
    a("v_and_b32 v26, 3, v26")
    a("v_and_b32 v27, 3, v1")
    a("v_mul_u32_u24 v28, 800, v3")
    a("v_mul_u32_u24 v29, 40, v26")
    a("v_add_u32 v28, v28, v29")
    a(f"v_add_u32 v28, {base}, v28")
    a(f"v_mov_b32 v29, {base+3200}")
    a("v_cmp_eq_u32 vcc, v27, v3")
    for i in range(5):
        a(f"v_add_u32 v30, {160*i}, v28")
        a(f"v_cndmask_b32 v{R+i}, v29, v30, vcc")

def pq_mfma(a, R, WB, F, D0):
    def wread(j, base):
        for i in range(5):
            a(f"ds_read_b64_tr_b16 v[{base+2*i}:{base+2*i+1}], v{R+i} offset:{8*j}")
    wread(0, WB)
    for j in range(5):
        base = WB + 12*(j & 1)
        if j < 4: wread(j+1, WB + 12*((j+1) & 1))
        a(f"s_waitcnt lgkmcnt({5 if j < 4 else 0})")
        D = D0 + 4*j
        a(f"v_mfma_f32_16x16x32_bf16 v[{D}:{D+3}], v[{base}:{base+3}], v[{F}:{F+3}], 0")
        a(f"v_mfma_f32_16x16x32_bf16 v[{D}:{D+3}], v[{base+4}:{base+7}], v[{F+4}:{F+7}], v[{D}:{D+3}]")
        a(f"v_mfma_f32_16x16x32_bf16 v[{D}:{D+3}], v[{base+8}:{base+11}], v[{F+8}:{F+11}], v[{D}:{D+3}]")

def w2f_prep(a):
    a("s_mul_i32 s69, s51, 5")
    a("s_add_u32 s69, s69, s52")
    a("s_sub_u32 s69, s69, 3")
    a("s_lshl_b32 s57, s48, 2")
    a("v_add_u32 v24, s57, v3")
    a("v_lshrrev_b32 v25, 3, v24")
    a("v_and_b32 v26, 7, v24")
    a("v_lshrrev_b32 v27, 2, v26")
    a("v_lshlrev_b32 v27, 4, v27")
    a("v_lshl_add_u32 v27, v25, 2, v27")
    a("v_and_b32 v28, 3, v26")
    a("v_add_u32 v32, v27, v28")
    a("v_mul_u32_u24 v31, 20, v25")
    a("s_mov_b32 s98, 0")
    for n in range(5):
        a(f"s_add_u32 s64, s69, {80*n}")
        a("s_mul_i32 s65, s64, 205")
        a("s_lshr_b32 s70, s65, 10")
        a("s_mul_i32 s65, s70, 5")
        a("s_sub_u32 s65, s64, s65")
        a("s_lshl_b32 s72, s65, 8")
        a("s_cmp_ge_u32 s64, 370")
        a(f"s_cselect_b32 s72, {OOB}, s72")
        a("s_lshl_b32 s76, s70, 5")
        a("v_add_u32 v27, s76, v32")
        a("s_sub_u32 s76, s70, 54")
        a("s_max_i32 s76, s76, 0")
        a("s_mul_i32 s77, s76, 205")
        a("s_lshr_b32 s77, s77, 10")
        a("s_mul_i32 s65, s77, 5")
        a("s_sub_u32 s65, s76, s65")
        a("s_lshl_b32 s65, s65, 3")
        a("v_add_u32 v28, s65, v26")
        a("v_cmp_lt_u32 vcc, 19, v28")
        a("v_cndmask_b32 v30, 0, 60, vcc")
        a("v_add3_u32 v29, v28, v30, v31")
        a("s_mul_i32 s77, s77, 160")
        a("v_add_u32 v29, s77, v29")
        a("s_cmp_ge_u32 s70, 54")
        a(f"s_cselect_b32 s65, {1 << n}, 0")
        a("s_cselect_b64 vcc, -1, 0")
        a("s_or_b32 s98, s98, s65")
        a("v_cndmask_b32 v27, v27, v29, vcc")
        a("v_mul_u32_u24 v27, 1280, v27")
        a("v_lshl_add_u32 v27, v2, 4, v27")
        a(f"v_add_u32 v{217+n}, s72, v27")
    a("v_lshrrev_b32 v26, 2, v1")
    a("v_and_b32 v26, 3, v26")
    a("v_and_b32 v27, 3, v1")
    a("v_lshl_add_u32 v28, v3, 3, v26")
    a("v_lshlrev_b32 v28, 8, v28")
    a("v_lshl_add_u32 v28, v27, 3, v28")
    a("s_lshl_b32 s57, s48, 5")
    a("v_add_u32 v211, s57, v28")
    a("v_lshlrev_b32 v216, 4, v1")

W2B = [PART, 26624, STAGE + 26624, 2*STAGE + 26624, PART]
def w2f_dma(n):
    return [f"s_bitcmp1_b32 s98, {n}", "s_cselect_b32 s76, s10, s16", "s_cselect_b32 s77, s11, s17", f"s_mov_b32 s78, {1728*640*2}", f"s_cselect_b32 s78, {640*640*2}, s78",
            "s_mov_b32 s79, 0x00020000", "s_lshl_b32 s57, s48, 10", f"s_add_u32 m0, s57, {W2B[n]}", f"T:buffer_load_dwordx4 v{217+n}, s[76:79], 0 offen lds"]

def w2f_out(n):
    return [f"v_add_u32 v210, {W2B[n]}, v211", "ds_read_b64_tr_b16 v[212:213], v210", "ds_read_b64_tr_b16 v[214:215], v210 offset:1024",
            f"s_add_u32 s64, s69, {80*n}", "s_lshl_b32 s65, s64, 3", "s_add_u32 s65, s65, s48", "s_lshl_b32 s65, s65, 10", f"s_add_u32 s65, s65, {WF_OFF}",
            "s_cmp_ge_u32 s64, 370", f"s_cselect_b32 s65, {OOB}, s65", "s_waitcnt lgkmcnt(0)", f"buffer_store_dwordx4 v[212:215], v216, s[32:35], s65 offen{STM}", "s_nop 1"]

def k1_epi_h(a, ro):
    NP = 4 if ro == 2 else 3
    a(f"s_mov_b32 s56, {LOG2E}")
    a(f"s_mov_b32 s57, {LOG2E}")
    a("s_lshl_b32 s60, s51, 3")
    a("s_lshl_b32 s61, s54, 1")
    a("s_add_u32 s60, s60, s61")
    a("s_mul_i32 s60, s60, 54")
    a("s_mul_i32 s61, s52, 3")
    a("s_add_u32 s61, s61, 3")
    a("s_lshl_b32 s62, s52, 2")
    a("s_cmp_lt_u32 s52, 3")
    a("s_cselect_b32 s61, s62, s61")
    a("s_lshl_b32 s61, s61, 1")
    a("s_add_u32 s60, s60, s61")
    a(f"s_mul_i32 s61, s55, {NP}")
    a("s_add_u32 s60, s60, s61")
    a("s_lshl_b32 s60, s60, 10")
    a(f"s_add_u32 s61, s60, {54*1024}")
    a("v_lshlrev_b32 v44, 4, v1")
    for pi in range(NP):
        for rt in range(2):
            prs = [ACC + 8*(2*pi) + 4*rt, ACC + 8*(2*pi) + 4*rt + 2, ACC + 8*(2*pi+1) + 4*rt, ACC + 8*(2*pi+1) + 4*rt + 2]
            T = 128 + 8*((2*pi+rt) & 1)
            for i, v in enumerate(prs): a(f"v_pk_mul_f32 v[{T+2*i}:{T+2*i+1}], v[{v}:{v+1}], s[56:57] op_sel_hi:[1,0]")
            for i in range(8): a(f"v_exp_f32 v{T+i}, -v{T+i}")
            for i in range(4): a(f"v_pk_add_f32 v[{T+2*i}:{T+2*i+1}], v[{T+2*i}:{T+2*i+1}], 1.0 op_sel_hi:[1,0]")
            for i in range(8): a(f"v_rcp_f32 v{T+i}, v{T+i}")
            for i, v in enumerate(prs): a(f"v_pk_mul_f32 v[{v}:{v+1}], v[{v}:{v+1}], v[{T+2*i}:{T+2*i+1}]")
            O = 160 + 4*(2*pi+rt)
            for i, v in enumerate(prs): a(f"v_cvt_pk_bf16_f32 v{O+i}, v{v}, v{v+1}")
            a(f"buffer_store_dwordx4 v[{O}:{O+3}], v44, s[32:35], s{60+rt} offen offset:{1024*pi}{STM}")

K2_LDS = 160 * 1024
def spin(a, name, loads, cond):
    a("s_mov_b32 s68, 0")
    a.label(f"{name}")
    for x in loads: a(x)
    a("s_waitcnt vmcnt(0)")
    for x in cond: a(x)
    a(f"s_cbranch_scc1 {name}_D")
    a("s_add_u32 s68, s68, 1")
    a("s_cmp_ge_u32 s68, 100000")
    a(f"s_cbranch_scc1 {name}_D")
    a("s_sleep %d" % opt("sl", 10))
    a(f"s_branch {name}")
    a.label(f"{name}_D")

def lspin(a, name):
    a("s_mov_b32 s68, 0")
    a.label(name)
    a("ds_read_b32 v63, v62")
    a("s_waitcnt lgkmcnt(0)")
    a("v_readfirstlane_b32 s57, v63")
    a("s_cmp_lg_u32 s57, 0")
    a(f"s_cbranch_scc1 {name}_D")
    a("s_add_u32 s68, s68, 1")
    a("s_cmp_ge_u32 s68, 3000000")
    a(f"s_cbranch_scc1 {name}_D")
    a("s_sleep 1")
    a(f"s_branch {name}")
    a.label(f"{name}_D")

def phase2(a):
    stamp(a, 6)
    a("s_lshr_b32 s57, s48, 2")
    a("s_mul_i32 s57, s57, 81920")
    a("s_add_u32 s57, s57, 20464")
    a("v_mov_b32 v62, s57")
    a("v_mov_b32 v63, 0")
    a("ds_write_b32 v62, v63")
    a("s_waitcnt vmcnt(0) lgkmcnt(0)")
    a("s_barrier")
    a("s_cmp_eq_u32 s48, 0")
    a("s_cbranch_scc0 P2_NSIG")
    a("v_mov_b32 v25, 1")
    a(f"s_mov_b32 s58, {CNT_OFF}")
    a("s_cmp_eq_u32 s53, 0")
    a("s_cbranch_scc1 P2_SQ")
    a("s_lshl_b32 s57, s51, 7")
    a("v_mov_b32 v24, s57")
    a("v_lshlrev_b32 v26, 7, v1")
    a("s_mov_b64 exec, 1")
    a("buffer_atomic_add v25, v24, s[32:35], s58 offen")
    a("s_branch P2_SE")
    a.label("P2_SQ")
    a("s_lshl_b32 s57, s52, 7")
    a("s_add_u32 s57, s57, 2048")
    a("v_mov_b32 v24, s57")
    a("s_mov_b64 exec, 1")
    a("buffer_atomic_add v25, v24, s[32:35], s58 offen")
    a.label("P2_SE")
    a("s_mov_b64 exec, -1")
    a.label("P2_NSIG")
    a("s_and_b32 s49, s2, 7")
    a("s_lshr_b32 s50, s2, 3")
    a("s_and_b32 s51, s49, 1")
    a("s_lshl_b32 s51, s51, 4")
    a("s_bfe_u32 s52, s49, 0x10001")
    a("s_lshl_b32 s52, s52, 3")
    a("s_add_u32 s51, s51, s52")
    a("s_and_b32 s52, s50, 7")
    a("s_add_u32 s51, s51, s52")
    a("s_lshr_b32 s52, s49, 2")
    a("s_lshl_b32 s52, s52, 2")
    a("s_lshr_b32 s53, s50, 3")
    a("s_add_u32 s52, s52, s53")
    srd(a, 28, 18, 19, 2621440)
    a("v_lshlrev_b32 v5, 4, v1")
    a(f"v_mov_b32 v23, {OOB}")
    a("s_mul_i32 s56, s52, 5120")
    a(f"s_add_u32 s56, s56, {WF_OFF}")
    a("v_add_u32 v10, s56, v5")
    a("v_add_u32 v11, 4096, v10")
    a("s_mul_i32 s66, s48, 20480")
    a("v_lshrrev_b32 v24, 1, v2")
    a("v_xor_b32 v24, v24, v3")
    a("v_and_b32 v24, 3, v24")
    a("v_lshl_add_u32 v24, v2, 2, v24")
    a("v_lshlrev_b32 v24, 4, v24")
    a("v_add_u32 v13, s66, v24")
    a("v_lshrrev_b32 v14, 2, v1")
    a("v_and_b32 v15, 3, v1")
    a("v_lshrrev_b32 v24, 1, v14")
    a("v_xor_b32 v24, v24, v15")
    a("v_and_b32 v24, 3, v24")
    a("v_lshl_add_u32 v24, v14, 2, v24")
    a("v_lshlrev_b32 v12, 4, v24")
    a("s_cmp_ge_u32 s48, 4")
    a("s_cbranch_scc1 P2_OW")
    a(f"s_mul_i32 s55, s51, {4*54*1024}")
    for aa in range(4):
        a(f"s_add_u32 s56, s55, {aa*54*1024 + HF_OFF}")
        a(f"v_add_u32 v{6+aa}, s56, v5")
    a("s_mul_i32 s53, s48, 14")
    a("s_cmp_eq_u32 s48, 3")
    a("s_cselect_b32 s57, 1, 0")
    a("s_sub_u32 s53, s53, s57")
    a("s_lshl_b32 s60, s53, 10")
    a("s_mul_i32 s61, s53, 40960")
    a("s_lshr_b32 s62, s48, 1")
    a("s_lshr_b32 s57, s51, 1")
    a("s_lshl_b32 s57, s57, 7")
    a(f"s_add_u32 s57, s57, {CNT_OFF}")
    a("v_mov_b32 v24, s57")
    a("s_cmp_eq_u32 s48, 0")
    a("s_cbranch_scc0 P2_LF")
    spin(a, "P2_SF", ["buffer_load_dwordx2 v[26:27], v24, s[32:35], 0 offen sc0 sc1"],
         ["v_readfirstlane_b32 s57, v26", "v_readfirstlane_b32 s58, v27", "s_mul_i32 s57, s57, 10", "s_min_u32 s57, s57, s58", "s_cmp_ge_u32 s57, 80"])
    a("v_mov_b32 v63, 1")
    a("ds_write_b32 v62, v63")
    a("s_branch P2_GEMM")
    a.label("P2_LF")
    lspin(a, "P2_LFS")
    a("s_branch P2_GEMM")
    a.label("P2_OW")
    a("s_setprio 3")
    WP = 0; KVF = 4096; ZR = 12288
    a("s_lshl_b32 s57, s51, 7")
    a(f"s_add_u32 s57, s57, {CNT_OFF + 3072}")
    a("v_mov_b32 v18, s57")
    a("s_bitcmp1_b32 s52, 1")
    a("s_cbranch_scc0 P2_OSKIP")
    a("s_cmp_ge_u32 s48, 6")
    a("s_cselect_b32 s57, 2, 0")
    a("s_sub_u32 s70, s52, s57")
    a("s_mul_i32 s56, s70, 3200")
    for k in range(4):
        a(f"v_add_u32 v24, {1024*k}, v5")
        a("v_add_u32 v25, s56, v24")
        a("v_cmp_gt_u32 vcc, 3200, v24")
        a("v_cndmask_b32 v25, v23, v25, vcc")
        a(f"buffer_load_dwordx4 v[{144+4*k}:{147+4*k}], v25, s[36:39], 0 offen")
    a("v_add_u32 v16, s66, v5")
    for z in range(4): a(f"v_mov_b32 v{160+z}, 0")
    for k in range(8): a(f"ds_write_b128 v16, v[160:163] offset:{ZR + 1024*k}")
    a("s_waitcnt vmcnt(0)")
    for k in range(4): a(f"ds_write_b128 v16, v[{144+4*k}:{147+4*k}] offset:{WP + 1024*k}")
    a("s_lshr_b32 s57, s51, 1")
    a("s_lshl_b32 s57, s57, 7")
    a(f"s_add_u32 s57, s57, {CNT_OFF + 8}")
    a("v_mov_b32 v24, s57")
    spin(a, "P2_SQ2", ["buffer_load_dword v25, v24, s[32:35], 0 offen sc0 sc1"], ["v_readfirstlane_b32 s57, v25", "s_cmp_ge_u32 s57, 8"])
    a("s_lshl_b32 s64, s51, 2")
    a("s_and_b32 s57, s48, 1")
    a("s_lshl_b32 s57, s57, 1")
    a("s_add_u32 s64, s64, s57")
    a("s_lshl_b32 s65, s64, 3")
    a("s_add_u32 s65, s65, s70")
    a("s_mul_i32 s65, s65, 3072")
    a(f"s_add_u32 s65, s65, {QF_OFF}")
    a(f"s_add_u32 s67, s65, {8*3072}")
    for u in range(2):
        for m in range(3):
            a(f"buffer_load_dwordx4 v[{208+12*u+4*m}:{211+12*u+4*m}], v5, s[32:35], s{65+2*u} offen offset:{1024*m} sc0 sc1")
    a("v_lshrrev_b32 v26, 2, v1")
    a("v_and_b32 v26, 3, v26")
    a("v_and_b32 v27, 3, v1")
    a("v_mul_u32_u24 v28, 800, v3")
    a("v_mul_u32_u24 v29, 40, v26")
    a("v_add3_u32 v28, v28, v29, s66")
    a(f"v_mov_b32 v29, {WP+3200}")
    a("v_add_u32 v29, s66, v29")
    a("v_cmp_eq_u32 vcc, v27, v3")
    for i in range(5):
        a(f"v_add_u32 v30, {WP+160*i}, v28")
        a(f"v_cndmask_b32 v{31+i}, v29, v30, vcc")
    a("v_lshrrev_b32 v24, 2, v2")
    a("v_lshlrev_b32 v25, 4, v2")
    a(f"v_add_u32 v25, {KVF}, v25")
    a(f"v_mov_b32 v28, {ZR}")
    a("v_cmp_eq_u32 vcc, v24, v3")
    a("v_cndmask_b32 v17, v28, v25, vcc")
    a("v_add_u32 v17, s66, v17")
    WB = 144
    a("s_waitcnt vmcnt(0) lgkmcnt(0)")
    for z in (WB+10, WB+11, WB+22, WB+23): a(f"v_mov_b32 v{z}, 0")
    a(f"s_mov_b32 s56, {LOG2E}")
    a(f"s_mov_b32 s57, {LOG2E}")
    a("s_mul_i32 s65, s64, 20")
    a("s_lshr_b32 s67, s70, 1")
    a("s_mul_i32 s67, s67, 5")
    a("s_add_u32 s65, s65, s67")
    a("s_lshl_b32 s65, s65, 10")
    a(f"s_add_u32 s65, s65, {OF_OFF}")
    a("s_mov_b32 s63, 0")
    a.label("P2_PL")
    pq_mfma(a, 31, WB, 208, 64)
    softmax(a, 64, 84, 104, tmp=40)
    a("s_cmp_eq_u32 s63, 0")
    a("s_cbranch_scc0 P2_PLE")
    for i in range(12): a(f"v_mov_b32 v{208+i}, v{220+i}")
    for i in range(20): a(f"v_mov_b32 v{232+i}, v{104+i}")
    a("s_mov_b32 s63, 1")
    a("s_branch P2_PL")
    a.label("P2_PLE")
    a("s_lshl_b32 s57, s70, 7")
    a(f"s_add_u32 s57, s57, {CNT_OFF + 2048}")
    a("v_mov_b32 v24, s57")
    a("v_lshlrev_b32 v25, 9, v3")
    a("v_lshl_add_u32 v20, v2, 4, v25")
    a(f"s_mul_i32 s62, s70, {KVQ}")
    a(f"s_add_u32 s62, s62, {KV_OFF}")
    a("v_add_u32 v25, 14336, v20")
    a(f"v_cmp_gt_u32 vcc, {KVQ}, v25")
    a("v_cndmask_b32 v21, v23, v20, vcc")
    spin(a, "P2_SK", ["buffer_load_dword v25, v24, s[32:35], 0 offen sc0 sc1"], ["v_readfirstlane_b32 s57, v25", "s_cmp_ge_u32 s57, 16"])
    for gq in range(8):
        vo = 20 if gq < 7 else 21
        a(f"buffer_load_dwordx4 v[{144+8*gq}:{147+8*gq}], v{vo}, s[32:35], s62 offen sc0 sc1")
        a(f"buffer_load_dwordx4 v[{148+8*gq}:{151+8*gq}], v{vo}, s[32:35], s62 offen offset:256 sc0 sc1")
        a("s_add_u32 s62, s62, 2048")
    a("s_waitcnt vmcnt(0)")
    for gq in range(8):
        for d in range(4):
            a(f"v_cvt_pk_bf16_f32 v{144+8*gq+d}, v{144+8*gq+2*d}, v{144+8*gq+2*d+1}")
        a(f"ds_write_b128 v16, v[{144+8*gq}:{147+8*gq}] offset:{KVF + 1024*gq}")
    a("s_waitcnt lgkmcnt(0)")
    AB = [168, 172, 176, 180, 184, 188, 192, 196, 200, 204]
    DD = (64, 128); PH = (232, 104); PK = (152, 208)
    def kread(j):
        for m in range(5):
            b = AB[5*(j & 1) + m]
            a(f"ds_read_b128 v[{b}:{b+3}], v17 offset:{256*(5*j+m)}")
    kread(0)
    for j in range(6):
        if j < 5: kread(j + 1)
        a(f"s_waitcnt lgkmcnt({5 if j < 5 else 0})")
        for m in range(5):
            b = AB[5*(j & 1) + m]
            for u in range(2):
                D = DD[u] + 4*j
                c = "0" if m == 0 else f"v[{D}:{D+3}]"
                a(f"v_mfma_f32_16x16x32_bf16 v[{D}:{D+3}], v[{b}:{b+3}], v[{PH[u]+4*m}:{PH[u]+4*m+3}], {c}")
    for u in range(2):
        D = DD[u]
        a(f"v_add_f32 v{D+20}, 0x358637bd, v{D+20}")
        a(f"v_rcp_f32 v{D+20}, v{D+20}")
        for i in range(0, 20, 2):
            a(f"v_pk_mul_f32 v[{D+i}:{D+i+1}], v[{D+i}:{D+i+1}], v[{D+20}:{D+21}] op_sel_hi:[1,0]")
        for i in range(10):
            a(f"v_cvt_pk_bf16_f32 v{PK[u]+i}, v{D+2*i}, v{D+2*i+1}")
    a("s_and_b32 s67, s70, 1")
    a("s_cmp_eq_u32 s67, 0")
    a("s_cbranch_scc0 P2_OODD")
    for u in range(2):
        K_ = PK[u]
        a(f"buffer_store_dwordx4 v[{K_}:{K_+3}], v5, s[32:35], s65 offen sc0 sc1")
        a(f"buffer_store_dwordx4 v[{K_+4}:{K_+7}], v5, s[32:35], s65 offen offset:1024 sc0 sc1")
        a(f"buffer_store_dwordx2 v[{K_+8}:{K_+9}], v5, s[32:35], s65 offen offset:2048 sc0 sc1")
        a(f"s_add_u32 s65, s65, {20*1024}")
    a("s_branch P2_OST")
    a.label("P2_OODD")
    for u in range(2):
        K_ = PK[u]
        a(f"buffer_store_dwordx2 v[{K_}:{K_+1}], v5, s[32:35], s65 offen offset:2056 sc0 sc1")
        a(f"buffer_store_dwordx4 v[{K_+2}:{K_+5}], v5, s[32:35], s65 offen offset:3072 sc0 sc1")
        a("s_add_u32 s67, s65, 4096")
        a(f"buffer_store_dwordx4 v[{K_+6}:{K_+9}], v5, s[32:35], s67 offen sc0 sc1")
        a(f"s_add_u32 s65, s65, {20*1024}")
    a.label("P2_OST")
    a("s_waitcnt vmcnt(0)")
    a("v_mov_b32 v25, 1")
    a("s_mov_b64 exec, 1")
    a("buffer_atomic_add v25, v18, s[32:35], 0 offen")
    a("s_mov_b64 exec, -1")
    a.label("P2_OSKIP")
    a("v_mov_b32 v24, v18")
    a(f"s_mul_i32 s55, s51, {4*20*1024}")
    for aa in range(4):
        a(f"s_add_u32 s56, s55, {aa*20*1024 + OF_OFF}")
        a(f"v_add_u32 v{6+aa}, s56, v5")
    a("s_sub_u32 s53, s48, 4")
    a("s_mul_i32 s53, s53, 5")
    a("s_lshl_b32 s60, s53, 10")
    a("s_add_u32 s53, s53, 54")
    a("s_mul_i32 s61, s53, 40960")
    a("s_mov_b32 s62, 0")
    a("s_lshr_b32 s57, s51, 1")
    a("s_lshl_b32 s57, s57, 7")
    a(f"s_add_u32 s57, s57, {CNT_OFF + 4}")
    a("v_mov_b32 v26, s57")
    spin(a, "P2_SW", ["buffer_load_dword v27, v26, s[32:35], 0 offen sc0 sc1"], ["v_readfirstlane_b32 s58, v27", "s_cmp_ge_u32 s58, 80"])
    for m in range(5):
        for tt_ in range(4): a(f"buffer_load_dwordx4 v[{144+20*m+4*tt_}:{147+20*m+4*tt_}], v10, s[32:35], s61 offen offset:{1024*tt_}{LDM}")
        a(f"buffer_load_dwordx4 v[{160+20*m}:{163+20*m}], v11, s[32:35], s61 offen{LDM}")
        a("s_add_u32 s61, s61, 40960")
    a("s_cmp_eq_u32 s48, 4")
    a("s_cbranch_scc0 P2_LO")
    spin(a, "P2_SO", ["buffer_load_dword v25, v24, s[32:35], 0 offen sc0 sc1"], ["v_readfirstlane_b32 s57, v25", "s_cmp_ge_u32 s57, 16"])
    a("v_mov_b32 v63, 1")
    a("ds_write_b32 v62, v63")
    a("s_branch P2_LOE")
    a.label("P2_LO")
    lspin(a, "P2_LOS")
    a("s_waitcnt vmcnt(0)")
    a.label("P2_LOE")
    a.label("P2_GEMM")
    stamp(a, 7)
    AC = 64
    FB = [144, 180, 216, 28]
    vm = []
    def issue_list(g):
        P = FB[g % 4]
        L = []
        pre = []
        if g > 0: pre = ["s_add_u32 s60, s60, 1024", "s_add_u32 s61, s61, 40960"]
        if g == 13: pre += ["s_cmp_eq_u32 s62, 1", f"s_cselect_b32 s60, {OOB}, s60", f"s_cselect_b32 s61, {OOB}, s61"]
        for t in range(4): L.append(f"buffer_load_dwordx4 v[{P+16+4*t}:{P+19+4*t}], v10, s[32:35], s61 offen offset:{1024*t}{LDM}")
        L.append(f"buffer_load_dwordx4 v[{P+32}:{P+35}], v11, s[32:35], s61 offen{LDM}")
        for aa in range(4): L.append(f"buffer_load_dwordx4 v[{P+4*aa}:{P+4*aa+3}], v{6+aa}, s[32:35], s60 offen{LDM}")
        return [(pre + [L[0]], g)] + [([x], g) for x in L[1:]]
    def play(gr):
        for t in gr[0]: a(t)
        vm.append(gr[1])
    def gemm(NST, tagp):
        del vm[:]
        PD = opt("pd", 3)
        for g in range(PD):
            for gr in issue_list(g): play(gr)
        for g in range(NST):
            last = max(i for i, x in enumerate(vm) if x == g)
            a(f"s_waitcnt vmcnt({len(vm) - 1 - last})")
            P = FB[g % 4]
            lg = issue_list(g + PD) if g + PD < NST else []
            k2 = 0; nm = 0
            for t in range(5):
                for aa in range(4):
                    ac = AC + 16*t + 4*aa
                    cc = "0" if g == 0 else f"v[{ac}:{ac+3}]"
                    a(f"v_mfma_f32_16x16x32_bf16 v[{ac}:{ac+3}], v[{P+16+4*t}:{P+19+4*t}], v[{P+4*aa}:{P+4*aa+3}], {cc}")
                    nm += 1
                    want = (len(lg) * nm + 19) // 20
                    while k2 < min(want, len(lg)):
                        play(lg[k2]); k2 += 1
    a("s_cmp_ge_u32 s48, 4")
    a("s_cbranch_scc1 P2_G5")
    gemm(14, "f")
    a("s_branch P2_GE")
    a.label("P2_G5")
    OB = [28, 44, 244]
    def oreg(m, aa):
        if m < 2: return OB[m] + 4*aa
        if m == 2: return (244, 248, 252, 60)[aa]
        return OB[m - 3] + 4*aa
    def oload(m):
        for aa in range(4):
            r = oreg(m, aa)
            a(f"buffer_load_dwordx4 v[{r}:{r+3}], v{6+aa}, s[32:35], s60 offen offset:{1024*m if m < 4 else 0} sc1" if m < 4 else f"buffer_load_dwordx4 v[{r}:{r+3}], v{6+aa}, s[32:35], s63 offen{LDM}")
    a("s_add_u32 s63, s60, 4096")
    for m in range(3): oload(m)
    for m in range(5):
        a(f"s_waitcnt vmcnt({(8, 8, 8, 4, 0)[m]})")
        for tt_ in range(5):
            for aa in range(4):
                ac = AC + 16*tt_ + 4*aa
                cc = "0" if m == 0 else f"v[{ac}:{ac+3}]"
                r = oreg(m, aa)
                a(f"v_mfma_f32_16x16x32_bf16 v[{ac}:{ac+3}], v[{144+20*m+4*tt_}:{147+20*m+4*tt_}], v[{r}:{r+3}], {cc}")
        if m < 2: oload(m + 3)
    a.label("P2_GE")
    a("s_lshl_b32 s55, s51, 6")
    a("s_and_b32 s56, s48, 3")
    a("s_lshl_b32 s56, s56, 4")
    a("s_add_u32 s55, s55, s56")
    a("v_add_u32 v24, s55, v14")
    a("v_mul_u32_u24 v24, 1280, v24")
    a("v_lshl_add_u32 v24, v15, 3, v24")
    a("s_mul_i32 s56, s52, 160")
    a("v_add_u32 v22, s56, v24")
    XP = 28
    a("s_lshr_b32 s57, s48, 2")
    a("s_mul_i32 s58, s57, 96")
    a("v_add_u32 v22, s58, v22")
    a("s_cmp_eq_u32 s57, 0")
    a("s_cselect_b64 vcc, -1, 0")
    a("v_cndmask_b32 v19, v23, v22, vcc")
    for t in range(2): a(f"buffer_load_dwordx2 v[{XP+2*t}:{XP+1+2*t}], v22, s[24:27], 0 offen offset:{32*t}")
    a(f"buffer_load_dwordx2 v[{XP+4}:{XP+5}], v19, s[24:27], 0 offen offset:64")
    for aa in range(4):
        for t in range(5):
            a(f"ds_write_b128 v13, v[{AC+16*t+4*aa}:{AC+16*t+4*aa+3}] offset:{5120*aa + 1024*t}")
    a("s_waitcnt lgkmcnt(0)")
    a("s_barrier")
    a("s_and_b32 s55, s48, 3")
    a("s_mul_i32 s55, s55, 5120")
    a("s_mul_i32 s58, s57, 3072")
    a("s_add_u32 s55, s55, s58")
    a("v_add_u32 v4, s55, v12")
    a("v_add_u32 v21, 61440, v4")
    a("v_add_u32 v20, 122880, v4")
    for k in range(8):
        B = 64 + 12*k
        va = (4, 21, 20)[k // 3]
        for t in range(3):
            a(f"ds_read_b128 v[{B+4*t}:{B+4*t+3}], v{va} offset:{20480*(k % 3) + 1024*t}")
    for k in (1, 2, 3, 5, 6, 7):
        a(f"s_waitcnt lgkmcnt({min(15, 3*(7-k))})")
        D_ = 64 if k < 4 else 112
        for i in range(0, 12, 2):
            a(f"v_pk_add_f32 v[{D_+i}:{D_+i+1}], v[{D_+i}:{D_+i+1}], v[{64+12*k+i}:{65+12*k+i}]")
    a(f"s_mov_b32 s56, {LOG2E}")
    a(f"s_mov_b32 s57, {LOG2E}")
    FIN = 64; S_ = 112; T = 76
    for i in range(0, 12, 2): a(f"v_pk_mul_f32 v[{T+i}:{T+i+1}], v[{FIN+i}:{FIN+i+1}], s[56:57] op_sel_hi:[1,0]")
    for i in range(12): a(f"v_exp_f32 v{T+i}, -v{T+i}")
    for i in range(0, 12, 2): a(f"v_pk_add_f32 v[{T+i}:{T+i+1}], v[{T+i}:{T+i+1}], 1.0 op_sel_hi:[1,0]")
    for i in range(12): a(f"v_rcp_f32 v{T+i}, v{T+i}")
    for i in range(0, 12, 2): a(f"v_pk_mul_f32 v[{FIN+i}:{FIN+i+1}], v[{FIN+i}:{FIN+i+1}], v[{T+i}:{T+i+1}]")
    a("s_waitcnt vmcnt(0)")
    for t in range(3):
        for d in range(2):
            xr = XP + 2*t + d
            a(f"v_lshlrev_b32 v{T+12}, 16, v{xr}")
            a(f"v_and_b32 v{T+13}, 0xffff0000, v{xr}")
            i = 4*t + 2*d
            a(f"v_pk_fma_f32 v[{T+12}:{T+13}], v[{S_+i}:{S_+i+1}], v[{FIN+i}:{FIN+i+1}], v[{T+12}:{T+13}]")
            a(f"v_cvt_pk_bf16_f32 v{T+14+2*t+d}, v{T+12}, v{T+13}")
        a(f"buffer_store_dwordx2 v[{T+14+2*t}:{T+15+2*t}], v{22 if t < 2 else 19}, s[28:31], 0 offen offset:{32*t}")
    a.label("P2_DONE")
    if DIAG:
        a("s_waitcnt vmcnt(0)")
        stamp(a, 1)
    dump_stamps(a, 8, 0, 22, 23)

def desc(name, vgpr, sgpr=100):
    acc = min((vgpr + 3) // 4 * 4, 256)
    return f"""
.p2align 6
.amdhsa_kernel {name}
  .amdhsa_next_free_vgpr {vgpr}
  .amdhsa_next_free_sgpr {sgpr}
  .amdhsa_accum_offset {acc}
  .amdhsa_group_segment_fixed_size 0
  .amdhsa_kernarg_size 80
  .amdhsa_user_sgpr_count 2
  .amdhsa_user_sgpr_kernarg_segment_ptr 1
  .amdhsa_system_sgpr_workgroup_id_x 1
.end_amdhsa_kernel
"""

if __name__ == "__main__":
    k1 = gen_k1()
    hdr = f"""; generated by dev/gen17.py
; @launch kernel=k1_kernel grid=(256,1,1) block=(512,1,1) lds={K1_LDS}
.amdgcn_target "amdgcn-amd-amdhsa--gfx950"
.text
"""
    out = hdr + k1.text() + '.section .rodata,"a"\n' + desc("k1_kernel", 256)
    path = sys.argv[1] if len(sys.argv) > 1 and not sys.argv[1].startswith("--") else f"cdna_kernels/{NAME}.s"
    open(path, "w").write(out)
    print("written", path, len(out), "nops", k1.nops)
```
